```python
import torch

def _softmax(x, axis=-1):
    return torch.softmax(x, dim=axis)
def _gelu(x):
    return torch.nn.functional.gelu(x, approximate="tanh")
def _silu(x):
    return torch.nn.functional.silu(x)
def _sigmoid(x):
    return torch.sigmoid(x)
def _layernorm(x, axis=-1, eps=1e-5):
    m = x.mean(dim=axis, keepdim=True)
    v = x.var(dim=axis, keepdim=True, unbiased=False)
    return (x - m) / torch.sqrt(v + eps)
def _scatter_add(tgt, idx, src, axis=0):
    return tgt.clone().index_add_(axis, idx, src)
def _segment_sum(src, seg, n):
    out = torch.zeros((n,) + src.shape[1:], dtype=src.dtype)
    return out.index_add_(0, seg, src)
def _pad(x, pw):
    flat = tuple(v for pair in reversed(pw) for v in pair)
    return torch.nn.functional.pad(x, flat)

kernel_name = 'concat_heads__ssm_conv_s4d__ssm_conv_s4d__prompt'

def setup_inputs():

    _w = (lambda a: (lambda t: t.to(torch.bfloat16) if t.is_floating_point() else t)(torch.as_tensor(a)))
    def _A_setup():
        Bsz, L, D, N = 1, 2048, 576, 128
        return {
            "u": _w((lambda *s: torch.randn(*s, dtype=torch.bfloat16) * 0.05)(Bsz, L, D)),
            "log_A_real": _w((lambda *s: torch.randn(*s, dtype=torch.bfloat16) * 6.4)(D, N) * 0.5),
            "A_imag": _w((lambda *s: torch.randn(*s, dtype=torch.bfloat16) * 0.05)(D, N) * 3.14),
            "C_real": _w((lambda *s: torch.randn(*s, dtype=torch.bfloat16) * 0.05)(D, N) / N ** 0.5),
            "C_imag": _w((lambda *s: torch.randn(*s, dtype=torch.bfloat16) * 0.05)(D, N) / N ** 0.5),
            "log_dt": _w((lambda *s: torch.randn(*s, dtype=torch.bfloat16) * 0.05)(D) * 0.5 - 4.0),
            "D_skip": _w((lambda *s: torch.randn(*s, dtype=torch.bfloat16) * 0.05)(D)),
        }
    _A_in = _A_setup()

    def _B_setup():
        Bsz, L, D, N = 1, 2048, 576, 128
        return {
            "u": _w((lambda *s: torch.randn(*s, dtype=torch.bfloat16) * 0.05)(Bsz, L, D)),
            "log_A_real": _w((lambda *s: torch.randn(*s, dtype=torch.bfloat16) * 6.4)(D, N) * 0.5),
            "A_imag": _w((lambda *s: torch.randn(*s, dtype=torch.bfloat16) * 0.05)(D, N) * 3.14),
            "C_real": _w((lambda *s: torch.randn(*s, dtype=torch.bfloat16) * 0.05)(D, N) / N ** 0.5),
            "C_imag": _w((lambda *s: torch.randn(*s, dtype=torch.bfloat16) * 0.05)(D, N) / N ** 0.5),
            "log_dt": _w((lambda *s: torch.randn(*s, dtype=torch.bfloat16) * 0.05)(D) * 0.5 - 4.0),
            "D_skip": _w((lambda *s: torch.randn(*s, dtype=torch.bfloat16) * 0.05)(D)),
        }
    _B_in = _B_setup()

    return {
        "A_u": _A_in["u"],
        "A_log_A_real": _A_in["log_A_real"],
        "A_A_imag": _A_in["A_imag"],
        "A_C_real": _A_in["C_real"],
        "A_C_imag": _A_in["C_imag"],
        "A_log_dt": _A_in["log_dt"],
        "A_D_skip": _A_in["D_skip"],
        "B_u": _B_in["u"],
        "B_log_A_real": _B_in["log_A_real"],
        "B_A_imag": _B_in["A_imag"],
        "B_C_real": _B_in["C_real"],
        "B_C_imag": _B_in["C_imag"],
        "B_log_dt": _B_in["log_dt"],
        "B_D_skip": _B_in["D_skip"],
    }

def reference(A_u, A_log_A_real, A_A_imag, A_C_real, A_C_imag, A_log_dt, A_D_skip, B_u, B_log_A_real, B_A_imag, B_C_real, B_C_imag, B_log_dt, B_D_skip):
    def _A_ref(u, log_A_real, A_imag, C_real, C_imag, log_dt, D_skip):
        L = u.shape[1]
        dt = torch.exp(log_dt)
        A = -torch.exp(log_A_real) + 1j * A_imag
        C = (C_real + 1j * C_imag) * dt[:, None]
        pos = (lambda x, dt: x.to(dt))(torch.arange(L), log_dt.dtype)
        P = torch.exp((A * dt[:, None])[:, :, None] * pos[None, None, :])
        K = 2.0 * torch.einsum("dn,dnl->dl", C, P).real
        L2 = 2 * L
        u_t = (lambda x, *d: x.permute(*d))(u, 0, 2, 1)
        Kf = (lambda x, *a, **k: torch.fft.rfft(x.float(), *a, **k))(K, L2)
        Uf = (lambda x, *a, **k: torch.fft.rfft(x.float(), *a, **k))(u_t, L2)
        y = (lambda x, *a, **k: torch.fft.irfft(x, *a, **k).to(torch.bfloat16))(Uf * Kf[None, :, :], L2)[:, :, :L]
        y = (lambda x, *d: x.permute(*d))(y, 0, 2, 1)
        return y + u * D_skip[None, None, :]

    def _B_ref(u, log_A_real, A_imag, C_real, C_imag, log_dt, D_skip):
        L = u.shape[1]
        dt = torch.exp(log_dt)
        A = -torch.exp(log_A_real) + 1j * A_imag
        C = (C_real + 1j * C_imag) * dt[:, None]
        pos = (lambda x, dt: x.to(dt))(torch.arange(L), log_dt.dtype)
        P = torch.exp((A * dt[:, None])[:, :, None] * pos[None, None, :])
        K = 2.0 * torch.einsum("dn,dnl->dl", C, P).real
        L2 = 2 * L
        u_t = (lambda x, *d: x.permute(*d))(u, 0, 2, 1)
        Kf = (lambda x, *a, **k: torch.fft.rfft(x.float(), *a, **k))(K, L2)
        Uf = (lambda x, *a, **k: torch.fft.rfft(x.float(), *a, **k))(u_t, L2)
        y = (lambda x, *a, **k: torch.fft.irfft(x, *a, **k).to(torch.bfloat16))(Uf * Kf[None, :, :], L2)[:, :, :L]
        y = (lambda x, *d: x.permute(*d))(y, 0, 2, 1)
        return y + u * D_skip[None, None, :]

    a = _A_ref(A_u, A_log_A_real, A_A_imag, A_C_real, A_C_imag, A_log_dt, A_D_skip)
    b = _B_ref(B_u, B_log_A_real, B_A_imag, B_C_real, B_C_imag, B_log_dt, B_D_skip)
    return torch.concatenate([a, b], axis=-1)
```

```python
import sys, argparse

NAME = "concat_heads__ssm_conv_s4d__ssm_conv_s4d__prompt"

CNT = 0
STG = 4096
STGW = 8704
OUT = STG
UB = STG + 8 * STGW
UCH = 4608
KA = UB + 6 * UCH
KCP = 2112
KCH = 4 * KCP
KEND = KA + 6 * KCH
ZINSTR = 7
LDS_TOTAL = KA + ZINSTR * 8192
assert LDS_TOTAL <= 163840 and KEND <= LDS_TOTAL
ZD, ZX = 543, 1615
Z2 = [687 + 64 * m for m in range(4)]
Z3 = [991, 1071]
DUMMY = 1040

vLANE, vU, vKF, vKT, vO8, vOW, vONE, vST = 1, 2, 3, 4, 5, 6, 7, 8
vKD, vC8, vC9, vC10, vC11, vC12 = 9, 10, 11, 12, 13, 14
vRET = 9
vOT = 10
vTB = 12
vSL, vSR = 15, 255
BOX = {3: 16, 5: 20, 7: 24, 9: 28}
vF = 32
vFX = 100
vT2 = 104
vT3 = 128
vW2 = 144
vW3 = 168
vACC = 184
vG = 192
vDW = 224
vSO = 240
vRF, vLF, vD = 32, 64, 144
vP = 224
vDT, vDSK = 228, 229
vC2 = 230
vUO = 232
vUD = 192

class Asm:
    def __init__(self):
        self.lines = []
    def __call__(self, s):
        for l in s.strip("\n").split("\n"):
            self.lines.append(l if l.rstrip().endswith(":") and not l.startswith(" ") else "    " + l.strip())
    def label(self, l):
        self.lines.append(l + ":")
    def text(self):
        return "\n".join(self.lines) + "\n"

def R(a, n=1):
    return f"v{a}" if n == 1 else f"v[{a}:{a+n-1}]"

def cmul(a, dst, x, m):
    a(f"v_pk_mul_f32 {R(dst,2)}, {R(x,2)}, {R(m,2)} op_sel:[0,0] op_sel_hi:[0,1]")
    a(f"v_pk_fma_f32 {R(dst,2)}, {R(x,2)}, {R(m,2)}, {R(dst,2)} op_sel:[1,1,0] op_sel_hi:[1,0,1] neg_lo:[0,1,0]")

class Frag:
    def __init__(self, kind, key, reg=None):
        self.kind, self.key, self.reg = kind, key, reg
        self.first = None; self.last = None
        self.issued = False; self.seq = None

def frag_reads(f):
    k = f.key
    if f.kind == "G":
        return [("ds_read_b128", f.reg, 4, vU, 512 + 2 * k)]
    if f.kind == "F":
        o = 2 * (ZD - 3 - k)
        return [("ds_read_b64", f.reg, 2, vKF, o), ("ds_read_b64", f.reg + 2, 2, vKF, o + 8)]
    if f.kind == "FX":
        o = 2 * (ZX - 3 - 1040)
        return [("ds_read_b64", f.reg, 2, vKF, o), ("ds_read_b64", f.reg + 2, 2, vKF, o + 8)]
    if f.kind == "T2":
        d, h = k
        return [("ds_read_b64", f.reg + 2 * j, 2, vKT, 2 * (Z2[2 * h + j] - 3 - 16 * d)) for j in range(2)]
    if f.kind == "T3":
        return [("ds_read_b64", f.reg + 2 * j, 2, vKT, 2 * (Z3[j] - 3 - 16 * k)) for j in range(2)]
    raise ValueError

def kfrag_table():
    t = {}
    for s in range(17): t[("F", 16 + 32 * s)] = Frag("F", 16 + 32 * s, vF + 4 * s)
    t[("FX", 0)] = Frag("FX", 0, vFX)
    for d in (2, 3, 4):
        for h in (0, 1): t[("T2", (d, h))] = Frag("T2", (d, h), vT2 + 4 * ((d - 2) * 2 + h))
    for d in (4, 5, 6, 7): t[("T3", d)] = Frag("T3", d, vT3 + 4 * (d - 4))
    return t

def build_ops(t0, t1):
    K = kfrag_table()
    ops = []
    accinit = set()
    def acc_mfma(t, A, B):
        first = t not in accinit
        accinit.add(t)
        ops.append(dict(type="mfma", t=t, A=A, B=B, first=first))
    def gen(g, box, dst):
        ops.append(dict(type="gen", A=g, box=box, dst=dst))
    have2, have3 = set(), set()
    def w2reg(b, h): return vW2 + 8 * (b % 3) + 4 * h
    def w3reg(b): return vW3 + 4 * b
    if t0 > 0:
        for s in range(8):
            acc_mfma(t0, K[("F", 272 + 32 * s)], Frag("G", 256 * (t0 - 1) - 16 - 32 * s))
    for tau in range(t0, t1 + 1):
        g0 = {}
        def G0(b):
            if b not in g0: g0[b] = Frag("G", 256 * b - 16)
            return g0[b]
        need2 = [b for b in (tau - 4, tau - 3, tau - 2) if b >= 0 and b not in have2]
        need3 = [b for b in range(0, tau - 3) if b not in have3]
        late = []
        early = []
        fresh = set()
        gens = []
        for b in sorted(set(need2) | set(need3)):
            gm = Frag("G", 256 * b - 24)
            lst = []
            if b in need2:
                lst += [(G0(b), 3, w2reg(b, 0)), (G0(b), 5, w2reg(b, 0) + 2), (gm, 3, w2reg(b, 1)), (gm, 5, w2reg(b, 1) + 2)]
                have2.add(b); fresh.add(("2", b))
            if b <= 3 and b not in have3 and b + 4 <= t1:
                lst += [(G0(b), 7, w3reg(b)), (gm, 9, w3reg(b) + 2)]
                have3.add(b); fresh.add(("3", b))
            gens.append((b, lst))
        uses = []
        if tau >= 2: uses.append(("K", K[("F", 528)], tau - 2))
        if tau >= 4: uses.append(("K", K[("FX", 0)], tau - 4))
        for d in (4, 3, 2):
            b = tau - d
            if b >= 0:
                for h in (0, 1): uses.append(("W2", b, h, d))
        for d in range(tau, 3, -1):
            uses.append(("W3", tau - d, d))
        def emit_use(u):
            if u[0] == "K": acc_mfma(tau, u[1], G0(u[2]))
            elif u[0] == "W2": acc_mfma(tau, ("W", w2reg(u[1], u[2])), K[("T2", (u[3], u[2]))])
            else: acc_mfma(tau, ("W", w3reg(u[1])), K[("T3", u[2])])
        def is_fresh(u):
            return (u[0] == "W2" and ("2", u[1]) in fresh) or (u[0] == "W3" and ("3", u[1]) in fresh)
        early = [u for u in uses if not is_fresh(u)]
        late = [u for u in uses if is_fresh(u)]
        ei = 0
        kuse = {u[2]: u for u in early if u[0] == "K"}
        rest = [u for u in early if u[0] != "K"]
        for b, lst in gens:
            for j, (g, box, dst) in enumerate(lst):
                gen(g, box, dst)
                if j % 2 == 1 and rest: emit_use(rest.pop(0))
            if b in kuse: emit_use(kuse.pop(b))
        for u in list(kuse.values()): emit_use(u)
        for u in rest: emit_use(u)
        for s in range(8):
            g = Frag("G", 256 * tau - 16 - 32 * s)
            acc_mfma(tau, K[("F", 16 + 32 * s)], g)
            if tau < t1: acc_mfma(tau + 1, K[("F", 272 + 32 * s)], g)
            if s >= 2:
                n = -(-len(late) // (8 - s)) if s < 7 else len(late)
                for _ in range(n): emit_use(late.pop(0))
        assert not late
        ops.append(dict(type="out", t=tau))
    return ops, K

def emit_conv(a, t0, t1, preloaded, LA, tag, opt):
    ops, K = build_ops(t0, t1)
    if preloaded:
        for f in K.values(): f.issued = True; f.seq = -1
    frs = []
    for i, op in enumerate(ops):
        for key in ("A", "B"):
            f = op.get(key)
            if isinstance(f, Frag):
                if f.first is None: f.first = i; frs.append(f)
                f.last = i
    pend_loads = [f for f in frs if not f.issued]
    ring_free_at = [-1] * 8
    st = dict(lds=0, done=0, n=0)
    def ins(s, w=1):
        a(s); st["n"] += w
    def lds(s):
        ins(s); st["lds"] += 1
        return st["lds"]
    def wait_for(seq):
        if seq > st["done"]:
            n = st["lds"] - seq
            ins(f"s_waitcnt lgkmcnt({min(n, 15)})")
            st["done"] = st["lds"] - min(n, 15)
    dw_free = [True] * 4
    cvts = []
    wready = {}
    valu_q = []
    acc_last = {}
    checks = []
    def do_cvt(c):
        rn, tmp, dst, slot = c
        if st["n"] < rn: ins(f"s_nop {rn - st['n'] - 1}", rn - st["n"])
        ins(f"v_cvt_pk_bf16_f32 v{dst}, v{tmp}, v{tmp+1}")
        ins(f"v_cvt_pk_bf16_f32 v{dst+1}, v{tmp+2}, v{tmp+3}")
        wready[dst] = st["n"] + 2
        dw_free[slot] = True
    def flush_cvts(force_all=False):
        while cvts and (force_all or cvts[0][0] <= st["n"]):
            do_cvt(cvts.pop(0))
    outs = []
    def do_out(o):
        rn, t = o
        while checks: do_check(checks.pop(0))
        if st["n"] < rn: ins(f"s_nop {rn - st['n'] - 1}", rn - st["n"])
        ac = vACC + 4 * (t % 2)
        ins(f"v_cvt_pk_bf16_f32 v{vOT}, v{ac}, v{ac+1}")
        ins(f"v_cvt_pk_bf16_f32 v{vOT+1}, v{ac+2}, v{ac+3}")
        lds(f"ds_write_b64 v{vOW}, {R(vOT,2)} offset:{OUT + t * 3072}")
        seq = lds(f"ds_add_rtn_u32 v{vRET}, v{vO8}, v{vONE} offset:{CNT + t * 512}")
        checks.append([seq, t, st["n"] + 6])
    def do_check(c):
        seq, t, _ = c
        flush_cvts(True)
        wait_for(seq)
        ins(f"v_readfirstlane_b32 s58, v{vRET}")
        ins(f"s_mov_b32 s56, {t}")
        ins(f"s_cmp_eq_u32 s58, 5")
        ins(f"s_cbranch_scc0 L_nost_{tag}_{t}")
        a(f"s_swappc_b64 s[54:55], s[52:53]")
        a.label(f"L_nost_{tag}_{t}")
    for i, op in enumerate(ops):
        while pend_loads and pend_loads[0].first <= i + LA and st["lds"] - st["done"] < 60:
            f = pend_loads[0]
            if f.kind == "G":
                slot = next((s for s in range(8) if ring_free_at[s] < i), None)
                if slot is None:
                    assert f.first > i, "ring too small"
                    break
                ring_free_at[slot] = f.last
                f.reg = vG + 4 * slot
            for (mn, d, n, ar, off) in frag_reads(f):
                f.seq = lds(f"{mn} {R(d,n)}, v{ar} offset:{off}")
            f.issued = True
            pend_loads.pop(0)
        flush_cvts()
        while outs and outs[0][0] <= st["n"]: do_out(outs.pop(0))
        if op["type"] == "out":
            outs.append((acc_last[op["t"]] + 8, op["t"]))
            continue
        if checks and checks[0][2] <= st["n"] and not cvts and op["type"] == "mfma":
            do_check(checks.pop(0))
        if op["type"] == "gen":
            if not any(dw_free): do_cvt(cvts.pop(0))
            slot = dw_free.index(True); dw_free[slot] = False
            tmp = vDW + 4 * slot
            wait_for(op["A"].seq)
            ins(f"v_mfma_f32_16x16x32_bf16 {R(tmp,4)}, {R(op['A'].reg,4)}, {R(BOX[op['box']],4)}, 0")
            cvts.append((st["n"] + 8, tmp, op["dst"], slot))
            wready[op["dst"]] = None
        else:
            t = op["t"]
            if op["first"]:
                while outs and outs[0][1] <= t - 2: do_out(outs.pop(0))
            regs = []
            for key in ("A", "B"):
                f = op[key]
                if isinstance(f, Frag):
                    wait_for(f.seq); regs.append(f.reg)
                else:
                    w = f[1]
                    for sub in (w, w + 2):
                        while wready.get(sub, 0) is None: do_cvt(cvts.pop(0))
                    rn = max(wready.get(w, 0), wready.get(w + 2, 0))
                    if st["n"] < rn: ins(f"s_nop {rn - st['n'] - 1}", rn - st["n"])
                    regs.append(w)
            ac = vACC + 4 * (t % 2)
            c = "0" if op["first"] else R(ac, 4)
            ins(f"v_mfma_f32_16x16x32_bf16 {R(ac,4)}, {R(regs[0],4)}, {R(regs[1],4)}, {c}")
            acc_last[t] = st["n"]
    flush_cvts(True)
    while outs: do_out(outs.pop(0))
    while checks: do_check(checks.pop(0))
    return sum(1 for o in ops if o["type"] != "out")

def stamp(a, opt, idx):
    if opt.stamps:
        a(f"s_memtime s[{64+2*idx}:{65+2*idx}]")

def generate(opt):
    a = Asm()
    hdr = open("cdna_kernels/" + NAME + ".s.ref").read().split("\n")
    top = [l for l in hdr if l.startswith(";") and "@launch" not in l and "Override launch" not in l and "grid=ceil" not in l]
    out = "\n".join(top) + "\n"
    out += f"; @launch grid=(200,1,1) block=(512,1,1) lds={LDS_TOTAL}\n"
    out += f""".amdgcn_target "amdgcn-amd-amdhsa--gfx950"
.text
.globl {NAME}_kernel
.p2align 8
.type {NAME}_kernel,@function
{NAME}_kernel:
"""
    stamp(a, opt, 0)
    a("""
s_and_b32 s3, s2, 7
s_mul_i32 s3, s3, 25
s_lshr_b32 s4, s2, 3
s_add_u32 s3, s3, s4
s_cmp_ge_u32 s3, 99
s_cselect_b32 s6, 56, 0
s_load_dwordx16 s[16:31], s[0:1], s6
s_load_dwordx4 s[32:35], s[0:1], 112
s_cselect_b32 s7, 9, 0
s_cselect_b32 s48, 1152, 0
s_cmp_ge_u32 s2, 200
s_cbranch_scc1 L_end
s_cmp_ge_u32 s3, 198
s_cbranch_scc1 L_end
v_lshrrev_b32 v2, 6, v0
s_mul_i32 s4, s3, 5958
s_lshr_b32 s4, s4, 16
v_readfirstlane_b32 s44, v2
s_mul_i32 s5, s4, 11
s_sub_u32 s59, s3, s5
s_mul_i32 s5, s59, 6
s_min_u32 s5, s5, 58
s_sub_u32 s4, s4, s7
s_lshl_b32 s4, s4, 6
s_add_u32 s5, s5, s4
s_lshl_b32 s47, s5, 1
s_add_u32 s48, s48, s47
s_sub_u32 s45, s44, 4
s_lshr_b32 s45, s45, 1
s_add_u32 s45, s45, 4
s_cmp_lt_u32 s44, 4
s_cselect_b32 s45, s44, s45
s_add_u32 s46, s5, s45
""")
    a(f"""
v_and_b32 v{vLANE}, 63, v0
s_lshl_b32 s8, s46, 8
v_lshl_add_u32 v96, v{vLANE}, 2, s8
s_lshl_b32 s8, s46, 1
v_mov_b32 v97, s8
v_mul_u32_u24 v{vUO}, {4*1152}, v{vLANE}
v_add_u32 v{vUO}, s47, v{vUO}
s_waitcnt lgkmcnt(0)
global_load_ushort v{vDT}, v97, s[26:27]
global_load_dword v{vP}, v96, s[18:19]
global_load_dword v{vP+1}, v96, s[20:21]
global_load_dword v{vP+2}, v96, s[22:23]
global_load_dword v{vP+3}, v96, s[24:25]
global_load_ushort v{vDSK}, v97, s[28:29]
""")
    stamp(a, opt, 1)
    a(f"""
s_mov_b32 s36, s16
s_mov_b32 s37, s17
s_mov_b32 s38, {2048*1152}
s_mov_b32 s39, 0x00020000
s_mov_b32 s40, s32
s_mov_b32 s41, s33
s_mov_b32 s42, {2048*2304}
s_mov_b32 s43, 0x00020000
""")
    a(f"""
s_getpc_b64 s[52:53]
L_pc:
s_cmp_lt_u32 s44, 4
s_cbranch_scc1 L_fullpre
s_sub_u32 s9, s44, 4
s_mul_i32 s9, s9, {512*1152}
""")
    for k in range(8):
        tile, e = k // 4, k % 4
        a(f"s_add_u32 s10, s9, {(256*tile + e)*1152}")
        a(f"buffer_load_dwordx3 {R(vUD+4*k,3)}, v{vUO}, s[36:39], s10 offen")
    a("s_setprio 2\ns_branch L_pre2")
    a.label("L_fullpre")
    npre = 0
    if opt.codepf:
        a(f"""
v_lshlrev_b32 v98, 7, v0
v_min_u32 v98, L_codeend-L_pc-4, v98
global_load_dword v243, v98, s[52:53]
""")
        npre = 1
    if opt.upf:
        a(f"""
s_mul_i32 s9, s59, 192
v_add_u32 v98, s9, v0
v_min_u32 v98, 2047, v98
v_mul_u32_u24 v98, 1152, v98
buffer_load_dword v247, v98, s[36:39], s47 offen
""")
        npre += 1
    a.label("L_pre2")
    a(f"""
s_add_u32 s52, s52, L_store-L_pc
s_addc_u32 s53, s53, 0
""")
    a(f"""
v_mov_b32 v100, 0
v_mov_b32 v101, 0
v_mov_b32 v102, 0
v_mov_b32 v103, 0
v_lshlrev_b32 v104, 4, v0
v_add_u32 v105, {KA}, v104
""")
    for k in range(ZINSTR):
        a(f"ds_write_b128 v105, v[100:103] offset:{k*8192}")
    a(f"""
v_and_b32 v105, 4095, v104
ds_write_b128 v105, v[100:103] offset:{CNT}
v_lshrrev_b32 v105, 5, v0
v_min_u32 v105, 5, v105
v_mul_u32_u24 v105, {UCH}, v105
v_and_b32 v106, 511, v104
v_add_u32 v105, v105, v106
v_add_u32 v105, {UB}, v105
ds_write_b128 v105, v[100:103]
""")
    a(f"""
v_and_b32 v104, 15, v{vLANE}
v_lshrrev_b32 v105, 4, v{vLANE}
s_mul_i32 s8, s45, {UCH}
s_add_u32 s8, s8, {UB}
v_lshlrev_b32 v106, 5, v104
v_lshl_add_u32 v106, v105, 4, v106
v_add_u32 v{vU}, s8, v106
s_mul_i32 s57, s45, {KCH}
s_add_u32 s57, s57, {KA}
v_and_b32 v106, 3, v104
v_sub_u32 v106, 3, v106
v_mul_u32_u24 v106, {KCP}, v106
v_lshrrev_b32 v107, 2, v104
v_lshlrev_b32 v107, 3, v107
v_sub_u32 v106, v106, v107
v_add_u32 v106, s57, v106
v_lshl_add_u32 v{vKF}, v105, 4, v106
v_lshl_add_u32 v{vKT}, v105, 3, v106
v_lshlrev_b32 v{vO8}, 3, v{vLANE}
s_lshl_b32 s8, s45, 9
v_add_u32 v{vOW}, s8, v{vO8}
v_mov_b32 v{vONE}, 1
v_lshlrev_b32 v106, 2, v104
v_add_u32 v106, v106, v105
v_mul_u32_u24 v106, {4*2304}, v106
v_add_u32 v{vST}, s48, v106
s_add_u32 s8, s57, 1056
v_lshlrev_b32 v106, 4, v{vLANE}
v_sub_u32 v{vKD}, s8, v106
""")
    a(f"""
v_and_b32 v106, -2, v{vLANE}
v_sub_u32 v106, s57, v106
v_and_b32 v107, 1, v{vLANE}
v_mul_i32_i24 v108, {2*(719-848)}, v107
v_add3_u32 v{vC8}, v106, v108, 0
v_add_u32 v{vC8}, {2*848}, v{vC8}
v_mul_i32_i24 v108, {2*(783-655)}, v107
v_add_u32 v{vC9}, v106, v108
v_add_u32 v{vC9}, {2*655}, v{vC9}
v_mul_i32_i24 v108, {2*(895-976)}, v107
v_add_u32 v{vC11}, v106, v108
v_add_u32 v{vC11}, {2*976}, v{vC11}
v_add_u32 v{vC10}, 64, v{vC11}
s_add_u32 s8, s57, {2*DUMMY}
v_mov_b32 v{vC12}, s8
v_writelane_b32 v{vC8}, s8, 0
s_add_u32 s8, s57, {2*816}
v_writelane_b32 v{vC10}, s8, 0
s_add_u32 s8, s57, {2*(ZX-1027)}
v_writelane_b32 v{vC12}, s8, 0
s_add_u32 s8, s57, {2*(ZX-1028)}
v_writelane_b32 v{vC12}, s8, 1
s_add_u32 s8, s57, {2*(Z3[1]-127)}
v_writelane_b32 v{vC12}, s8, 32
""")
    a(f"""
s_mul_i32 s60, s44, {STGW}
s_add_u32 s60, s60, {STG}
s_mov_b32 m0, s60
v_and_b32 v106, 31, v{vLANE}
v_lshrrev_b32 v107, 5, v{vLANE}
v_lshlrev_b32 v107, 4, v107
v_add_u32 v107, s60, v107
v_mul_u32_u24 v108, 272, v106
v_add_u32 v{vSR}, v107, v108
v_mov_b32 v{vSL}, v{vSR}
s_add_u32 s8, s60, {4*272}
v_writelane_b32 v{vSL}, s8, 5
s_add_u32 s8, s8, 16
v_writelane_b32 v{vSL}, s8, 37
s_add_u32 s8, s60, {7*272}
v_writelane_b32 v{vSL}, s8, 12
v_writelane_b32 v{vSL}, s8, 13
s_add_u32 s8, s8, 16
v_writelane_b32 v{vSL}, s8, 44
v_writelane_b32 v{vSL}, s8, 45
""")
    a(f"""
v_lshlrev_b32 v106, 3, v105
v_sub_u32 v106, v106, v104
v_add_u32 v106, 15, v106
v_min_u32 v106, 31, v106
s_mov_b32 s8, 0x8001
s_mov_b32 s9, 0x10001
s_mov_b32 s10, 0x3f80
""")
    for wdt, lo in ((3, 11), (5, 6), (7, 5), (9, 4)):
        wide = ((1 << wdt) - 1) << (lo + 15)
        a(f"s_mov_b32 s11, {wide:#x}")
        a(f"v_lshrrev_b32 v107, v106, s11")
        for w in range(4):
            d = BOX[wdt] + w
            a(f"v_bfe_u32 v{d}, v107, {2*w}, 2")
            a(f"v_mul_u32_u24 v{d}, s8, v{d}")
            a(f"v_and_b32 v{d}, s9, v{d}")
            a(f"v_mul_u32_u24 v{d}, s10, v{d}")
    for k in range(16): a(f"v_mov_b32 v{vD+k}, 0")
    a(f"""
s_mov_b32 s50, 0x05040100
s_mov_b32 s51, 0x07060302
s_mov_b32 s49, 0x01000c0c
s_cmp_lt_u32 s44, 4
s_cbranch_scc1 L_selok
s_bitcmp1_b32 s44, 0
s_cselect_b32 s49, 0x03020c0c, s49
L_selok:
s_mov_b32 s12, 0xbfb8aa3b
s_mov_b32 s13, 0x3e22f983
s_mov_b32 s14, 0x41000000
s_mov_b32 s15, 0x43800000
s_mov_b32 s61, 0x3fb8aa3b
s_mov_b32 s62, 0
s_waitcnt lgkmcnt(0)
s_barrier
""")
    stamp(a, opt, 2)
    a(f"""
s_cmp_lt_u32 s44, 4
s_cbranch_scc1 L_wfull
s_waitcnt vmcnt(8)
s_branch L_wdone
L_wfull:
s_waitcnt vmcnt({npre})
L_wdone:
""")
    stamp(a, opt, 3)
    a(f"""
v_lshlrev_b32 v{vDT}, 16, v{vDT}
v_mul_f32 v{vDT}, s61, v{vDT}
v_exp_f32 v{vDT}, v{vDT}
v_lshlrev_b32 v{vDSK}, 16, v{vDSK}
v_cmp_eq_u32 vcc, 0, v{vLANE}
v_cvt_pk_bf16_f32 v{vDT}, v{vDT}, v{vDT}
v_and_b32 v{vDT}, 0xffff0000, v{vDT}
v_cndmask_b32 v{vDSK}, 0, v{vDSK}, vcc
v_add_f32 v{vC2}, v{vDT}, v{vDT}
""")
    a.label("L_unit")
    AB, CC, z, w, Z, X, Y = 98, 100, 102, 104, 106, 108, 110
    LS = {0: 112, 2: 114, 4: 116, 6: 118}
    T = [120, 121, 122, 123]
    a(f"""
v_perm_b32 v96, v{vP}, v{vP}, s49
v_mul_f32 v96, s61, v96
v_exp_f32 v96, v96
v_perm_b32 v97, v{vP+1}, v{vP+1}, s49
v_perm_b32 v{CC}, v{vP+2}, v{vP+2}, s49
v_perm_b32 v{CC+1}, v{vP+3}, v{vP+3}, s49
v_cvt_pk_bf16_f32 v96, v96, v96
v_and_b32 v96, 0xffff0000, v96
v_pk_mul_f32 v[{AB}:{AB+1}], v[96:97], v[{vDT}:{vDT+1}] op_sel_hi:[1,0]
v_pk_mul_f32 v[{AB}:{AB+1}], v[{AB}:{AB+1}], s[12:13]
v_pk_mul_f32 v[124:125], v[{AB}:{AB+1}], s[14:15] op_sel_hi:[1,0]
v_pk_mul_f32 v[126:127], v[{AB}:{AB+1}], s[14:15] op_sel:[0,1] op_sel_hi:[1,1]
v_fract_f32 v125, v125
v_exp_f32 v124, v124
v_cos_f32 v{w}, v125
v_sin_f32_e64 v{w+1}, -v125
v_fract_f32 v{AB+1}, v{AB+1}
v_mov_b32 v{T[0]}, 0x3f80
v_pk_mul_f32 v[{w}:{w+1}], v[{w}:{w+1}], v[124:125] op_sel_hi:[1,0]
ds_write_addtid_b32 v{T[0]} offset:0
v_exp_f32 v{AB}, v{AB}
v_cos_f32 v{z}, v{AB+1}
v_sin_f32 v{z+1}, v{AB+1}
v_cvt_pk_bf16_f32 v{T[1]}, v{w}, v{w+1}
v_fract_f32 v127, v127
ds_write_addtid_b32 v{T[1]} offset:272
v_pk_mul_f32 v[{z}:{z+1}], v[{z}:{z+1}], v[{AB}:{AB+1}] op_sel_hi:[1,0]
v_exp_f32 v126, v126
v_cos_f32 v{Z}, v127
v_sin_f32 v{Z+1}, v127
v_pk_mul_f32 v[{LS[0]}:{LS[0]+1}], v[{CC}:{CC+1}], v[{vC2}:{vC2+1}] op_sel_hi:[1,0]
v_pk_mul_f32 v[{Z}:{Z+1}], v[{Z}:{Z+1}], v[126:127] op_sel_hi:[1,0]
""")
    tc = [2]
    def put(reg, slot):
        t = T[tc[0] % 4]; tc[0] += 1
        a(f"v_cvt_pk_bf16_f32 v{t}, v{reg}, v{reg+1}")
        a(f"ds_write_addtid_b32 v{t} offset:{272*slot}")
    cur = w
    for j in range(2, 32):
        nxt = X if cur != X else Y
        cmul(a, nxt, cur, w)
        put(nxt, j)
        cur = nxt
    for k in range(8):
        a(f"ds_read_b128 {R(vRF+4*k,4)}, v{vSR} offset:{32*k}")
    SLOT = {0:0,1:1,2:2,3:3,4:8,5:9,6:10,7:11,256:4,258:6,260:7,262:14,512:16,516:17,1024:18,1536:19,768:20,772:21,1280:22,1792:23,2048:28}
    put(LS[0], SLOT[0])
    cur = LS[0]
    for b in range(1, 8):
        nxt = LS[b] if b in LS else X
        cmul(a, nxt, cur, z); put(nxt, SLOT[b]); cur = nxt
    cmul(a, X, LS[2], Z); put(X, SLOT[258])
    cmul(a, Y, LS[6], Z); put(Y, SLOT[262])
    cmul(a, X, LS[4], Z); put(X, SLOT[260])
    cmul(a, Y, X, Z); put(Y, SLOT[516])
    cmul(a, X, Y, Z); put(X, SLOT[772])
    cur = LS[0]
    for b in range(256, 2049, 256):
        nxt = X if cur != X else Y
        cmul(a, nxt, cur, Z); put(nxt, SLOT[b]); cur = nxt
    for k in range(8):
        a(f"ds_read_b128 {R(vLF+4*k,4)}, v{vSL} offset:{32*k}")
    for k in range(8):
        a(f"s_waitcnt lgkmcnt({7-k})")
        a(f"v_mfma_f32_32x32x16_bf16 {R(vD,16)}, {R(vLF+4*k,4)}, {R(vRF+4*k,4)}, {R(vD,16)}")
    a(f"""
s_cmp_lt_u32 s44, 4
s_cbranch_scc0 L_half
s_cmp_lg_u32 s62, 0
s_cbranch_scc1 L_fulldone
s_mov_b32 s62, 1
s_mov_b32 s49, 0x03020c0c
s_barrier
s_branch L_unit
L_half:
v_lshlrev_b32 v96, 4, v{vLANE}
s_bitcmp1_b32 s44, 0
s_cbranch_scc0 L_halfA
v_add_u32 v96, s60, v96
s_nop 9
""")
    for k in range(4):
        a(f"ds_write_b128 v96, {R(vD+4*k,4)} offset:{1024*k}")
    a(f"""
s_waitcnt lgkmcnt(0)
s_barrier
s_branch L_utrans
L_halfA:
s_add_u32 s8, s60, {STGW}
v_add_u32 v96, s8, v96
s_barrier
""")
    for k in range(4):
        a(f"ds_read_b128 {R(160+4*k,4)}, v96 offset:{1024*k}")
    a("s_waitcnt lgkmcnt(0)")
    for k in range(7):
        a(f"v_pk_add_f32 {R(vD+2*k,2)}, {R(vD+2*k,2)}, {R(160+2*k,2)}")
    a("s_branch L_expand")
    a.label("L_fulldone")
    a("s_nop 7")
    a.label("L_expand")
    stamp(a, opt, 4)
    d = lambda k: vD + k
    E, O, E2, O2, Pv = 160, 164, 168, 172, 176
    a(f"""
s_nop 1
v_mov_b32_dpp v{d(7)}, v{d(8)} wave_rol:1 row_mask:0x8 bank_mask:0xf
v_mov_b32_dpp v{d(12)}, v{d(10)} quad_perm:[0,0,0,0] row_mask:0x1 bank_mask:0xf
v_cvt_pk_bf16_f32 v180, v{d(8)}, v{d(9)}
v_mov_b32_dpp v{d(7)}, v{d(0)} wave_shl:1 row_mask:0xc bank_mask:0xf
v_cvt_pk_bf16_f32 v181, v{d(10)}, v{d(11)}
v_add_f32 v{d(0)}, v{d(0)}, v{vDSK}
v_mov_b32_dpp v{Pv}, v{d(5)} wave_shr:1 row_mask:0xf bank_mask:0xf bound_ctrl:0
v_mov_b32_dpp v{Pv+1}, v{d(6)} wave_shr:1 row_mask:0xf bank_mask:0xf bound_ctrl:0
v_mov_b32_dpp v{Pv+2}, v{d(7)} wave_shr:1 row_mask:0xf bank_mask:0xf bound_ctrl:0
v_cvt_pk_bf16_f32 v{E}, v{d(7)}, v{d(6)}
v_cvt_pk_bf16_f32 v{E+1}, v{d(5)}, v{d(4)}
v_cvt_pk_bf16_f32 v{E+2}, v{d(3)}, v{d(2)}
v_cvt_pk_bf16_f32 v{E+3}, v{d(1)}, v{d(0)}
ds_write_b128 v{vKD}, {R(E,4)} offset:16
v_cvt_pk_bf16_f32 v{O}, v{d(6)}, v{d(5)}
v_cvt_pk_bf16_f32 v{O+1}, v{d(4)}, v{d(3)}
v_cvt_pk_bf16_f32 v{O+2}, v{d(2)}, v{d(1)}
v_cvt_pk_bf16_f32 v{O+3}, v{d(0)}, v{Pv+2}
ds_write_b128 v{vKD}, {R(O,4)} offset:{16+KCP}
v_mov_b32 v{E2}, v{E+1}
v_mov_b32 v{E2+1}, v{E+2}
v_mov_b32 v{E2+2}, v{E+3}
v_cvt_pk_bf16_f32 v{E2+3}, v{Pv+2}, v{Pv+1}
ds_write_b128 v{vKD}, {R(E2,4)} offset:{16+2*KCP}
v_mov_b32 v{O2}, v{O+1}
v_mov_b32 v{O2+1}, v{O+2}
v_mov_b32 v{O2+2}, v{O+3}
v_cvt_pk_bf16_f32 v{O2+3}, v{Pv+1}, v{Pv}
ds_write_b128 v{vKD}, {R(O2,4)} offset:{16+3*KCP}
v_cvt_pk_bf16_f32 v182, v{d(12)}, v{d(12)}
v_cvt_pk_bf16_f32 v183, 0, v{d(7)}
v_cvt_pk_bf16_f32 v179, v{d(7)}, v{d(7)}
s_mov_b32 exec_lo, 0
s_mov_b32 exec_hi, 0x80000000
""")
    Xr, Yr = 183, 179
    tail = {0: [(8, Xr), (12, Yr)], 1: [(8, Yr), (12, Yr)], 2: [(4, Xr), (8, Yr), (12, E)], 3: [(4, Yr), (8, Yr), (12, O)]}
    for sg in range(4):
        for off, rg in tail[sg]:
            a(f"ds_write_b32 v{vKD}, v{rg} offset:{off + sg*KCP}")
    a("s_mov_b64 exec, -1")
    for sg in range(4):
        o = sg * (KCP - 2)
        a(f"ds_write_b16 v{vC8}, v180 offset:{o}")
        a(f"ds_write_b16_d16_hi v{vC9}, v180 offset:{o}")
        a(f"ds_write_b16 v{vC10}, v181 offset:{o}")
        a(f"ds_write_b16_d16_hi v{vC11}, v181 offset:{o}")
        a(f"ds_write_b16 v{vC12}, v182 offset:{o}")
    for f in kfrag_table().values():
        for (mn, dd, n, ar, off) in frag_reads(f):
            a(f"{mn} {R(dd,n)}, v{ar} offset:{off}")
    stamp(a, opt, 5)
    a("""
s_cmp_lt_u32 s44, 4
s_cbranch_scc1 L_b2
""")
    a.label("L_utrans")
    a(f"""
s_sub_u32 s8, s44, 4
s_lshl_b32 s8, s8, 10
s_add_u32 s8, s8, {UB + 512}
v_add_u32 v232, s8, v{vO8}
""")
    for tile in range(2):
        a(f"s_waitcnt vmcnt({4 - 4*tile})")
        q = lambda e, m: vUD + 4 * (4 * tile + e) + m
        for m in range(3):
            for hi in range(2):
                t = 224 + 2 * ((2 * m + hi) % 4)
                a(f"v_perm_b32 v{t}, v{q(1,m)}, v{q(0,m)}, s{50+hi}")
                a(f"v_perm_b32 v{t+1}, v{q(3,m)}, v{q(2,m)}, s{50+hi}")
                a(f"ds_write_b64 v232, {R(t,2)} offset:{(2*m+hi)*UCH + 512*tile}")
    a("s_setprio 0")
    a.label("L_b2")
    a("s_waitcnt vmcnt(0) lgkmcnt(0)")
    stamp(a, opt, 6)
    a("s_barrier")
    stamp(a, opt, 7)
    if opt.stamps: a("s_waitcnt lgkmcnt(0)")
    if opt.dump:
        a(f"""
s_cmp_lg_u32 s2, {opt.dump-1}
s_cbranch_scc1 L_nodump
s_load_dwordx2 s[8:9], s[0:1], 128
s_waitcnt lgkmcnt(0)
v_lshlrev_b32 v232, 4, v0
s_mov_b32 s10, 0
L_dump:
v_add_u32 v233, s10, v232
ds_read_b128 v[236:239], v233
s_waitcnt lgkmcnt(0)
global_store_dwordx4 v233, v[236:239], s[8:9]
s_waitcnt vmcnt(0)
s_add_u32 s10, s10, 8192
s_cmp_lt_u32 s10, {LDS_TOTAL - 8191}
s_cbranch_scc1 L_dump
s_barrier
L_nodump:
""")
    a("""
s_cmp_lt_u32 s44, 4
s_cbranch_scc1 L_convF
s_bitcmp1_b32 s44, 0
s_cbranch_scc1 L_convB
""")
    nA = emit_conv(a, 0, 4, True, opt.la, "A", opt)
    a("s_branch L_fin")
    a.label("L_convB")
    nB = emit_conv(a, 5, 7, False, opt.la, "B", opt)
    a("s_branch L_fin")
    a.label("L_convF")
    nF = emit_conv(a, 0, 7, True, opt.la, "F", opt)
    a.label("L_fin")
    if opt.stamps:
        stamp(a, opt, 8)
        a("s_waitcnt vmcnt(0)")
        stamp(a, opt, 9)
        a(f"""
s_load_dwordx2 s[8:9], s[0:1], 128
s_waitcnt lgkmcnt(0)
s_lshl_b32 s10, s2, 3
s_add_u32 s10, s10, s44
s_lshl_b32 s10, s10, 6
s_add_u32 s10, s10, {1<<20}
v_mov_b32 v232, s10
""")
        for k in range(1, 10):
            a(f"s_sub_u32 s11, s{64+2*k}, s64\nv_mov_b32 v233, s11\nglobal_store_dword v232, v233, s[8:9] offset:{4*k}")
        a("s_memrealtime s[10:11]\ns_waitcnt lgkmcnt(0)\nv_mov_b32 v233, s10\nglobal_store_dword v232, v233, s[8:9] offset:0")
        a("v_mov_b32 v233, s64\nglobal_store_dword v232, v233, s[8:9] offset:40")
    a.label("L_end")
    a("s_endpgm")
    a.label("L_store")
    a(f"""
s_mul_i32 s57, s56, 3072
v_add_u32 v{vTB}, s57, v{vO8}
s_mul_i32 s57, s56, {256*2304}
""")
    for c in range(6):
        a(f"ds_read_b64 {R(vDW+2*c,2)}, v{vTB} offset:{OUT + 512*c}")
    for e in range(4):
        if e == 0: a("s_waitcnt lgkmcnt(0)")
        for m in range(3):
            a(f"v_perm_b32 v{vSO+4*e+m}, v{vDW+2*(2*m+1)+(e>>1)}, v{vDW+2*(2*m)+(e>>1)}, s{50+(e&1)}")
        a(f"buffer_store_dwordx3 {R(vSO+4*e,3)}, v{vST}, s[40:43], s57 offen")
        if e < 3: a("s_add_u32 s57, s57, 2304")
    a("s_setpc_b64 s[54:55]")
    a.label("L_codeend")
    out += a.text()
    out += f""".section .rodata,"a"
.p2align 6
.amdhsa_kernel {NAME}_kernel
  .amdhsa_next_free_vgpr 256
  .amdhsa_next_free_sgpr 102
  .amdhsa_accum_offset 256
  .amdhsa_group_segment_fixed_size 0
  .amdhsa_kernarg_size 136
  .amdhsa_user_sgpr_count 2
  .amdhsa_user_sgpr_kernarg_segment_ptr 1
  .amdhsa_system_sgpr_workgroup_id_x 1
.end_amdhsa_kernel
"""
    sys.stderr.write(f"mfma counts A={nA} B={nB} F={nF}\n")
    return out

if __name__ == "__main__":
    p = argparse.ArgumentParser()
    p.add_argument("-o", default="cdna_kernels/" + NAME + ".s")
    p.add_argument("--dump", type=int, default=0)
    p.add_argument("--stamps", action="store_true")
    p.add_argument("--la", type=int, default=6)
    p.add_argument("--codepf", type=int, default=1)
    p.add_argument("--upf", type=int, default=1)
    opt = p.parse_args()
    open(opt.o, "w").write(generate(opt))
```

```python
import sys, argparse

NAME = "concat_heads__ssm_conv_s4d__ssm_conv_s4d__prompt"

STG = 0
PITCH = 288
STGW = 16 * PITCH
PART = 0
OUT = 6 * 6 * 1024
FL = 61440
KA = FL + 1024
KCP = 2112
KCH = 4 * KCP
UB = KA + 6 * KCH
UCH = 4608
BOXL = UB + 6 * UCH
LDS_TOTAL = BOXL + 4096
assert OUT + 8 * 3072 <= FL and 12 * STGW <= FL
ZD, ZX = 543, 1615
Z2 = [687 + 64 * m for m in range(4)]
Z3 = [991, 1071]
DUMMY = 1040

vU, vKF, vKT, vSR = 4, 5, 6, 7
vSL0, vSL1, vPW0, vPW1 = 8, 9, 10, 11
vC8, vC9, vC10, vC11 = 12, 13, 14, 15
vC12, vKD, vST, vUO = 16, 17, 18, 19
vLANE, vONE, vX = 1, 2, 3
vOW, vPA, vFA, vFO = 8, 9, 10, 11
BOX = {3: 112, 5: 116, 7: 120, 9: 124}
vLF, vRF, vD = 20, 52, 68
vP = 36
vDT, vC2 = 84, 86
vDSK = 85
Z_, W_, ZZ, X_, Y_ = 88, 90, 92, 94, 96
T_ = [98, 99, 100, 101]
vDUM0, vDUM1 = 102, 103
dF, dACC, dG, dPT, dOT, dFLG = 20, 84, 96, 12, 16, 18
lT2, lT3, lFX, lF5 = 20, 44, 60, 64
lACC = 68
lW = 92
lG = 104
lDW = [12, 16, 0]
mUD, mT, mIN, mSO = 20, 52, 60, 72

class Asm:
    def __init__(self): self.lines = []
    def __call__(self, s):
        for l in s.strip("\n").split("\n"):
            self.lines.append(l if l.rstrip().endswith(":") and not l.startswith(" ") else "    " + l.strip())
    def label(self, l): self.lines.append(l + ":")
    def text(self): return "\n".join(self.lines) + "\n"

def R(a, n=1): return f"v{a}" if n == 1 else f"v[{a}:{a+n-1}]"

def cmul(a, dst, x, m, conj=False):
    if not conj:
        a(f"v_pk_mul_f32 {R(dst,2)}, {R(x,2)}, {R(m,2)} op_sel:[0,0] op_sel_hi:[0,1]")
        a(f"v_pk_fma_f32 {R(dst,2)}, {R(x,2)}, {R(m,2)}, {R(dst,2)} op_sel:[1,1,0] op_sel_hi:[1,0,1] neg_lo:[0,1,0]")
    else:
        a(f"v_pk_mul_f32 {R(dst,2)}, {R(x,2)}, {R(m,2)} op_sel:[0,0] op_sel_hi:[0,1] neg_hi:[0,1]")
        a(f"v_pk_fma_f32 {R(dst,2)}, {R(x,2)}, {R(m,2)}, {R(dst,2)} op_sel:[1,1,0] op_sel_hi:[1,0,1]")

NST = 18
def stamp(a, opt, idx, wait=False):
    if opt.stamps and idx is not None:
        a(f"s_memtime s[{64+2*idx}:{65+2*idx}]")
        if wait: a("s_waitcnt lgkmcnt(0)")

def lane_table():
    rows = []
    sl0 = {9: 8, 12: 11, 13: 11}
    for l in range(64):
        r, g = l & 15, l >> 4
        sg = 3 - (r & 3)
        h = l >> 1; odd = l & 1
        t = [32 * r + 16 * g,
             sg * KCP - 8 * (r >> 2) + 16 * g,
             sg * KCP - 8 * (r >> 2) + 8 * g,
             r * PITCH + 16 * g,
             sl0.get(r, r) * PITCH + 16 * g,
             min(r, 8) * PITCH + 16 * g,
             16 * (64 * (g >> 1) + 2 * r + (g & 1)),
             2048 + 16 * (32 * g + r)]
        c8 = DUMMY if l == 0 else ((719 if odd else 848) - h)
        c9 = (783 if odd else 655) - h
        c10 = 816 if l == 0 else ((927 if odd else 1008) - h)
        c11 = (895 if odd else 976) - h
        misc = {0: ZD - 509, 1: ZD - 510, 2: ZX - 1027, 3: ZX - 1028, 4: Z3[1] - 127,
                5: ZD - 511, 6: ZD - 512, 7: ZD - 513, 8: ZD - 514}
        c12 = misc.get(l, DUMMY)
        t += [2 * c8, 2 * c9, 2 * c10, 2 * c11, 2 * c12, 16 * (63 - l) + 64, (16 * r + 4 * g) * 2304, 4 * l * 1152]
        for wdt, lo in ((3, 11), (5, 6), (7, 5), (9, 4)):
            for w in range(4):
                d = 0
                for hf in range(2):
                    s = 8 * g + 2 * w + hf
                    if r + lo <= s <= r + lo + wdt - 1: d |= 0x3F80 << (16 * hf)
                t.append(d)
        rows.append([x & 0xFFFFFFFF for x in t])
    out = []
    for c in range(8):
        for l in range(64):
            out.append(rows[l][4 * c:4 * c + 4])
    return out

class Frag:
    def __init__(self, kind, key, reg=None):
        self.kind, self.key, self.reg = kind, key, reg
        self.first = None; self.last = None; self.issued = False; self.seq = -1

def frag_reads(f):
    k = f.key
    if f.kind == "G": return [("ds_read_b128", f.reg, 4, vU, 512 + 2 * k)]
    if f.kind in ("F", "FX"):
        o = 2 * (ZD - 3 - k) if f.kind == "F" else 2 * (ZX - 3 - 1040)
        return [("ds_read_b64", f.reg, 2, vKF, o), ("ds_read_b64", f.reg + 2, 2, vKF, o + 8)]
    if f.kind == "T2":
        d, h = k
        return [("ds_read_b64", f.reg + 2 * j, 2, vKT, 2 * (Z2[2 * h + j] - 3 - 16 * d)) for j in range(2)]
    if f.kind == "T3":
        return [("ds_read_b64", f.reg + 2 * j, 2, vKT, 2 * (Z3[j] - 3 - 16 * k)) for j in range(2)]
    raise ValueError

class Stream:
    def __init__(self, a):
        self.a = a; self.n = 0; self.lds_n = 0; self.done = 0
    def ins(self, s, w=1): self.a(s); self.n += w
    def lds(self, s): self.ins(s); self.lds_n += 1; return self.lds_n
    def wait(self, seq):
        if seq > self.done:
            k = min(self.lds_n - seq, 15)
            self.ins(f"s_waitcnt lgkmcnt({k})"); self.done = self.lds_n - k
    def until(self, n):
        if self.n < n: self.ins(f"s_nop {n - self.n - 1}", n - self.n)
    def load(self, f):
        for (mn, d, n, ar, off) in frag_reads(f):
            f.seq = self.lds(f"{mn} {R(d,n)}, v{ar} offset:{off}")
        f.issued = True

MF = "v_mfma_f32_16x16x32_bf16"
vFU = 7

def ucheck_issue(S, tmp):
    return S.lds(f"ds_read_b32 v{tmp}, v{vFU}")

def ucheck(a, S, seq, tmp, tag):
    S.wait(seq)
    S.ins(f"v_cmp_eq_u32 vcc, 0, v{tmp}")
    S.ins(f"s_cbranch_vccz L_uok_{tag}")
    a.label(f"L_uspin_{tag}")
    a(f"s_sleep 1\nds_read_b32 v{tmp}, v{vFU}\ns_waitcnt lgkmcnt(0)\ns_sub_u32 s34, s34, 1\ns_cbranch_scc1 L_uok_{tag}")
    a(f"v_cmp_eq_u32 vcc, 0, v{tmp}\ns_cbranch_vccnz L_uspin_{tag}")
    a.label(f"L_uok_{tag}")

def emit_dense(a, opt, S, F):
    ops = []
    for tau in range(8):
        for s in range(8):
            g = Frag("G", 256 * tau - 16 - 32 * s)
            ops.append((tau, F[16 + 32 * s], g, tau == 0 and s == 0))
            if tau < 7: ops.append((tau + 1, F[272 + 32 * s], g, s == 0))
            if s == 7: ops.append(("end", tau))
    gl = []
    for i, op in enumerate(ops):
        if op[0] == "end": continue
        for g in (op[1], op[2]):
            if g.first is None:
                g.first = i
                if not g.issued: gl.append(g)
            g.last = i
    endpos = {op[1]: i for i, op in enumerate(ops) if op[0] == "end"}
    ring = [-1] * 8
    acc_last = {}
    pend_out = []
    pinfo = {}
    def issue_partial(t):
        s1 = S.lds(f"ds_read_b32 v{dFLG}, v{vFA} offset:{4*t}")
        s2 = S.lds(f"ds_read_b128 {R(dPT,4)}, v{vPA} offset:{(t-2)*1024}")
        pinfo[t] = s2
    def do_out(t):
        ac = dACC + 4 * (t % 3)
        if t >= 2:
            S.wait(pinfo[t])
            S.ins(f"v_readfirstlane_b32 s58, v{dFLG}")
            S.ins("s_nop 0")
            S.ins("s_cmp_lg_u32 s58, 0")
            S.ins(f"s_cbranch_scc1 L_pok_{t}")
            a.label(f"L_pspin_{t}")
            a(f"s_sleep 1\nds_read_b32 v{dFLG}, v{vFA} offset:{4*t}\nds_read_b128 {R(dPT,4)}, v{vPA} offset:{(t-2)*1024}\ns_waitcnt lgkmcnt(0)")
            a(f"v_readfirstlane_b32 s58, v{dFLG}\ns_sub_u32 s34, s34, 1\ns_cselect_b32 s58, 1, s58\ns_cmp_eq_u32 s58, 0\ns_cbranch_scc1 L_pspin_{t}")
            a.label(f"L_pok_{t}")
        S.until(acc_last[t] + 8)
        if t >= 2:
            S.ins(f"v_pk_add_f32 {R(dPT,2)}, {R(dPT,2)}, {R(ac,2)}")
            S.ins(f"v_pk_add_f32 {R(dPT+2,2)}, {R(dPT+2,2)}, {R(ac+2,2)}")
            ac = dPT
        S.ins(f"v_cvt_pk_bf16_f32 v{dOT}, v{ac}, v{ac+1}")
        S.ins(f"v_cvt_pk_bf16_f32 v{dOT+1}, v{ac+2}, v{ac+3}")
        S.lds(f"ds_write_b64 v{vOW}, {R(dOT,2)} offset:{t*3072}")
        S.lds(f"ds_write_b32 v{vFO}, v{vONE} offset:{32*t}")
        if opt.stamps == 2:
            stamp(a, opt, 10 + t, True); S.done = S.lds_n
    pend = list(gl)
    ug = next(g for g in gl if g.kind == "G" and g.key + 271 >= 1024)
    useq = [None, False]
    for i, op in enumerate(ops):
        if opt.stream and useq[0] is None and i + opt.la + 4 >= ug.first:
            useq[0] = ucheck_issue(S, 19)
        while pend and pend[0].first <= i + opt.la:
            if opt.stream and pend[0] is ug and not useq[1]:
                ucheck(a, S, useq[0], 19, "D"); useq[1] = True
            if pend[0].kind == "F":
                S.load(pend.pop(0)); continue
            slot = next((s for s in range(8) if ring[s] < i), None)
            if slot is None:
                assert pend[0].first > i
                break
            g = pend.pop(0); ring[slot] = g.last; g.reg = dG + 4 * slot; S.load(g)
        for t in range(2, 8):
            if t not in pinfo and i >= endpos[t] - 4 and (t - 1) not in [x[1] for x in pend_out]:
                issue_partial(t)
        if op[0] == "end":
            pend_out.append((acc_last[op[1]] + 8, op[1]))
            continue
        while pend_out and (pend_out[0][0] <= S.n): do_out(pend_out.pop(0)[1])
        t, f, g, first = op
        S.wait(max(f.seq, g.seq))
        ac = dACC + 4 * (t % 3)
        S.ins(f"{MF} {R(ac,4)}, {R(f.reg,4)}, {R(g.reg,4)}, {'0' if first else R(ac,4)}")
        acc_last[t] = S.n
    while pend_out: do_out(pend_out.pop(0)[1])

def level_frags():
    K = {}
    for d in (2, 3, 4):
        for h in (0, 1): K[("T2", d, h)] = Frag("T2", (d, h), lT2 + 4 * ((d - 2) * 2 + h))
    for d in (4, 5, 6, 7): K[("T3", d)] = Frag("T3", d, lT3 + 4 * (d - 4))
    K["FX"] = Frag("FX", 0, lFX)
    K["F5"] = Frag("F", 528, lF5)
    return K

def emit_level(a, opt, S, K):
    acc = lambda t: lACC + 4 * (t - 2)
    inited = set()
    acc_last = {}
    def need(f):
        if not f.issued: S.load(f)
        S.wait(f.seq)
    def am(t, A, B):
        c = R(acc(t), 4) if t in inited else "0"
        inited.add(t)
        S.ins(f"{MF} {R(acc(t),4)}, {R(A,4)}, {R(B,4)}, {c}")
        acc_last[t] = S.n
    G0 = [Frag("G", 256 * b - 16, lG) for b in range(6)]
    GM = [Frag("G", 256 * b - 24, lG + 4) for b in range(6)]
    S.load(G0[0]); S.load(GM[0])
    for k in ["F5", "FX", ("T2", 2, 0), ("T2", 3, 0), ("T2", 4, 0), ("T2", 2, 1), ("T2", 3, 1), ("T2", 4, 1), ("T3", 4), ("T3", 5), ("T3", 6), ("T3", 7)]:
        if not K[k].issued: S.load(K[k])
    tmps = [12, 16]
    wr = {}
    def publish(t):
        S.until(acc_last[t] + 8)
        S.lds(f"ds_write_b128 v{vPA}, {R(acc(t),4)} offset:{(t-2)*1024}")
        S.lds(f"ds_write_b32 v{vFA}, v{vONE} offset:{4*t}")
        if opt.stamps == 2:
            stamp(a, opt, 10 + t, True); S.done = S.lds_n
    def uses(b, h):
        if b < 0: return
        if h < 2: lst = [(b + d, K[("T2", d, h)]) for d in (2, 3, 4) if b + d <= 7]
        else: lst = [(b + d, K[("T3", d)]) for d in (4, 5, 6, 7) if b + d <= 7 and b <= 3]
        for t, f in lst:
            need(f); S.until(wr[(b, h)]); am(t, lW + 4 * h, f.reg)
    for nb in range(7):
        b = nb - 1
        pairs = []
        if nb <= 5:
            g0, gm = G0[nb], GM[nb]
            pairs = [[(g0, 3), (g0, 5)], [(gm, 3), (gm, 5)]]
            if nb <= 3: pairs.append([(g0, 7), (gm, 9)])
        for h in range(3):
            rn = []
            if h < len(pairs):
                for j, (g, box) in enumerate(pairs[h]):
                    need(g)
                    S.ins(f"{MF} {R(tmps[j],4)}, {R(g.reg,4)}, {R(BOX[box],4)}, 0")
                    rn.append(S.n + 8)
                if h == 0:
                    need(K["F5"]); am(nb + 2, K["F5"].reg, g0.reg)
                if h == 1 and nb <= 3:
                    need(K["FX"]); am(nb + 4, K["FX"].reg, g0.reg)
                if opt.stream and nb == 3 and h == 0: useq = ucheck_issue(S, 3)
                if h == len(pairs) - 1 and nb < 5:
                    if opt.stream and nb == 3: ucheck(a, S, useq, 3, "L")
                    S.load(G0[nb + 1]); S.load(GM[nb + 1])
            uses(b, h)
            if h == 2 and b >= 0: publish(b + 2)
            for j in range(len(rn)):
                S.until(rn[j])
                dst = lW + 4 * h + 2 * j
                S.ins(f"v_cvt_pk_bf16_f32 v{dst}, v{tmps[j]}, v{tmps[j]+1}")
                S.ins(f"v_cvt_pk_bf16_f32 v{dst+1}, v{tmps[j]+2}, v{tmps[j]+3}")
            wr[(nb, h)] = S.n + 2

def generate(opt):
    a = Asm()
    hdr = open("cdna_kernels/" + NAME + ".s.ref").read().split("\n")
    top = [l for l in hdr if l.startswith(";") and "@launch" not in l and "Override launch" not in l and "grid=ceil" not in l]
    out = "\n".join(top) + "\n"
    out += f"; @launch grid=(200,1,1) block=(1024,1,1) lds={LDS_TOTAL}\n"
    out += f""".amdgcn_target "amdgcn-amd-amdhsa--gfx950"
.text
.globl {NAME}_kernel
.p2align 8
.type {NAME}_kernel,@function
{NAME}_kernel:
"""
    stamp(a, opt, 0)
    if opt.stamps: a("s_memrealtime s[100:101]")
    a(f"""
s_and_b32 s3, s2, 7
s_mul_i32 s3, s3, 25
s_lshr_b32 s4, s2, 3
s_add_u32 s3, s3, s4
s_cmp_ge_u32 s3, 99
s_cselect_b32 s6, 56, 0
s_load_dwordx16 s[16:31], s[0:1], s6
s_load_dwordx2 s[32:33], s[0:1], 112
v_lshrrev_b32 v2, 6, v0
s_cselect_b32 s7, 9, 0
s_cselect_b32 s48, 1152, 0
v_readfirstlane_b32 s44, v2
s_cmp_ge_u32 s2, 200
s_cbranch_scc1 L_end
s_cmp_ge_u32 s3, 198
s_cbranch_scc1 L_end
v_and_b32 v{vLANE}, 63, v0
s_mul_i32 s4, s3, 5958
s_lshr_b32 s4, s4, 16
s_mul_i32 s5, s4, 11
s_sub_u32 s59, s3, s5
s_mul_i32 s5, s59, 6
s_min_u32 s5, s5, 58
s_sub_u32 s4, s4, s7
s_lshl_b32 s4, s4, 6
s_add_u32 s5, s5, s4
s_cmp_ge_u32 s44, 12
s_cbranch_scc0 L_comp
s_setprio 3
s_lshl_b32 s47, s5, 1
s_sub_u32 s45, s44, 12
s_mul_i32 s9, s45, {256*1152}
s_add_u32 s9, s9, s47
s_add_u32 s10, s9, {1024*1152}
v_mul_u32_u24 v{vUO}, {4*1152}, v{vLANE}
s_mul_i32 s8, s59, 192
s_sub_u32 s8, s8, 768
v_add_u32 v6, s8, v0
v_mul_u32_u24 v6, 1152, v6
s_cmp_eq_u32 s45, 3
s_waitcnt lgkmcnt(0)
s_mov_b32 s18, {2048*1152}
s_mov_b32 s19, 0x00020000
s_barrier
""")
    if opt.upf:
        a(f"""
s_cbranch_scc1 L_noupf
buffer_load_dword v13, v6, s[16:19], s47 offen
L_noupf:
""")
    stamp(a, opt, 1)
    for k in range(8):
        tile, e = k // 4, k % 4
        a(f"buffer_load_dwordx3 {R(mUD+4*k,3)}, v{vUO}, s[16:19], s{9+tile} offen offset:{e*1152}")
    stamp(a, opt, 2)
    a(f"""
s_branch L_mem
L_comp:
""")
    if opt.codepf:
        a(f"""
s_getpc_b64 s[52:53]
L_pc:
v_lshlrev_b32 v22, 7, v0
v_cmp_gt_u32 vcc, L_codeend-L_pc, v22
s_and_saveexec_b64 s[12:13], vcc
s_cbranch_execz L_nocpf
global_load_dword v{vDUM0}, v22, s[52:53]
L_nocpf:
s_mov_b64 exec, s[12:13]
""")
    a(f"""
s_sub_u32 s45, s44, 6
s_cmp_ge_u32 s44, 6
s_cselect_b32 s45, s45, s44
s_cselect_b32 s62, 1, 0
s_add_u32 s46, s5, s45
s_lshl_b32 s8, s46, 8
v_lshl_add_u32 v20, v{vLANE}, 2, s8
s_lshl_b32 s8, s46, 1
s_and_b32 s8, s8, -4
s_waitcnt lgkmcnt(0)
global_load_dword v{vP}, v20, s[18:19]
global_load_dword v{vP+1}, v20, s[20:21]
global_load_dword v{vP+2}, v20, s[22:23]
global_load_dword v{vP+3}, v20, s[24:25]
s_load_dword s40, s[26:27], s8
s_load_dword s41, s[28:29], s8
s_barrier
""")
    stamp(a, opt, 1)
    a(f"""
v_mov_b32 v24, 0
v_mov_b32 v25, 0
v_mov_b32 v26, 0
v_mov_b32 v27, 0
v_lshlrev_b32 v22, 4, v0
v_add_u32 v23, {FL}, v22
""")
    for k in range(5):
        a(f"ds_write_b128 v23, v[24:27] offset:{k*12288}")
    a(f"""
v_bfe_u32 v23, v0, 5, 2
v_mul_u32_u24 v23, {UCH}, v23
v_and_b32 v22, 511, v22
s_mov_b32 s8, {UB + 2*UCH}
v_add3_u32 v23, v23, v22, s8
ds_write_b128 v23, v[24:27]
s_mov_b32 s34, 0x40000
s_mov_b32 s49, 0x01000c0c
s_cmp_lg_u32 s62, 0
s_cselect_b32 s49, 0x03020c0c, s49
v_mov_b32 v{vONE}, 1
s_lshl_b32 s60, s45, 1
s_mul_i32 s61, s60, {STGW}
s_add_u32 s60, s60, s62
s_mul_i32 s60, s60, {STGW}
s_mov_b32 m0, s60
s_mul_i32 s56, s45, {UCH}
s_add_u32 s56, s56, {UB}
s_mul_i32 s57, s45, {KCH}
s_add_u32 s57, s57, {KA}
s_mov_b32 s12, 0xbfb8aa3b
s_mov_b32 s13, 0x3e22f983
s_mov_b32 s14, 0x41000000
s_mov_b32 s15, 0x43800000
s_mov_b32 s63, 0x3fb8aa3b
s_movk_i32 s9, {PITCH}
s_mov_b32 s10, 0x76543210
s_mov_b32 s11, 0xfebbba88
v_and_b32 v20, 15, v{vLANE}
v_and_b32 v21, 48, v{vLANE}
v_lshl_add_u32 v22, v20, 5, v21
v_add_u32 v{vU}, s56, v22
v_and_b32 v23, 3, v20
v_sub_u32 v23, 3, v23
v_mul_u32_u24 v23, {KCP}, v23
v_and_b32 v24, 12, v20
v_lshlrev_b32 v24, 1, v24
v_sub_u32 v23, v23, v24
v_add_u32 v23, s57, v23
v_add_u32 v{vKF}, v23, v21
v_lshrrev_b32 v24, 1, v21
v_add_u32 v{vKT}, v23, v24
v_add_u32 v24, s60, v21
v_mad_u32_u24 v{vSR}, v20, s9, v24
v_min_u32 v25, 8, v20
v_mad_u32_u24 v{vSL1}, v25, s9, v24
v_lshlrev_b32 v25, 2, v20
v_lshrrev_b64 v[26:27], v25, s[10:11]
v_and_b32 v26, 15, v26
v_mad_u32_u24 v{vSL0}, v26, s9, v24
v_and_b32 v25, 32, v{vLANE}
v_and_b32 v26, 16, v{vLANE}
v_lshl_add_u32 v25, v25, 5, v26
v_lshl_add_u32 v25, v20, 5, v25
v_add_u32 v{vPW0}, s60, v25
v_lshl_add_u32 v25, v21, 1, v20
s_add_u32 s8, s60, 2048
v_lshl_add_u32 v{vPW1}, v25, 4, s8
s_cmp_lg_u32 s62, 0
s_cbranch_scc1 L_proL
s_add_u32 s8, s57, 1072
v_lshlrev_b32 v25, 4, v{vLANE}
v_sub_u32 v{vKD}, s8, v25
s_branch L_prodone
L_proL:
v_and_b32 v25, -2, v{vLANE}
v_sub_u32 v25, s57, v25
v_and_b32 v26, 1, v{vLANE}
v_mul_i32_i24 v27, {2*(719-848)}, v26
s_movk_i32 s8, {2*848}
v_add3_u32 v{vC8}, v25, v27, s8
v_mul_i32_i24 v27, {2*(783-655)}, v26
s_movk_i32 s8, {2*655}
v_add3_u32 v{vC9}, v25, v27, s8
v_mul_i32_i24 v27, {2*(895-976)}, v26
s_movk_i32 s8, {2*976}
v_add3_u32 v{vC11}, v25, v27, s8
v_add_u32 v{vC10}, 64, v{vC11}
s_add_u32 s8, s57, {2*DUMMY}
v_writelane_b32 v{vC8}, s8, 0
v_mov_b32 v25, s8
s_add_u32 s8, s57, {2*816}
v_writelane_b32 v{vC10}, s8, 0
s_add_u32 s8, s57, {2*(ZD-509)}
v_cmp_gt_u32 vcc, 6, v{vLANE}
v_lshlrev_b32 v26, 1, v{vLANE}
v_sub_u32 v26, s8, v26
v_cndmask_b32 v{vC12}, v25, v26, vcc
s_add_u32 s8, s57, {2*(ZX-1027)}
v_writelane_b32 v{vC12}, s8, 6
s_add_u32 s8, s57, {2*(ZX-1028)}
v_writelane_b32 v{vC12}, s8, 7
s_add_u32 s8, s57, {2*(Z3[1]-127)}
v_writelane_b32 v{vC12}, s8, 8
L_prodone:
s_waitcnt lgkmcnt(0)
s_lshl_b32 s8, s40, 16
s_and_b32 s40, s40, 0xffff0000
s_lshl_b32 s9, s41, 16
s_and_b32 s41, s41, 0xffff0000
s_bitcmp0_b32 s46, 0
s_cselect_b32 s40, s8, s40
s_cselect_b32 s41, s9, s41
v_mov_b32 v{vDT}, s63
v_mov_b32 v{vDSK}, 0
v_mul_f32 v{vDT}, s40, v{vDT}
v_writelane_b32 v{vDSK}, s41, 0
v_exp_f32 v{vDT}, v{vDT}
""")
    stamp(a, opt, 2)
    a(f"s_waitcnt vmcnt(0)")
    stamp(a, opt, 3)
    if opt.dprio: a("s_setprio 3")
    AB, CC, TA, TB = 52, 54, 56, 58
    LS = {0: 60, 2: 62, 4: 64, 6: 66}
    a(f"""
v_perm_b32 v{TA}, v{vP}, v{vP}, s49
v_mul_f32 v{TA}, s63, v{TA}
v_exp_f32 v{TA}, v{TA}
v_perm_b32 v{TA+1}, v{vP+1}, v{vP+1}, s49
v_cvt_pk_bf16_f32 v{vDT}, v{vDT}, v{TA}
v_perm_b32 v{CC}, v{vP+2}, v{vP+2}, s49
v_and_b32 v{TA}, 0xffff0000, v{vDT}
v_lshlrev_b32 v{vDT}, 16, v{vDT}
v_perm_b32 v{CC+1}, v{vP+3}, v{vP+3}, s49
v_pk_mul_f32 {R(AB,2)}, {R(TA,2)}, {R(vDT,2)} op_sel_hi:[1,0]
v_add_f32 v{vC2}, v{vDT}, v{vDT}
v_pk_mul_f32 {R(AB,2)}, {R(AB,2)}, s[12:13]
v_pk_mul_f32 {R(LS[0],2)}, {R(CC,2)}, {R(vC2,2)} op_sel_hi:[1,0]
v_pk_mul_f32 {R(TA,2)}, {R(AB,2)}, s[14:15] op_sel_hi:[1,0]
v_pk_mul_f32 {R(TB,2)}, {R(AB,2)}, s[14:15] op_sel:[0,1] op_sel_hi:[1,1]
v_fract_f32 v{AB+1}, v{AB+1}
v_exp_f32 v{AB}, v{AB}
v_cos_f32 v{Z_}, v{AB+1}
v_sin_f32 v{Z_+1}, v{AB+1}
v_fract_f32 v{TB+1}, v{TB+1}
v_pk_mul_f32 {R(Z_,2)}, {R(Z_,2)}, {R(AB,2)} op_sel_hi:[1,0]
v_exp_f32 v{TB}, v{TB}
v_cos_f32 v{ZZ}, v{TB+1}
v_sin_f32 v{ZZ+1}, v{TB+1}
v_fract_f32 v{TA+1}, v{TA+1}
v_pk_mul_f32 {R(ZZ,2)}, {R(ZZ,2)}, {R(TB,2)} op_sel_hi:[1,0]
v_exp_f32 v{TA}, v{TA}
v_cos_f32 v{W_}, v{TA+1}
v_sin_f32_e64 v{W_+1}, -v{TA+1}
s_nop 0
v_pk_mul_f32 {R(W_,2)}, {R(W_,2)}, {R(TA,2)} op_sel_hi:[1,0]
""")
    if opt.stamps == 1: stamp(a, opt, 10)
    pend = []
    tc = [0]
    def flush():
        for t, slot in pend: a(f"ds_write_addtid_b32 v{t} offset:{PITCH*slot}")
        pend.clear()
    def put(reg, slot):
        t = T_[tc[0] % 4]; tc[0] += 1
        a(f"v_cvt_pk_bf16_f32 v{t}, v{reg}, v{reg+1}")
        pend.append((t, slot))
        if len(pend) == opt.batch: flush()
    put(LS[0], 0)
    cur = LS[0]
    for b in range(1, 8):
        nxt = LS[b] if b in LS else X_
        cmul(a, nxt, cur, Z_); put(nxt, b); cur = nxt
    cmul(a, X_, LS[2], ZZ); put(X_, 10)
    cmul(a, Y_, LS[6], ZZ); put(Y_, 14)
    cmul(a, LS[2], LS[0], ZZ); put(LS[2], 8)
    cmul(a, LS[6], LS[4], ZZ); put(LS[6], 11)
    cmul(a, X_, LS[2], W_, conj=True); put(X_, 15)
    flush()
    for k in range(4): a(f"ds_read_b128 {R(vLF+4*k,4)}, v{vSL0} offset:{64*k}")
    if opt.dprio: a("s_setprio 2")
    cmul(a, X_, LS[6], ZZ); put(X_, 1)
    cmul(a, Y_, X_, ZZ); put(Y_, 5)
    cur = LS[2]
    for b, slot in ((512, 0), (768, 4), (1024, 2), (1280, 6), (1536, 3), (1792, 7), (2048, 8)):
        nxt = X_ if cur != X_ else Y_
        cmul(a, nxt, cur, ZZ); put(nxt, slot); cur = nxt
    flush()
    for k in range(4): a(f"ds_read_b128 {R(vLF+16+4*k,4)}, v{vSL1} offset:{64*k}")
    if opt.stamps == 1: stamp(a, opt, 11)
    t = T_[tc[0] % 4]; tc[0] += 1
    a(f"v_mov_b32 v{t}, 0x3f80"); pend.append((t, 0))
    if len(pend) == opt.batch: flush()
    put(W_, 1)
    cur = W_
    for n in range(2):
        for j in range(16 * n, 16 * n + 16):
            if j < 2: continue
            nxt = X_ if cur != X_ else Y_
            cmul(a, nxt, cur, W_); put(nxt, j & 15); cur = nxt
            if opt.dprio and j == 5: a("s_setprio 1")
            if opt.dprio and j == 19: a("s_setprio 0")
            if n == 1 and j == 19:
                a(f"s_waitcnt lgkmcnt({len([1 for jj in range(16, 20)]) - len(pend)})")
                for k in range(4):
                    for m in range(2):
                        dd = vD + 8 * m
                        a(f"{MF} {R(dd,4)}, {R(vLF+16*m+4*k,4)}, {R(vRF+4*k,4)}, {'0' if k == 0 else R(dd,4)}")
        flush()
        if n == 1 and opt.stamps == 1: stamp(a, opt, 12, True)
        for k in range(4): a(f"ds_read_b128 {R(vRF+4*k,4)}, v{vSR} offset:{64*k}")
    for k in range(4):
        a(f"s_waitcnt lgkmcnt({3-k})")
        for m in range(2):
            dd = vD + 8 * m + 4
            a(f"{MF} {R(dd,4)}, {R(vLF+16*m+4*k,4)}, {R(vRF+4*k,4)}, {'0' if k == 0 else R(dd,4)}")
    a(f"""
ds_write_b128 v{vPW0}, {R(vD,4)}
ds_write_b128 v{vPW1}, {R(vD+8,4)}
v_lshlrev_b32 v{vX}, 4, v{vLANE}
s_lshl_b32 s8, s45, 9
s_add_u32 s8, s8, {OUT}
s_mul_i32 s9, s45, 6144
s_lshl_b32 s10, s45, 5
s_add_u32 s10, s10, {FL}
s_lshl_b32 s11, s45, 2
s_add_u32 s11, s11, {FL + 256}
ds_write_b128 v{vPW0}, {R(vD+4,4)} offset:512
ds_write_b128 v{vPW1}, {R(vD+12,4)} offset:256
v_lshl_add_u32 v{vOW}, v{vLANE}, 3, s8
v_add_u32 v{vPA}, s9, v{vX}
v_mov_b32 v{vFA}, s10
v_mov_b32 v{vFO}, s11
v_and_b32 v{vFU}, 3, v{vLANE}
v_lshlrev_b32 v{vFU}, 2, v{vFU}
v_add_u32 v{vFU}, {FL + 512}, v{vFU}
s_waitcnt lgkmcnt(0)
""")
    if opt.stamps == 1: stamp(a, opt, 13)
    a("s_barrier")
    stamp(a, opt, 4)
    a("""
s_cmp_lg_u32 s62, 0
s_cbranch_scc1 L_expL
""")
    A_, B_, Pv, E, O, E2, O2 = 88, 100, 96, 108, 112, 116, 120
    d = lambda k: A_ + k
    a(f"""
v_lshl_add_u32 v{vX}, v{vLANE}, 5, s61
ds_read_b128 {R(A_,4)}, v{vX}
ds_read_b128 {R(B_,4)}, v{vX} offset:{STGW}
ds_read_b128 {R(A_+4,4)}, v{vX} offset:16
ds_read_b128 {R(B_+4,4)}, v{vX} offset:{STGW+16}
s_waitcnt lgkmcnt(0)
v_pk_add_f32 {R(A_+4,2)}, {R(A_+4,2)}, {R(B_+4,2)}
v_pk_add_f32 {R(A_+6,2)}, {R(A_+6,2)}, {R(B_+6,2)}
v_pk_add_f32 {R(A_,2)}, {R(A_,2)}, {R(B_,2)}
v_pk_add_f32 {R(A_+2,2)}, {R(A_+2,2)}, {R(B_+2,2)}
v_mov_b32_dpp v{Pv}, v{d(5)} wave_shr:1 row_mask:0xf bank_mask:0xf bound_ctrl:0
v_mov_b32_dpp v{Pv+1}, v{d(6)} wave_shr:1 row_mask:0xf bank_mask:0xf bound_ctrl:0
v_mov_b32_dpp v{Pv+2}, v{d(7)} wave_shr:1 row_mask:0xf bank_mask:0xf bound_ctrl:0
v_add_f32 v{d(0)}, v{d(0)}, v{vDSK}
v_cvt_pk_bf16_f32 v{E}, v{d(7)}, v{d(6)}
v_cvt_pk_bf16_f32 v{E+1}, v{d(5)}, v{d(4)}
v_cvt_pk_bf16_f32 v{E+2}, v{d(3)}, v{d(2)}
v_cvt_pk_bf16_f32 v{E+3}, v{d(1)}, v{d(0)}
ds_write_b128 v{vKD}, {R(E,4)}
v_cvt_pk_bf16_f32 v{O}, v{d(6)}, v{d(5)}
v_cvt_pk_bf16_f32 v{O+1}, v{d(4)}, v{d(3)}
v_cvt_pk_bf16_f32 v{O+2}, v{d(2)}, v{d(1)}
v_cvt_pk_bf16_f32 v{O+3}, v{d(0)}, v{Pv+2}
ds_write_b128 v{vKD}, {R(O,4)} offset:{KCP}
v_mov_b32 v{E2}, v{E+1}
v_mov_b32 v{E2+1}, v{E+2}
v_mov_b32 v{E2+2}, v{E+3}
v_cvt_pk_bf16_f32 v{E2+3}, v{Pv+2}, v{Pv+1}
ds_write_b128 v{vKD}, {R(E2,4)} offset:{2*KCP}
v_mov_b32 v{O2}, v{O+1}
v_mov_b32 v{O2+1}, v{O+2}
v_mov_b32 v{O2+2}, v{O+3}
v_cvt_pk_bf16_f32 v{O2+3}, v{Pv+1}, v{Pv}
ds_write_b128 v{vKD}, {R(O2,4)} offset:{3*KCP}
""")
    a("s_waitcnt lgkmcnt(0)")
    stamp(a, opt, 5, True)
    SD = Stream(a)
    F = {16 + 32 * s: Frag("F", 16 + 32 * s, dF + 4 * s) for s in range(16)}
    for k in range(opt.pre):
        SD.load(F[16 + 32 * (k // 2) + 256 * (k % 2)])
    a("s_barrier")
    if opt.stamps:
        stamp(a, opt, 7, True); SD.done = SD.lds_n
    def dump(a):
        if opt.dump:
            a(f"""
s_cmp_lg_u32 s2, {opt.dump-1}
s_cbranch_scc1 L_nodump
s_load_dwordx2 s[8:9], s[0:1], 128
s_waitcnt lgkmcnt(0)
v_lshlrev_b32 v12, 4, v0
s_mov_b32 s10, 0
L_dump:
v_add_u32 v13, s10, v12
ds_read_b128 v[96:99], v13
s_waitcnt lgkmcnt(0)
global_store_dwordx4 v13, v[96:99], s[8:9]
s_waitcnt vmcnt(0)
s_add_u32 s10, s10, 6144
s_cmp_lt_u32 s10, {LDS_TOTAL - 6143}
s_cbranch_scc1 L_dump
L_nodump:
s_barrier
""")
    dump(a)
    emit_dense(a, opt, SD, F)
    a("s_branch L_fin")
    a.label("L_expL")
    a(f"""
s_add_u32 s8, s61, 2032
v_mov_b32 v20, s8
v_add_u32 v{vX}, s61, v{vX}
ds_read_b128 v[68:71], v{vX} offset:2048
ds_read_b128 v[72:75], v{vX} offset:{2048+STGW}
ds_read_b128 v[76:79], v20
ds_read_b128 v[80:83], v20 offset:{STGW}
ds_read_b32 v84, v20 offset:{2048+8-2032}
ds_read_b32 v85, v20 offset:{2048+8-2032+STGW}
ds_read_b32 v86, v20 offset:{3072-2032}
ds_read_b32 v87, v20 offset:{3072-2032+STGW}
s_mov_b64 s[8:9], 1
s_mov_b64 s[10:11], 2
s_mov_b64 s[12:13], 0xc0
s_mov_b64 s[14:15], 0x100
s_waitcnt lgkmcnt(6)
v_pk_add_f32 v[68:69], v[68:69], v[72:73]
v_pk_add_f32 v[70:71], v[70:71], v[74:75]
v_cvt_pk_bf16_f32 v72, v68, v69
v_cvt_pk_bf16_f32 v73, v70, v71
""")
    for sg in range(4):
        o = sg * (KCP - 2)
        a(f"ds_write_b16 v{vC8}, v72 offset:{o}")
        a(f"ds_write_b16_d16_hi v{vC9}, v72 offset:{o}")
        a(f"ds_write_b16 v{vC10}, v73 offset:{o}")
        a(f"ds_write_b16_d16_hi v{vC11}, v73 offset:{o}")
    a(f"""
s_waitcnt lgkmcnt(15)
v_add_f32 v77, v77, v81
v_pk_add_f32 v[78:79], v[78:79], v[82:83]
v_add_f32 v84, v84, v85
v_add_f32 v86, v86, v87
v_cndmask_b32 v79, v79, v77, s[8:9]
v_cndmask_b32 v79, v79, v78, s[10:11]
v_cndmask_b32 v79, v79, v84, s[12:13]
v_cndmask_b32 v79, v79, v86, s[14:15]
v_cvt_pk_bf16_f32 v74, v79, v79
""")
    for sg in range(4):
        a(f"ds_write_b16 v{vC12}, v74 offset:{sg*(KCP-2)}")
    a(f"v_lshlrev_b32 v{vX}, 4, v{vLANE}")
    a(f"v_add_u32 v{vX}, {BOXL}, v{vX}")
    a("s_waitcnt lgkmcnt(0)")
    stamp(a, opt, 5, True)
    SL = Stream(a)
    LK = level_frags()
    for j, wdt in enumerate((3, 5, 7, 9)):
        bseq = SL.lds(f"ds_read_b128 {R(BOX[wdt],4)}, v{vX} offset:{1024*j}")
    for k in ["FX", ("T2", 2, 0), ("T2", 3, 0), ("T2", 4, 0), ("T2", 2, 1), ("T2", 3, 1), ("T2", 4, 1), ("T3", 4), ("T3", 5), ("T3", 6), ("T3", 7)][:opt.prel]:
        SL.load(LK[k])
    if opt.lprio: a(f"s_setprio {opt.lprio}")
    a("s_barrier")
    if opt.stamps:
        stamp(a, opt, 7, True); SL.done = SL.lds_n
    if opt.dump: a("s_barrier")
    emit_level(a, opt, SL, LK)
    a("s_branch L_fin")
    a.label("L_mem")
    a(f"""
s_add_u32 s48, s48, s47
s_mov_b32 s34, {2048*2304}
s_mov_b32 s35, 0x00020000
s_mov_b32 s50, 0x05040100
s_mov_b32 s51, 0x07060302
s_mov_b32 s36, 0x40000
v_and_b32 v4, 15, v{vLANE}
v_lshrrev_b32 v5, 4, v{vLANE}
v_lshlrev_b32 v6, 3, v5
v_sub_u32 v6, v6, v4
v_add_u32 v6, 15, v6
v_min_u32 v6, 31, v6
s_mov_b32 s11, {((1<<3)-1) << (11+15):#x}
s_cmp_eq_u32 s45, 1
s_cselect_b32 s11, {((1<<5)-1) << (6+15):#x}, s11
s_cmp_eq_u32 s45, 2
s_cselect_b32 s11, {((1<<7)-1) << (5+15):#x}, s11
s_cmp_eq_u32 s45, 3
s_cselect_b32 s11, {((1<<9)-1) << (4+15):#x}, s11
s_mov_b32 s8, 0x8001
s_mov_b32 s12, 0x10001
s_mov_b32 s10, 0x3f80
v_lshrrev_b32 v7, v6, s11
""")
    for w in range(4):
        d_ = 8 + w
        a(f"v_bfe_u32 v{d_}, v7, {2*w}, 2\nv_mul_u32_u24 v{d_}, s8, v{d_}\nv_and_b32 v{d_}, s12, v{d_}\nv_mul_u32_u24 v{d_}, s10, v{d_}")
    a(f"""
s_lshl_b32 s8, s45, 10
s_add_u32 s8, s8, {BOXL}
v_lshl_add_u32 v6, v{vLANE}, 4, s8
ds_write_b128 v6, v[8:11]
v_lshl_add_u32 v4, v4, 2, v5
v_mul_u32_u24 v{vST}, {4*2304}, v4
s_lshl_b32 s8, s45, 9
s_add_u32 s8, s8, {UB + 512}
v_lshl_add_u32 v{vX}, v{vLANE}, 3, s8
v_lshlrev_b32 v4, 3, v{vLANE}
v_min_u32 v5, 5, v{vLANE}
v_lshlrev_b32 v5, 2, v5
v_add_u32 v{vST}, s48, v{vST}
s_lshl_b32 s8, s45, 2
s_add_u32 s8, s8, {FL + 512}
v_mov_b32 v9, s8
v_mov_b32 v{vONE}, 1
s_waitcnt lgkmcnt(0)
s_barrier
""")
    stamp(a, opt, 4)
    for tile in range(2):
        a(f"s_waitcnt vmcnt({4 - 4*tile})")
        q = lambda e, m: mUD + 4 * (4 * tile + e) + m
        for m in range(3):
            for hi in range(2):
                t = mT + 2 * ((2 * m + hi) % 4)
                a(f"v_perm_b32 v{t}, v{q(1,m)}, v{q(0,m)}, s{50+hi}")
                a(f"v_perm_b32 v{t+1}, v{q(3,m)}, v{q(2,m)}, s{50+hi}")
                a(f"ds_write_b64 v{vX}, {R(t,2)} offset:{(2*m+hi)*UCH + 2048*tile}")
        if tile == (0 if opt.stream else 1):
            a("s_waitcnt lgkmcnt(0)")
            stamp(a, opt, 6)
            a("s_barrier")
            stamp(a, opt, 7, True)
            if opt.dump: a("s_barrier")
    if opt.stream:
        a(f"ds_write_b32 v9, v{vONE}")
        stamp(a, opt, 11)
    a(f"""
s_mov_b32 s56, s45
L_mtile:
s_lshl_b32 s8, s56, 5
s_add_u32 s8, s8, {FL + 256}
v_add_u32 v6, s8, v5
s_mul_i32 s8, s56, 3072
s_add_u32 s8, s8, {OUT}
v_add_u32 v7, s8, v4
s_mul_i32 s57, s56, {256*2304}
L_mpoll:
s_sleep 1
ds_read_b32 v8, v6
s_waitcnt lgkmcnt(0)
s_sub_u32 s36, s36, 1
s_cbranch_scc1 L_mgo
v_cmp_eq_u32 vcc, 0, v8
s_cbranch_vccnz L_mpoll
L_mgo:
""")
    for c in range(6):
        a(f"ds_read_b64 {R(mIN+2*c,2)}, v7 offset:{512*c}")
    for e in range(4):
        if e == 0: a("s_waitcnt lgkmcnt(0)")
        for m in range(3):
            a(f"v_perm_b32 v{mSO+4*e+m}, v{mIN+2*(2*m+1)+(e>>1)}, v{mIN+2*(2*m)+(e>>1)}, s{50+(e&1)}")
        a(f"buffer_store_dwordx3 {R(mSO+4*e,3)}, v{vST}, s[32:35], s57 offen")
        if e < 3: a("s_add_u32 s57, s57, 2304")
    if opt.stamps:
        a("s_cmp_ge_u32 s56, 4\ns_cbranch_scc1 L_ms2")
        stamp(a, opt, 10)
        a.label("L_ms2")
    a("""
s_add_u32 s56, s56, 4
s_cmp_lt_u32 s56, 8
s_cbranch_scc1 L_mtile
""")
    a.label("L_fin")
    if opt.stamps:
        stamp(a, opt, 8)
        a("s_waitcnt vmcnt(0)")
        stamp(a, opt, 9)
        a(f"""
s_load_dwordx2 s[8:9], s[0:1], 128
s_waitcnt lgkmcnt(0)
s_lshl_b32 s10, s2, 4
s_add_u32 s10, s10, s44
s_lshl_b32 s10, s10, 7
s_add_u32 s10, s10, {1<<20}
v_mov_b32 v20, s10
""")
        for k in range(1, NST):
            a(f"s_sub_u32 s11, s{64+2*k}, s64\nv_mov_b32 v21, s11\nglobal_store_dword v20, v21, s[8:9] offset:{4*k}")
        a("s_memrealtime s[10:11]\ns_waitcnt lgkmcnt(0)\nv_mov_b32 v21, s10\nglobal_store_dword v20, v21, s[8:9] offset:0")
        a("v_mov_b32 v21, s100\nglobal_store_dword v20, v21, s[8:9] offset:80")
        a("s_getreg_b32 s11, hwreg(HW_REG_HW_ID)\nv_mov_b32 v21, s11\nglobal_store_dword v20, v21, s[8:9] offset:84")
        a("s_getreg_b32 s11, hwreg(HW_REG_XCC_ID)\nv_mov_b32 v21, s11\nglobal_store_dword v20, v21, s[8:9] offset:88")
    a.label("L_end")
    a("s_endpgm")
    a.label("L_codeend")
    out += a.text()
    out += f""".section .rodata,"a"
.p2align 6
.amdhsa_kernel {NAME}_kernel
  .amdhsa_next_free_vgpr 128
  .amdhsa_next_free_sgpr 102
  .amdhsa_accum_offset 128
  .amdhsa_group_segment_fixed_size 0
  .amdhsa_kernarg_size 136
  .amdhsa_user_sgpr_count 2
  .amdhsa_user_sgpr_kernarg_segment_ptr 1
  .amdhsa_system_sgpr_workgroup_id_x 1
.end_amdhsa_kernel
"""
    return out

if __name__ == "__main__":
    p = argparse.ArgumentParser()
    p.add_argument("-o", default="cdna_kernels/" + NAME + ".s")
    p.add_argument("--dump", type=int, default=0)
    p.add_argument("--stamps", type=int, default=0)
    p.add_argument("--la", type=int, default=6)
    p.add_argument("--batch", type=int, default=4)
    p.add_argument("--stream", type=int, default=1)
    p.add_argument("--dprio", type=int, default=1)
    p.add_argument("--pre", type=int, default=15)
    p.add_argument("--prel", type=int, default=11)
    p.add_argument("--lprio", type=int, default=1)
    p.add_argument("--codepf", type=int, default=1)
    p.add_argument("--upf", type=int, default=1)
    opt = p.parse_args()
    open(opt.o, "w").write(generate(opt))
```

```python
import sys, argparse

NAME = "concat_heads__ssm_conv_s4d__ssm_conv_s4d__prompt"

STG = 0
PITCH = 288
STGW = 5120
CHB = 2 * STGW
OUTO = 6144
FL = 61440
FLP = FL + 256
FLO = FL + 512
KA = FL + 1024
KCP = 2112
KCH = 4 * KCP
UB = KA + 6 * KCH
UCH = 4608
BOXL = UB + 6 * UCH
LDS_TOTAL = BOXL + 4096
ZD, ZX = 543, 1615
Z2 = [687 + 64 * m for m in range(4)]
Z3 = [991, 1071]
DUMMY = 1040

vU, vKF, vKT, vSR = 4, 5, 6, 7
vSL0, vSL1, vPW0, vPW1 = 8, 9, 10, 11
vC8, vC9, vC10, vC11 = 12, 13, 14, 15
vC12, vKD, vST, vUO = 16, 17, 18, 19
vLANE, vONE, vX = 1, 2, 3
vOW, vPA, vFA, vFO = 8, 0, 3, 11
BOX = {3: 112, 5: 116, 7: 120, 9: 124}
vLF, vRF, vD = 20, 52, 68
vP = 36
vDT, vC2 = 84, 86
vDSK = 85
Z_, W_, ZZ, X_, Y_ = 88, 90, 92, 94, 96
T_ = [98, 99, 100, 101]
vDUM0, vDUM1 = 102, 103
dF, dACC, dG, dPT, dOT, dFLG = 20, 84, 96, 12, 16, 18
lT2, lT3, lFX, lF5 = 20, 44, 60, 64
lACC = 68
lW = 92
lG = 104
lDW = [12, 16, 0]
mUD, mT, mIN, mSO = 20, 52, 60, 72

class Asm:
    def __init__(self): self.lines = []
    def __call__(self, s):
        for l in s.strip("\n").split("\n"):
            self.lines.append(l if l.rstrip().endswith(":") and not l.startswith(" ") else "    " + l.strip())
    def label(self, l): self.lines.append(l + ":")
    def text(self): return "\n".join(self.lines) + "\n"

def R(a, n=1): return f"v{a}" if n == 1 else f"v[{a}:{a+n-1}]"

def cmul(a, dst, x, m, conj=False):
    if not conj:
        a(f"v_pk_mul_f32 {R(dst,2)}, {R(x,2)}, {R(m,2)} op_sel:[0,0] op_sel_hi:[0,1]")
        a(f"v_pk_fma_f32 {R(dst,2)}, {R(x,2)}, {R(m,2)}, {R(dst,2)} op_sel:[1,1,0] op_sel_hi:[1,0,1] neg_lo:[0,1,0]")
    else:
        a(f"v_pk_mul_f32 {R(dst,2)}, {R(x,2)}, {R(m,2)} op_sel:[0,0] op_sel_hi:[0,1] neg_hi:[0,1]")
        a(f"v_pk_fma_f32 {R(dst,2)}, {R(x,2)}, {R(m,2)}, {R(dst,2)} op_sel:[1,1,0] op_sel_hi:[1,0,1]")

NST = 18
def stamp(a, opt, idx, wait=False):
    if opt.stamps and idx is not None:
        a(f"s_memtime s[{64+2*idx}:{65+2*idx}]")
        if wait: a("s_waitcnt lgkmcnt(0)")

class Frag:
    def __init__(self, kind, key, reg=None):
        self.kind, self.key, self.reg = kind, key, reg
        self.first = None; self.last = None; self.issued = False; self.seq = -1

def frag_reads(f):
    k = f.key
    if f.kind == "G": return [("ds_read_b128", f.reg, 4, vU, 512 + 2 * k)]
    if f.kind in ("F", "FX"):
        o = 2 * (ZD - 3 - k) if f.kind == "F" else 2 * (ZX - 3 - 1040)
        return [("ds_read_b64", f.reg, 2, vKF, o), ("ds_read_b64", f.reg + 2, 2, vKF, o + 8)]
    if f.kind == "T2":
        d, h = k
        return [("ds_read_b64", f.reg + 2 * j, 2, vKT, 2 * (Z2[2 * h + j] - 3 - 16 * d)) for j in range(2)]
    if f.kind == "T3":
        return [("ds_read_b64", f.reg + 2 * j, 2, vKT, 2 * (Z3[j] - 3 - 16 * k)) for j in range(2)]
    raise ValueError

class Stream:
    def __init__(self, a):
        self.a = a; self.n = 0; self.lds_n = 0; self.done = 0
    def ins(self, s, w=1): self.a(s); self.n += w
    def lds(self, s): self.ins(s); self.lds_n += 1; return self.lds_n
    def wait(self, seq):
        if seq > self.done:
            k = min(self.lds_n - seq, 15)
            self.ins(f"s_waitcnt lgkmcnt({k})"); self.done = self.lds_n - k
    def until(self, n):
        if self.n < n: self.ins(f"s_nop {n - self.n - 1}", n - self.n)
    def load(self, f):
        for (mn, d, n, ar, off) in frag_reads(f):
            f.seq = self.lds(f"{mn} {R(d,n)}, v{ar} offset:{off}")
        f.issued = True

MF = "v_mfma_f32_16x16x32_bf16"
vFU = 7

def ucheck_issue(S, tmp):
    return S.lds(f"ds_read_b32 v{tmp}, v{vFU} offset:16")

STUBS = []
vPF = 9
def wait_flags(a, reads, tag):
    rd = "\n".join(f"ds_read_b32 v{t}, v{ad} offset:{o}" for t, ad, o in reads)
    comb = "" if len(reads) == 1 else f"v_and_b32 v{reads[0][0]}, v{reads[0][0]}, v{reads[1][0]}\n"
    a.label(f"L_w_{tag}")
    a(f"""{rd}
s_waitcnt lgkmcnt(0)
{comb}v_cmp_eq_u32 vcc, 0, v{reads[0][0]}
s_cbranch_vccnz L_ws_{tag}""")
    a.label(f"L_wd_{tag}")
    STUBS.append(f"""L_ws_{tag}:
s_sleep 1
s_sub_u32 s34, s34, 1
s_cbranch_scc0 L_w_{tag}
s_branch L_wd_{tag}""")
def ucheck(a, S, seq, tmp, tag):
    S.wait(seq)
    S.ins(f"v_cmp_eq_u32 vcc, 0, v{tmp}")
    S.ins(f"s_cbranch_vccnz L_uspin_{tag}")
    a.label(f"L_uok_{tag}")
    STUBS.append(f"""L_uspin_{tag}:
s_sleep 1
ds_read_b32 v{tmp}, v{vFU} offset:16
s_waitcnt lgkmcnt(0)
s_sub_u32 s34, s34, 1
s_cbranch_scc1 L_uok_{tag}
v_cmp_eq_u32 vcc, 0, v{tmp}
s_cbranch_vccnz L_uspin_{tag}
s_branch L_uok_{tag}""")

def emit_dense(a, opt, S, F):
    ops = []
    for tau in range(8):
        for s in range(8):
            g = Frag("G", 256 * tau - 16 - 32 * s)
            ops.append((tau, F[16 + 32 * s], g, tau == 0 and s == 0))
            if tau < 7: ops.append((tau + 1, F[272 + 32 * s], g, s == 0))
            if s == 7: ops.append(("end", tau))
    gl = []
    for i, op in enumerate(ops):
        if op[0] == "end": continue
        for g in (op[1], op[2]):
            if g.first is None:
                g.first = i
                if not g.issued: gl.append(g)
            g.last = i
    endpos = {op[1]: i for i, op in enumerate(ops) if op[0] == "end"}
    ring = [-1] * 8
    acc_last = {}
    side = []
    pinfo = {}
    def issue_partial(t):
        S.lds(f"ds_read_b32 v{dFLG}, v{vFA} offset:{4*t}")
        pinfo[t] = S.lds(f"ds_read_b128 {R(dPT,4)}, v{vPA} offset:{(t-2)*1024}")
    def queue_out(t):
        ac = dACC + 4 * (t % 3)
        rn = acc_last[t] + 8
        if t >= 2:
            if not opt.nol:
                def chk():
                    S.wait(pinfo[t])
                    S.ins(f"v_cmp_eq_u32 vcc, 0, v{dFLG}")
                def br():
                    S.ins(f"s_cbranch_vccnz L_pspin_{t}")
                    a.label(f"L_pok_{t}")
                STUBS.append(f"""L_pspin_{t}:
s_sleep 1
ds_read_b32 v{dFLG}, v{vFA} offset:{4*t}
ds_read_b128 {R(dPT,4)}, v{vPA} offset:{(t-2)*1024}
s_waitcnt lgkmcnt(0)
s_sub_u32 s34, s34, 1
s_cbranch_scc1 L_pok_{t}
v_cmp_eq_u32 vcc, 0, v{dFLG}
s_cbranch_vccnz L_pspin_{t}
s_branch L_pok_{t}""")
                side.append((0, chk)); side.append((0, br))
            side.append((rn, lambda: (S.ins(f"v_add_f32 v{dPT}, v{dPT}, v{ac}"), S.ins(f"v_add_f32 v{dPT+1}, v{dPT+1}, v{ac+1}"))))
            side.append((rn, lambda: (S.ins(f"v_add_f32 v{dPT+2}, v{dPT+2}, v{ac+2}"), S.ins(f"v_add_f32 v{dPT+3}, v{dPT+3}, v{ac+3}"))))
            src = dPT
        else:
            src = ac
        side.append((rn, lambda: S.ins(f"v_cvt_pk_bf16_f32 v{dOT}, v{src}, v{src+1}")))
        side.append((rn, lambda: S.ins(f"v_cvt_pk_bf16_f32 v{dOT+1}, v{src+2}, v{src+3}")))
        side.append((rn, lambda: S.lds(f"ds_write_b64 v{vOW}, {R(dOT,2)} offset:{t*512}")))
        def fin():
            S.lds(f"ds_write_b32 v{vFO}, v{vONE} offset:{32*t}")
            if opt.stamps == 2:
                stamp(a, opt, 10 + t, True); S.done = S.lds_n
        side.append((rn, fin))
    pend = list(gl)
    ug = next(g for g in gl if g.kind == "G" and g.key + 271 >= 1024)
    useq = [None, False]
    for i, op in enumerate(ops):
        if opt.stream and useq[0] is None and i + opt.la + 4 >= ug.first:
            useq[0] = ucheck_issue(S, 19)
        while pend and pend[0].first <= i + opt.la:
            if opt.stream and pend[0] is ug and not useq[1]:
                ucheck(a, S, useq[0], 19, "D"); useq[1] = True
            if pend[0].kind == "F":
                S.load(pend.pop(0)); continue
            slot = next((s for s in range(8) if ring[s] < i), None)
            if slot is None:
                assert pend[0].first > i
                break
            g = pend.pop(0); ring[slot] = g.last; g.reg = dG + 4 * slot; S.load(g)
        for t in range(2, 8):
            if t not in pinfo and i >= endpos[t] - 3:
                assert not side
                issue_partial(t)
        if op[0] == "end":
            queue_out(op[1])
            continue
        t, f, g, first = op
        S.wait(max(f.seq, g.seq))
        ac = dACC + 4 * (t % 3)
        S.ins(f"{MF} {R(ac,4)}, {R(f.reg,4)}, {R(g.reg,4)}, {'0' if first else R(ac,4)}")
        acc_last[t] = S.n
        if side and side[0][0] <= S.n: side.pop(0)[1]()
        if t == 7 and side and side[0][0] <= S.n: side.pop(0)[1]()
    while side:
        rn, fn = side.pop(0); S.until(rn); fn()

def level_frags():
    K = {}
    for d in (2, 3, 4):
        for h in (0, 1): K[("T2", d, h)] = Frag("T2", (d, h), lT2 + 4 * ((d - 2) * 2 + h))
    for d in (4, 5, 6): K[("T3", d)] = Frag("T3", d, lT3 + 4 * (d - 4))
    K[("T3", 7)] = Frag("T3", 7, lACC + 16)
    K["FX"] = Frag("FX", 0, lFX)
    K["F5"] = Frag("F", 528, lF5)
    return K

def emit_level(a, opt, S, K):
    acc = lambda t: lACC + 4 * (t - 2)
    inited = set()
    acc_last = {}
    vq = []
    wr = {}
    def drain(k):
        while k > 0 and vq and vq[0][0] <= S.n:
            rn, txt, key = vq.pop(0); S.ins(txt); wr[key] = S.n + 2; k -= 1
    def force(key):
        while any(q[2] == key for q in vq):
            rn, txt, kk = vq.pop(0); S.until(rn); S.ins(txt); wr[kk] = S.n + 2
    def need(f):
        if not f.issued: S.load(f)
        S.wait(f.seq)
    def mf(d, A, B, c):
        S.ins(f"{MF} {R(d,4)}, {R(A,4)}, {R(B,4)}, {c}")
        n = S.n
        drain(opt.lint)
        return n
    def am(t, A, B):
        c = R(acc(t), 4) if t in inited else "0"
        inited.add(t)
        acc_last[t] = mf(acc(t), A, B, c)
    G0 = [Frag("G", 256 * b - 16, lG) for b in range(6)]
    GM = [Frag("G", 256 * b - 24, lG + 4) for b in range(6)]
    S.load(G0[0]); S.load(GM[0])
    order = ["F5", "FX", ("T2", 2, 0), ("T2", 3, 0), ("T2", 4, 0), ("T2", 2, 1), ("T2", 3, 1), ("T2", 4, 1), ("T3", 7), ("T3", 4), ("T3", 5), ("T3", 6)]
    lazy = [K[k] for k in order if not K[k].issued]
    tsets = [[12, 16], [8, 56]]
    def publish(t):
        S.until(acc_last[t] + 8)
        S.lds(f"ds_write_b128 v{vPA}, {R(acc(t),4)} offset:{(t-2)*1024}")
        S.lds(f"ds_write_b32 v{vFA}, v{vONE} offset:{4*t}")
        if opt.stamps == 2:
            stamp(a, opt, 10 + t, True); S.done = S.lds_n
    def uses(b, h):
        if b < 0: return
        if h < 2: lst = [(b + d, K[("T2", d, h)]) for d in (2, 3, 4) if b + d <= 7]
        else: lst = [(b + d, K[("T3", d)]) for d in (7, 4, 5, 6) if b + d <= 7 and b <= 3]
        if lst: force((b, h))
        for t, f in lst:
            need(f); S.until(wr[(b, h)]); am(t, lW + 4 * h, f.reg)
    grp = 0
    prevkey = None
    for nb in range(7):
        b = nb - 1
        pairs = []
        if nb <= 5:
            g0, gm = G0[nb], GM[nb]
            pairs = [[(g0, 3), (g0, 5)], [(gm, 3), (gm, 5)]]
            if nb <= 3: pairs.append([(g0, 7), (gm, 9)])
        if opt.lprio == 2 and nb == 2: S.ins(f"s_setprio {opt.dconv}")
        for h in range(3):
            newv = []
            for _ in range(3):
                if lazy: S.load(lazy.pop(0))
            if h < len(pairs):
                tm = tsets[grp % 2]; grp += 1
                for q in list(vq):
                    if q[2] != prevkey: force(q[2])
                for j, (g, box) in enumerate(pairs[h]):
                    need(g)
                    n = mf(tm[j], g.reg, BOX[box], "0")
                    dst = lW + 4 * h + 2 * j
                    newv.append((n + 8, f"v_cvt_pk_bf16_f32 v{dst}, v{tm[j]}, v{tm[j]+1}", (nb, h)))
                    newv.append((n + 8, f"v_cvt_pk_bf16_f32 v{dst+1}, v{tm[j]+2}, v{tm[j]+3}", (nb, h)))
                if h == 0:
                    need(K["F5"]); am(nb + 2, K["F5"].reg, g0.reg)
                if h == 1 and nb <= 3:
                    need(K["FX"]); am(nb + 4, K["FX"].reg, g0.reg)
                if opt.stream and nb == 3 and h == 0: useq = ucheck_issue(S, 1)
                if h == len(pairs) - 1 and nb < 5:
                    if opt.stream and nb == 3: ucheck(a, S, useq, 1, "L")
                    S.load(G0[nb + 1]); S.load(GM[nb + 1])
            uses(b, h)
            if h == 2 and b >= 0: publish(b + 2)
            if newv:
                vq.extend(newv); prevkey = (nb, h)

def generate(opt):
    a = Asm()
    hdr = open("cdna_kernels/" + NAME + ".s.ref").read().split("\n")
    top = [l for l in hdr if l.startswith(";") and "@launch" not in l and "Override launch" not in l and "grid=ceil" not in l]
    out = "\n".join(top) + "\n"
    out += f"; @launch grid=(200,1,1) block=(1024,1,1) lds={LDS_TOTAL}\n"
    out += f""".amdgcn_target "amdgcn-amd-amdhsa--gfx950"
.text
.globl {NAME}_kernel
.p2align 8
.type {NAME}_kernel,@function
{NAME}_kernel:
"""
    stamp(a, opt, 0)
    if opt.stamps: a("s_memrealtime s[100:101]")
    a(f"""
s_and_b32 s3, s2, 7
s_mul_i32 s3, s3, 25
s_lshr_b32 s4, s2, 3
s_add_u32 s3, s3, s4
s_cmp_ge_u32 s3, 99
s_cselect_b32 s6, 56, 0
s_load_dwordx16 s[16:31], s[0:1], s6
s_load_dwordx2 s[32:33], s[0:1], 112
v_lshrrev_b32 v2, 6, v0
s_cselect_b32 s7, 9, 0
s_cselect_b32 s48, 1152, 0
v_readfirstlane_b32 s44, v2
s_cmp_ge_u32 s2, 200
s_cbranch_scc1 L_end
s_cmp_ge_u32 s3, 198
s_cbranch_scc1 L_end
v_and_b32 v{vLANE}, 63, v0
s_mul_i32 s4, s3, 5958
s_lshr_b32 s4, s4, 16
s_mul_i32 s5, s4, 11
s_sub_u32 s59, s3, s5
s_mul_i32 s5, s59, 6
s_min_u32 s5, s5, 58
s_sub_u32 s4, s4, s7
s_lshl_b32 s4, s4, 6
s_add_u32 s5, s5, s4
s_setprio 3
s_cmp_ge_u32 s44, 12
s_cbranch_scc1 L_mem0
s_sub_u32 s45, s44, 6
s_cmp_ge_u32 s44, 6
s_cselect_b32 s45, s45, s44
s_cselect_b32 s62, 1, 0
s_add_u32 s46, s5, s45
s_lshl_b32 s8, s46, 8
v_lshl_add_u32 v20, v{vLANE}, 2, s8
s_lshl_b32 s8, s46, 1
s_and_b32 s8, s8, -4
s_waitcnt lgkmcnt(0)
global_load_dword v{vP}, v20, s[18:19]
global_load_dword v{vP+1}, v20, s[20:21]
global_load_dword v{vP+2}, v20, s[22:23]
global_load_dword v{vP+3}, v20, s[24:25]
s_load_dword s40, s[26:27], s8
s_load_dword s41, s[28:29], s8
s_barrier
s_branch L_comp
L_mem0:
v_mov_b32 v8, 0
v_mov_b32 v9, 0
v_mov_b32 v10, 0
v_mov_b32 v11, 0
v_lshlrev_b32 v7, 4, v{vLANE}
ds_write_b128 v7, v[8:11] offset:{FL}
""")
    if opt.codepf:
        a(f"""
s_getpc_b64 s[52:53]
L_pc:
v_subrev_u32 v6, 768, v0
v_lshlrev_b32 v6, 7, v6
v_cmp_gt_u32 vcc, L_codeend-L_pc, v6
s_and_saveexec_b64 s[12:13], vcc
s_cbranch_execz L_nocpf
global_load_dword v12, v6, s[52:53]
L_nocpf:
s_mov_b64 exec, s[12:13]
""")
    a(f"""
s_lshl_b32 s47, s5, 1
s_sub_u32 s45, s44, 12
s_mul_i32 s9, s45, {256*1152}
s_add_u32 s9, s9, s47
s_add_u32 s10, s9, {1024*1152}
v_mul_u32_u24 v{vUO}, {4*1152}, v{vLANE}
s_mul_i32 s8, s59, 192
s_sub_u32 s8, s8, 768
v_add_u32 v6, s8, v0
v_mul_u32_u24 v6, 1152, v6
s_cmp_eq_u32 s45, 3
s_waitcnt lgkmcnt(0)
s_mov_b32 s18, {2048*1152}
s_mov_b32 s19, 0x00020000
s_barrier
""")
    if opt.upf:
        a(f"""
s_cbranch_scc1 L_noupf
buffer_load_dword v13, v6, s[16:19], s47 offen
L_noupf:
""")
    stamp(a, opt, 1)
    for k in range(8):
        tile, e = k // 4, k % 4
        a(f"buffer_load_dwordx3 {R(mUD+4*k,3)}, v{vUO}, s[16:19], s{9+tile} offen offset:{e*1152}")
    stamp(a, opt, 2)
    a(f"""
s_branch L_mem
L_comp:
""")
    stamp(a, opt, 1)
    a(f"""
s_mul_i32 s57, s45, {KCH}
s_add_u32 s57, s57, {KA}
s_lshl_b32 s8, s62, 12
s_add_u32 s8, s8, s57
v_mov_b32 v24, 0
v_mov_b32 v25, 0
v_mov_b32 v26, 0
v_mov_b32 v27, 0
v_lshl_add_u32 v23, v{vLANE}, 4, s8
v_and_b32 v22, 15, v{vLANE}
s_add_u32 s8, s57, 8192
v_lshl_add_u32 v22, v22, 4, s8
""")
    for k in range(4):
        a(f"ds_write_b128 v23, v[24:27] offset:{k*1024}")
    a(f"""
ds_write_b128 v22, v[24:27]
s_mov_b32 s34, 0x40000
s_mov_b32 s49, 0x01000c0c
s_cmp_lg_u32 s62, 0
s_cselect_b32 s49, 0x03020c0c, s49
v_mov_b32 v{vONE}, 1
s_mul_i32 s61, s45, {CHB}
s_mul_i32 s60, s62, {STGW}
s_add_u32 s60, s60, s61
s_mov_b32 m0, s60
s_mul_i32 s56, s45, {UCH}
s_add_u32 s56, s56, {UB}
s_mov_b32 s12, 0xbfb8aa3b
s_mov_b32 s13, 0x3e22f983
s_mov_b32 s14, 0x41000000
s_mov_b32 s15, 0x43800000
s_mov_b32 s63, 0x3fb8aa3b
s_movk_i32 s9, {PITCH}
s_mov_b32 s10, 0x76543210
s_mov_b32 s11, 0xfebbba88
v_and_b32 v20, 15, v{vLANE}
v_and_b32 v21, 48, v{vLANE}
v_lshl_add_u32 v22, v20, 5, v21
v_add_u32 v{vU}, s56, v22
v_and_b32 v23, 3, v20
v_sub_u32 v23, 3, v23
v_mul_u32_u24 v23, {KCP}, v23
v_and_b32 v24, 12, v20
v_lshlrev_b32 v24, 1, v24
v_sub_u32 v23, v23, v24
v_add_u32 v23, s57, v23
v_add_u32 v{vKF}, v23, v21
v_lshrrev_b32 v24, 1, v21
v_add_u32 v{vKT}, v23, v24
v_add_u32 v24, s60, v21
v_mad_u32_u24 v{vSR}, v20, s9, v24
v_min_u32 v25, 8, v20
v_mad_u32_u24 v{vSL1}, v25, s9, v24
v_lshlrev_b32 v25, 2, v20
v_lshrrev_b64 v[26:27], v25, s[10:11]
v_and_b32 v26, 15, v26
v_mad_u32_u24 v{vSL0}, v26, s9, v24
v_and_b32 v25, 32, v{vLANE}
v_and_b32 v26, 16, v{vLANE}
v_lshl_add_u32 v25, v25, 5, v26
v_lshl_add_u32 v25, v20, 5, v25
v_add_u32 v{vPW0}, s60, v25
v_lshl_add_u32 v25, v21, 1, v20
s_add_u32 s8, s60, 2048
v_lshl_add_u32 v{vPW1}, v25, 4, s8
s_cmp_lg_u32 s62, 0
s_cbranch_scc1 L_proL
s_add_u32 s8, s57, 1072
v_lshlrev_b32 v25, 4, v{vLANE}
v_sub_u32 v{vKD}, s8, v25
s_branch L_prodone
L_proL:
v_and_b32 v25, -2, v{vLANE}
v_sub_u32 v25, s57, v25
v_and_b32 v26, 1, v{vLANE}
v_mul_i32_i24 v27, {2*(719-848)}, v26
s_movk_i32 s8, {2*848}
v_add3_u32 v{vC8}, v25, v27, s8
v_mul_i32_i24 v27, {2*(783-655)}, v26
s_movk_i32 s8, {2*655}
v_add3_u32 v{vC9}, v25, v27, s8
v_mul_i32_i24 v27, {2*(895-976)}, v26
s_movk_i32 s8, {2*976}
v_add3_u32 v{vC11}, v25, v27, s8
v_add_u32 v{vC10}, 64, v{vC11}
s_add_u32 s8, s57, {2*DUMMY}
v_writelane_b32 v{vC8}, s8, 0
v_mov_b32 v25, s8
s_add_u32 s8, s57, {2*816}
v_writelane_b32 v{vC10}, s8, 0
s_add_u32 s8, s57, {2*(ZD-509)}
v_cmp_gt_u32 vcc, 6, v{vLANE}
v_lshlrev_b32 v26, 1, v{vLANE}
v_sub_u32 v26, s8, v26
v_cndmask_b32 v{vC12}, v25, v26, vcc
s_add_u32 s8, s57, {2*(ZX-1027)}
v_writelane_b32 v{vC12}, s8, 6
s_add_u32 s8, s57, {2*(ZX-1028)}
v_writelane_b32 v{vC12}, s8, 7
s_add_u32 s8, s57, {2*(Z3[1]-127)}
v_writelane_b32 v{vC12}, s8, 8
L_prodone:
s_waitcnt lgkmcnt(0)
s_lshl_b32 s8, s40, 16
s_and_b32 s40, s40, 0xffff0000
s_lshl_b32 s9, s41, 16
s_and_b32 s41, s41, 0xffff0000
s_bitcmp0_b32 s46, 0
s_cselect_b32 s40, s8, s40
s_cselect_b32 s41, s9, s41
v_mov_b32 v{vDT}, s63
v_mov_b32 v{vDSK}, 0
v_mul_f32 v{vDT}, s40, v{vDT}
v_writelane_b32 v{vDSK}, s41, 0
v_exp_f32 v{vDT}, v{vDT}
""")
    stamp(a, opt, 2)
    a(f"s_waitcnt vmcnt(0)")
    stamp(a, opt, 3)
    if opt.dprio == 1: a("s_setprio 2")
    elif opt.dprio == 0: a("s_setprio 0")
    else:
        b_ = opt.dprio - 2
        a(f"""
s_setprio {b_}
s_cmp_ge_u32 s45, 4
s_cbranch_scc1 L_prset
s_setprio {b_+1}
s_cmp_ge_u32 s45, 2
s_cbranch_scc1 L_prset
s_setprio {b_+2}
L_prset:
""")
    AB, CC, TA, TB = 52, 54, 56, 58
    LS = {0: 60, 2: 62, 4: 64, 6: 66}
    a(f"""
v_perm_b32 v{TA}, v{vP}, v{vP}, s49
v_mul_f32 v{TA}, s63, v{TA}
v_exp_f32 v{TA}, v{TA}
v_perm_b32 v{TA+1}, v{vP+1}, v{vP+1}, s49
v_cvt_pk_bf16_f32 v{vDT}, v{vDT}, v{TA}
v_perm_b32 v{CC}, v{vP+2}, v{vP+2}, s49
v_and_b32 v{TA}, 0xffff0000, v{vDT}
v_lshlrev_b32 v{vDT}, 16, v{vDT}
v_perm_b32 v{CC+1}, v{vP+3}, v{vP+3}, s49
v_pk_mul_f32 {R(AB,2)}, {R(TA,2)}, {R(vDT,2)} op_sel_hi:[1,0]
v_add_f32 v{vC2}, v{vDT}, v{vDT}
v_pk_mul_f32 {R(AB,2)}, {R(AB,2)}, s[12:13]
v_pk_mul_f32 {R(LS[0],2)}, {R(CC,2)}, {R(vC2,2)} op_sel_hi:[1,0]
v_pk_mul_f32 {R(TA,2)}, {R(AB,2)}, s[14:15] op_sel_hi:[1,0]
v_pk_mul_f32 {R(TB,2)}, {R(AB,2)}, s[14:15] op_sel:[0,1] op_sel_hi:[1,1]
v_fract_f32 v{AB+1}, v{AB+1}
v_exp_f32 v{AB}, v{AB}
v_cos_f32 v{Z_}, v{AB+1}
v_sin_f32 v{Z_+1}, v{AB+1}
v_fract_f32 v{TB+1}, v{TB+1}
v_pk_mul_f32 {R(Z_,2)}, {R(Z_,2)}, {R(AB,2)} op_sel_hi:[1,0]
v_exp_f32 v{TB}, v{TB}
v_cos_f32 v{ZZ}, v{TB+1}
v_sin_f32 v{ZZ+1}, v{TB+1}
v_fract_f32 v{TA+1}, v{TA+1}
v_pk_mul_f32 {R(ZZ,2)}, {R(ZZ,2)}, {R(TB,2)} op_sel_hi:[1,0]
v_exp_f32 v{TA}, v{TA}
v_cos_f32 v{W_}, v{TA+1}
v_sin_f32_e64 v{W_+1}, -v{TA+1}
s_nop 0
v_pk_mul_f32 {R(W_,2)}, {R(W_,2)}, {R(TA,2)} op_sel_hi:[1,0]
""")
    if opt.stamps == 1: stamp(a, opt, 10)
    pend = []
    tc = [0]
    def flush():
        for t, slot in pend: a(f"ds_write_addtid_b32 v{t} offset:{PITCH*slot}")
        pend.clear()
    def put(reg, slot):
        t = T_[tc[0] % 4]; tc[0] += 1
        a(f"v_cvt_pk_bf16_f32 v{t}, v{reg}, v{reg+1}")
        pend.append((t, slot))
        if len(pend) == opt.batch: flush()
    put(LS[0], 0)
    cur = LS[0]
    for b in range(1, 8):
        nxt = LS[b] if b in LS else X_
        cmul(a, nxt, cur, Z_); put(nxt, b); cur = nxt
    cmul(a, X_, LS[2], ZZ); put(X_, 10)
    cmul(a, Y_, LS[6], ZZ); put(Y_, 14)
    cmul(a, LS[2], LS[0], ZZ); put(LS[2], 8)
    cmul(a, LS[6], LS[4], ZZ); put(LS[6], 11)
    cmul(a, X_, LS[2], W_, conj=True); put(X_, 15)
    flush()
    for k in range(4): a(f"ds_read_b128 {R(vLF+4*k,4)}, v{vSL0} offset:{64*k}")
    if opt.dprio == 1: a("s_setprio 1")
    cmul(a, X_, LS[6], ZZ); put(X_, 1)
    cmul(a, Y_, X_, ZZ); put(Y_, 5)
    cur = LS[2]
    for b, slot in ((512, 0), (768, 4), (1024, 2), (1280, 6), (1536, 3), (1792, 7), (2048, 8)):
        nxt = X_ if cur != X_ else Y_
        cmul(a, nxt, cur, ZZ); put(nxt, slot); cur = nxt
    flush()
    for k in range(4): a(f"ds_read_b128 {R(vLF+16+4*k,4)}, v{vSL1} offset:{64*k}")
    if opt.stamps == 1: stamp(a, opt, 11)
    t = T_[tc[0] % 4]; tc[0] += 1
    a(f"v_mov_b32 v{t}, 0x3f80"); pend.append((t, 0))
    if len(pend) == opt.batch: flush()
    put(W_, 1)
    cur = W_
    for n in range(2):
        for j in range(16 * n, 16 * n + 16):
            if j < 2: continue
            nxt = X_ if cur != X_ else Y_
            cmul(a, nxt, cur, W_); put(nxt, j & 15); cur = nxt
            if opt.dprio == 1 and j == 11: a("s_setprio 0")
            if n == 1 and j == 19:
                a(f"s_waitcnt lgkmcnt({4 - len(pend)})")
            if n == 1 and 19 <= j < 27:
                k, m = (j - 19) // 2, (j - 19) % 2
                dd = vD + 8 * m
                a(f"{MF} {R(dd,4)}, {R(vLF+16*m+4*k,4)}, {R(vRF+4*k,4)}, {'0' if k == 0 else R(dd,4)}")
        flush()
        if n == 1 and opt.stamps == 1: stamp(a, opt, 12, True)
        for k in range(4): a(f"ds_read_b128 {R(vRF+4*k,4)}, v{vSR} offset:{64*k}")
    for k in range(4):
        a(f"s_waitcnt lgkmcnt({3-k})")
        for m in range(2):
            dd = vD + 8 * m + 4
            a(f"{MF} {R(dd,4)}, {R(vLF+16*m+4*k,4)}, {R(vRF+4*k,4)}, {'0' if k == 0 else R(dd,4)}")
    a(f"""
ds_write_b128 v{vPW0}, {R(vD,4)}
ds_write_b128 v{vPW1}, {R(vD+8,4)}
v_lshlrev_b32 v19, 4, v{vLANE}
s_add_u32 s8, s61, {OUTO}
s_lshl_b32 s9, s45, 4
s_add_u32 s9, s9, {FL + 32}
s_lshl_b32 s10, s45, 5
s_add_u32 s10, s10, {FLP}
s_lshl_b32 s11, s45, 2
s_add_u32 s11, s11, {FLO}
v_mov_b32 v{vPF}, s9
v_lshl_add_u32 v18, s62, 2, v{vPF}
ds_write_b128 v{vPW0}, {R(vD+4,4)} offset:512
ds_write_b128 v{vPW1}, {R(vD+12,4)} offset:256
ds_write_b32 v18, v{vONE}
v_lshl_add_u32 v{vOW}, v{vLANE}, 3, s8
v_add_u32 v{vPA}, s61, v19
v_mov_b32 v{vFA}, s10
v_mov_b32 v{vFO}, s11
v_and_b32 v{vFU}, 3, v{vLANE}
v_lshlrev_b32 v{vFU}, 2, v{vFU}
v_add_u32 v{vFU}, {FL}, v{vFU}
s_setprio 3
""")
    if opt.stamps == 1: stamp(a, opt, 13)
    wait_flags(a, [(20, vPF, 0), (21, vPF, 4)], "px")
    stamp(a, opt, 4)
    a("""
s_cmp_lg_u32 s62, 0
s_cbranch_scc1 L_expL
""")
    A_, B_, Pv, E, O, E2, O2 = 88, 100, 96, 108, 112, 116, 120
    d = lambda k: A_ + k
    a(f"""
v_lshl_add_u32 v19, v{vLANE}, 5, s61
ds_read_b128 {R(A_,4)}, v19
ds_read_b128 {R(B_,4)}, v19 offset:{STGW}
ds_read_b128 {R(A_+4,4)}, v19 offset:16
ds_read_b128 {R(B_+4,4)}, v19 offset:{STGW+16}
s_waitcnt lgkmcnt(0)
v_pk_add_f32 {R(A_+4,2)}, {R(A_+4,2)}, {R(B_+4,2)}
v_pk_add_f32 {R(A_+6,2)}, {R(A_+6,2)}, {R(B_+6,2)}
v_pk_add_f32 {R(A_,2)}, {R(A_,2)}, {R(B_,2)}
v_pk_add_f32 {R(A_+2,2)}, {R(A_+2,2)}, {R(B_+2,2)}
v_mov_b32_dpp v{Pv}, v{d(5)} wave_shr:1 row_mask:0xf bank_mask:0xf bound_ctrl:0
v_mov_b32_dpp v{Pv+1}, v{d(6)} wave_shr:1 row_mask:0xf bank_mask:0xf bound_ctrl:0
v_mov_b32_dpp v{Pv+2}, v{d(7)} wave_shr:1 row_mask:0xf bank_mask:0xf bound_ctrl:0
v_add_f32 v{d(0)}, v{d(0)}, v{vDSK}
v_cvt_pk_bf16_f32 v{E}, v{d(7)}, v{d(6)}
v_cvt_pk_bf16_f32 v{E+1}, v{d(5)}, v{d(4)}
v_cvt_pk_bf16_f32 v{E+2}, v{d(3)}, v{d(2)}
v_cvt_pk_bf16_f32 v{E+3}, v{d(1)}, v{d(0)}
ds_write_b128 v{vKD}, {R(E,4)}
v_cvt_pk_bf16_f32 v{O}, v{d(6)}, v{d(5)}
v_cvt_pk_bf16_f32 v{O+1}, v{d(4)}, v{d(3)}
v_cvt_pk_bf16_f32 v{O+2}, v{d(2)}, v{d(1)}
v_cvt_pk_bf16_f32 v{O+3}, v{d(0)}, v{Pv+2}
ds_write_b128 v{vKD}, {R(O,4)} offset:{KCP}
v_mov_b32 v{E2}, v{E+1}
v_mov_b32 v{E2+1}, v{E+2}
v_mov_b32 v{E2+2}, v{E+3}
v_cvt_pk_bf16_f32 v{E2+3}, v{Pv+2}, v{Pv+1}
ds_write_b128 v{vKD}, {R(E2,4)} offset:{2*KCP}
v_mov_b32 v{O2}, v{O+1}
v_mov_b32 v{O2+1}, v{O+2}
v_mov_b32 v{O2+2}, v{O+3}
v_cvt_pk_bf16_f32 v{O2+3}, v{Pv+1}, v{Pv}
ds_write_b128 v{vKD}, {R(O2,4)} offset:{3*KCP}
""")
    a(f"ds_write_b32 v{vPF}, v{vONE} offset:8")
    stamp(a, opt, 5)
    SD = Stream(a)
    F = {16 + 32 * s: Frag("F", 16 + 32 * s, dF + 4 * s) for s in range(16)}
    for k in range(opt.pre):
        SD.load(F[16 + 32 * (k // 2) + 256 * (k % 2)])
    a(f"s_setprio {opt.dconv}")
    wait_flags(a, [(18, vFU, 0), (19, vPF, 12)], "d")
    SD.done = SD.lds_n
    stamp(a, opt, 7, True)
    emit_dense(a, opt, SD, F)
    a("s_branch L_fin")
    a.label("L_expL")
    a(f"""
s_add_u32 s8, s61, 2032
v_mov_b32 v20, s8
v_add_u32 v19, s61, v19
ds_read_b128 v[68:71], v19 offset:2048
ds_read_b128 v[72:75], v19 offset:{2048+STGW}
ds_read_b128 v[76:79], v20
ds_read_b128 v[80:83], v20 offset:{STGW}
ds_read_b32 v84, v20 offset:{2048+8-2032}
ds_read_b32 v85, v20 offset:{2048+8-2032+STGW}
ds_read_b32 v86, v20 offset:{3072-2032}
ds_read_b32 v87, v20 offset:{3072-2032+STGW}
s_mov_b64 s[8:9], 1
s_mov_b64 s[10:11], 2
s_mov_b64 s[12:13], 0xc0
s_mov_b64 s[14:15], 0x100
s_waitcnt lgkmcnt(6)
v_pk_add_f32 v[68:69], v[68:69], v[72:73]
v_pk_add_f32 v[70:71], v[70:71], v[74:75]
v_cvt_pk_bf16_f32 v72, v68, v69
v_cvt_pk_bf16_f32 v73, v70, v71
""")
    for sg in range(4):
        o = sg * (KCP - 2)
        a(f"ds_write_b16 v{vC8}, v72 offset:{o}")
        a(f"ds_write_b16_d16_hi v{vC9}, v72 offset:{o}")
        a(f"ds_write_b16 v{vC10}, v73 offset:{o}")
        a(f"ds_write_b16_d16_hi v{vC11}, v73 offset:{o}")
    a(f"""
s_waitcnt lgkmcnt(15)
v_add_f32 v77, v77, v81
v_pk_add_f32 v[78:79], v[78:79], v[82:83]
v_add_f32 v84, v84, v85
v_add_f32 v86, v86, v87
v_cndmask_b32 v79, v79, v77, s[8:9]
v_cndmask_b32 v79, v79, v78, s[10:11]
v_cndmask_b32 v79, v79, v84, s[12:13]
v_cndmask_b32 v79, v79, v86, s[14:15]
v_cvt_pk_bf16_f32 v74, v79, v79
""")
    for sg in range(4):
        a(f"ds_write_b16 v{vC12}, v74 offset:{sg*(KCP-2)}")
    a(f"v_lshlrev_b32 v19, 4, v{vLANE}")
    a(f"v_add_u32 v19, {BOXL}, v19")
    a(f"ds_write_b32 v{vPF}, v{vONE} offset:12")
    stamp(a, opt, 5)
    SL = Stream(a)
    LK = level_frags()
    for k in ["FX", ("T2", 2, 0), ("T2", 3, 0), ("T2", 4, 0), ("T2", 2, 1), ("T2", 3, 1), ("T2", 4, 1), ("T3", 7), ("T3", 4), ("T3", 5), ("T3", 6)][:opt.prel]:
        SL.load(LK[k])
    a(f"s_setprio {opt.dconv + (1 if opt.lprio else 0)}")
    wait_flags(a, [(16, vFU, 0), (17, vPF, 8)], "l")
    SL.done = SL.lds_n
    stamp(a, opt, 7, True)
    for j, wdt in enumerate((3, 5, 7, 9)):
        SL.lds(f"ds_read_b128 {R(BOX[wdt],4)}, v19 offset:{1024*j}")
    if not opt.nol: emit_level(a, opt, SL, LK)
    a("s_branch L_fin")
    a.label("L_mem")
    a(f"""
s_add_u32 s48, s48, s47
s_mov_b32 s34, {2048*2304}
s_mov_b32 s35, 0x00020000
s_mov_b32 s50, 0x05040100
s_mov_b32 s51, 0x07060302
s_mov_b32 s36, 0x40000
v_and_b32 v4, 15, v{vLANE}
v_lshrrev_b32 v5, 4, v{vLANE}
v_lshlrev_b32 v6, 3, v5
v_sub_u32 v6, v6, v4
v_add_u32 v6, 15, v6
v_min_u32 v6, 31, v6
s_mov_b32 s11, {((1<<3)-1) << (11+15):#x}
s_cmp_eq_u32 s45, 1
s_cselect_b32 s11, {((1<<5)-1) << (6+15):#x}, s11
s_cmp_eq_u32 s45, 2
s_cselect_b32 s11, {((1<<7)-1) << (5+15):#x}, s11
s_cmp_eq_u32 s45, 3
s_cselect_b32 s11, {((1<<9)-1) << (4+15):#x}, s11
s_mov_b32 s8, 0x8001
s_mov_b32 s12, 0x10001
s_mov_b32 s10, 0x3f80
v_lshrrev_b32 v7, v6, s11
""")
    for w in range(4):
        d_ = 8 + w
        a(f"v_bfe_u32 v{d_}, v7, {2*w}, 2\nv_mul_u32_u24 v{d_}, s8, v{d_}\nv_and_b32 v{d_}, s12, v{d_}\nv_mul_u32_u24 v{d_}, s10, v{d_}")
    a(f"""
s_lshl_b32 s8, s45, 10
s_add_u32 s8, s8, {BOXL}
v_lshl_add_u32 v6, v{vLANE}, 4, s8
ds_write_b128 v6, v[8:11]
v_lshl_add_u32 v4, v4, 2, v5
v_mul_u32_u24 v{vST}, {4*2304}, v4
s_lshl_b32 s8, s45, 9
s_add_u32 s8, s8, {UB + 512}
v_lshl_add_u32 v{vX}, v{vLANE}, 3, s8
v_lshlrev_b32 v4, 3, v{vLANE}
v_min_u32 v5, 5, v{vLANE}
v_lshlrev_b32 v5, 2, v5
v_add_u32 v{vST}, s48, v{vST}
s_lshl_b32 s8, s45, 2
s_add_u32 s8, s8, {FL}
v_mov_b32 v14, s8
v_mov_b32 v{vONE}, 1
v_mov_b32 v8, 0
v_mov_b32 v9, 0
v_mov_b32 v10, 0
v_mov_b32 v11, 0
v_subrev_u32 v6, 768, v0
v_lshrrev_b32 v7, 5, v6
v_min_u32 v7, 5, v7
v_mul_u32_u24 v7, {UCH}, v7
v_and_b32 v6, 31, v6
v_lshl_add_u32 v6, v6, 4, v7
v_add_u32 v6, {UB}, v6
ds_write_b128 v6, v[8:11]
""")
    stamp(a, opt, 4)
    for tile in range(2):
        a(f"s_waitcnt vmcnt({4 - 4*tile})")
        q = lambda e, m: mUD + 4 * (4 * tile + e) + m
        for m in range(3):
            for hi in range(2):
                t = mT + 2 * ((2 * m + hi) % 4)
                a(f"v_perm_b32 v{t}, v{q(1,m)}, v{q(0,m)}, s{50+hi}")
                a(f"v_perm_b32 v{t+1}, v{q(3,m)}, v{q(2,m)}, s{50+hi}")
                a(f"ds_write_b64 v{vX}, {R(t,2)} offset:{(2*m+hi)*UCH + 2048*tile}")
        a(f"ds_write_b32 v14, v{vONE} offset:{16*tile}")
        stamp(a, opt, 6 if tile == 0 else 11)
    a(f"""
s_mov_b32 s56, s45
L_mtile:
s_lshl_b32 s8, s56, 5
s_add_u32 s8, s8, {FLO}
v_add_u32 v6, s8, v5
s_lshl_b32 s8, s56, 9
s_add_u32 s8, s8, {OUTO}
v_add_u32 v7, s8, v4
s_mul_i32 s57, s56, {256*2304}
L_mpoll:
s_sleep {opt.msleep}
ds_read_b32 v8, v6
s_waitcnt lgkmcnt(0)
s_sub_u32 s36, s36, 1
s_cbranch_scc1 L_mgo
v_cmp_eq_u32 vcc, 0, v8
s_cbranch_vccnz L_mpoll
L_mgo:
""")
    for c in range(6):
        a(f"ds_read_b64 {R(mIN+2*c,2)}, v7 offset:{CHB*c}")
    for e in range(4):
        if e == 0: a("s_waitcnt lgkmcnt(0)")
        for m in range(3):
            a(f"v_perm_b32 v{mSO+4*e+m}, v{mIN+2*(2*m+1)+(e>>1)}, v{mIN+2*(2*m)+(e>>1)}, s{50+(e&1)}")
        a(f"buffer_store_dwordx3 {R(mSO+4*e,3)}, v{vST}, s[32:35], s57 offen")
        if e < 3: a("s_add_u32 s57, s57, 2304")
    if opt.stamps:
        a("s_cmp_ge_u32 s56, 4\ns_cbranch_scc1 L_ms2")
        stamp(a, opt, 10)
        a.label("L_ms2")
    a("""
s_add_u32 s56, s56, 4
s_cmp_lt_u32 s56, 8
s_cbranch_scc1 L_mtile
""")
    a.label("L_fin")
    if opt.dbgst: stamp(a, opt, 8)
    if opt.stamps and not opt.dbgst:
        stamp(a, opt, 8)
        a("s_waitcnt vmcnt(0)")
        stamp(a, opt, 9)
        a(f"""
s_load_dwordx2 s[8:9], s[0:1], 128
s_waitcnt lgkmcnt(0)
s_lshl_b32 s10, s2, 4
s_add_u32 s10, s10, s44
s_lshl_b32 s10, s10, 7
s_add_u32 s10, s10, {1<<20}
v_mov_b32 v20, s10
""")
        for k in range(1, NST):
            a(f"s_sub_u32 s11, s{64+2*k}, s64\nv_mov_b32 v21, s11\nglobal_store_dword v20, v21, s[8:9] offset:{4*k}")
        a("s_memrealtime s[10:11]\ns_waitcnt lgkmcnt(0)\nv_mov_b32 v21, s10\nglobal_store_dword v20, v21, s[8:9] offset:0")
        a("v_mov_b32 v21, s100\nglobal_store_dword v20, v21, s[8:9] offset:80")
        a("s_getreg_b32 s11, hwreg(HW_REG_HW_ID)\nv_mov_b32 v21, s11\nglobal_store_dword v20, v21, s[8:9] offset:84")
        a("s_getreg_b32 s11, hwreg(HW_REG_XCC_ID)\nv_mov_b32 v21, s11\nglobal_store_dword v20, v21, s[8:9] offset:88")
    if opt.dbgst:
        a("""
s_waitcnt vmcnt(0)
s_memtime s[82:83]
s_cmp_lg_u32 s2, 40
s_cbranch_scc1 L_end
s_cmp_eq_u32 s44, 4
s_cselect_b32 s10, 0, 32
s_cbranch_scc1 L_dbgw
s_cmp_lg_u32 s44, 15
s_cbranch_scc1 L_end
L_dbgw:
s_load_dwordx2 s[8:9], s[0:1], 120
s_waitcnt lgkmcnt(0)
v_mov_b32 v20, s10
""")
        for j, k in enumerate((1, 2, 3, 4, 6, 7, 8, 9)):
            a(f"s_sub_u32 s11, s{64+2*k}, s64\nv_mov_b32 v21, s11\nglobal_store_dword v20, v21, s[8:9] offset:{4*j}")
    a.label("L_end")
    a("s_endpgm")
    for st in STUBS: a(st)
    a.label("L_codeend")
    out += a.text()
    out += f""".section .rodata,"a"
.p2align 6
.amdhsa_kernel {NAME}_kernel
  .amdhsa_next_free_vgpr 128
  .amdhsa_next_free_sgpr 102
  .amdhsa_accum_offset 128
  .amdhsa_group_segment_fixed_size 0
  .amdhsa_kernarg_size 136
  .amdhsa_user_sgpr_count 2
  .amdhsa_user_sgpr_kernarg_segment_ptr 1
  .amdhsa_system_sgpr_workgroup_id_x 1
.end_amdhsa_kernel
"""
    return out

if __name__ == "__main__":
    p = argparse.ArgumentParser()
    p.add_argument("-o", default="cdna_kernels/" + NAME + ".s")
    p.add_argument("--dump", type=int, default=0)
    p.add_argument("--stamps", type=int, default=0)
    p.add_argument("--la", type=int, default=6)
    p.add_argument("--batch", type=int, default=4)
    p.add_argument("--nol", type=int, default=0)
    p.add_argument("--msleep", type=int, default=1)
    p.add_argument("--lint", type=int, default=1)
    p.add_argument("--stream", type=int, default=1)
    p.add_argument("--dprio", type=int, default=2)
    p.add_argument("--dbgst", type=int, default=0)
    p.add_argument("--dconv", type=int, default=0)
    p.add_argument("--pre", type=int, default=15)
    p.add_argument("--prel", type=int, default=11)
    p.add_argument("--lprio", type=int, default=1)
    p.add_argument("--codepf", type=int, default=1)
    p.add_argument("--upf", type=int, default=1)
    opt = p.parse_args()
    open(opt.o, "w").write(generate(opt))
```

```python
import sys, argparse

NAME = "concat_heads__ssm_conv_s4d__ssm_conv_s4d__prompt"

STG = 0
PITCH = 288
STGW = 5120
CHB = 2 * STGW
OUTO = 6144
FL = 61440
FLP = FL + 256
FLO = FL + 512
KA = FL + 1024
KCP = 2112
KCH = 4 * KCP
UB = KA + 6 * KCH
UCH = 4608
BOXL = UB + 6 * UCH
LDS_TOTAL = BOXL + 4096
ZD, ZX = 543, 1615
Z2 = [687 + 64 * m for m in range(4)]
Z3 = [991, 1071]
DUMMY = 1040

vU, vKF, vKT, vSR = 4, 5, 6, 7
vSL0, vSL1, vPW0, vPW1 = 8, 9, 10, 11
vC8, vC9, vC10, vC11 = 12, 13, 14, 15
vC12, vKD, vST, vUO = 16, 17, 18, 19
vLANE, vONE, vX = 1, 2, 3
vOW, vPA, vFA, vFO = 8, 0, 3, 11
BOX = {3: 112, 5: 116, 7: 120, 9: 124}
vLF, vRF, vD = 20, 52, 68
vP = 36
vDT, vC2 = 84, 86
vDSK = 85
Z_, W_, ZZ, X_, Y_ = 88, 90, 92, 94, 96
T_ = [98, 99, 100, 101]
vDUM0, vDUM1 = 102, 103
dF, dACC, dG, dPT, dOT, dFLG = 20, 84, 96, 12, 16, 18
lT2, lT3, lFX, lF5 = 20, 44, 60, 64
lACC = 68
lW = 92
lG = 104
lDW = [12, 16, 0]
mUD, mT, mIN, mSO = 20, 52, 60, 72

class Asm:
    def __init__(self): self.lines = []
    def __call__(self, s):
        for l in s.strip("\n").split("\n"):
            self.lines.append(l if l.rstrip().endswith(":") and not l.startswith(" ") else "    " + l.strip())
    def label(self, l): self.lines.append(l + ":")
    def text(self): return "\n".join(self.lines) + "\n"

def R(a, n=1): return f"v{a}" if n == 1 else f"v[{a}:{a+n-1}]"

def cmul(a, dst, x, m, conj=False):
    if not conj:
        a(f"v_pk_mul_f32 {R(dst,2)}, {R(x,2)}, {R(m,2)} op_sel:[0,0] op_sel_hi:[0,1]")
        a(f"v_pk_fma_f32 {R(dst,2)}, {R(x,2)}, {R(m,2)}, {R(dst,2)} op_sel:[1,1,0] op_sel_hi:[1,0,1] neg_lo:[0,1,0]")
    else:
        a(f"v_pk_mul_f32 {R(dst,2)}, {R(x,2)}, {R(m,2)} op_sel:[0,0] op_sel_hi:[0,1] neg_hi:[0,1]")
        a(f"v_pk_fma_f32 {R(dst,2)}, {R(x,2)}, {R(m,2)}, {R(dst,2)} op_sel:[1,1,0] op_sel_hi:[1,0,1]")

NST = 18
def stamp(a, opt, idx, wait=False):
    if opt.stamps and idx is not None:
        a(f"s_memtime s[{64+2*idx}:{65+2*idx}]")
        if wait: a("s_waitcnt lgkmcnt(0)")

class Frag:
    def __init__(self, kind, key, reg=None):
        self.kind, self.key, self.reg = kind, key, reg
        self.first = None; self.last = None; self.issued = False; self.seq = -1

def frag_reads(f):
    k = f.key
    if f.kind == "G": return [("ds_read_b128", f.reg, 4, vU, 512 + 2 * k)]
    if f.kind in ("F", "FX"):
        o = 2 * (ZD - 3 - k) if f.kind == "F" else 2 * (ZX - 3 - 1040)
        return [("ds_read_b64", f.reg, 2, vKF, o), ("ds_read_b64", f.reg + 2, 2, vKF, o + 8)]
    if f.kind == "T2":
        d, h = k
        return [("ds_read_b64", f.reg + 2 * j, 2, vKT, 2 * (Z2[2 * h + j] - 3 - 16 * d)) for j in range(2)]
    if f.kind == "T3":
        return [("ds_read_b64", f.reg + 2 * j, 2, vKT, 2 * (Z3[j] - 3 - 16 * k)) for j in range(2)]
    raise ValueError

class Stream:
    def __init__(self, a):
        self.a = a; self.n = 0; self.lds_n = 0; self.done = 0
    def ins(self, s, w=1): self.a(s); self.n += w
    def lds(self, s): self.ins(s); self.lds_n += 1; return self.lds_n
    def wait(self, seq):
        if seq > self.done:
            k = min(self.lds_n - seq, 15)
            self.ins(f"s_waitcnt lgkmcnt({k})"); self.done = self.lds_n - k
    def until(self, n):
        if self.n < n: self.ins(f"s_nop {n - self.n - 1}", n - self.n)
    def load(self, f):
        for (mn, d, n, ar, off) in frag_reads(f):
            f.seq = self.lds(f"{mn} {R(d,n)}, v{ar} offset:{off}")
        f.issued = True

MF = "v_mfma_f32_16x16x32_bf16"
vFU = 7

def ucheck_issue(S, tmp):
    return S.lds(f"ds_read_b32 v{tmp}, v{vFU} offset:16")

STUBS = []
vPF = 9
def wait_flags(a, reads, tag):
    rd = "\n".join(f"ds_read_b32 v{t}, v{ad} offset:{o}" for t, ad, o in reads)
    comb = "" if len(reads) == 1 else f"v_and_b32 v{reads[0][0]}, v{reads[0][0]}, v{reads[1][0]}\n"
    a.label(f"L_w_{tag}")
    a(f"""{rd}
s_waitcnt lgkmcnt(0)
{comb}v_cmp_eq_u32 vcc, 0, v{reads[0][0]}
s_cbranch_vccnz L_ws_{tag}""")
    a.label(f"L_wd_{tag}")
    STUBS.append(f"""L_ws_{tag}:
s_sleep 1
s_sub_u32 s34, s34, 1
s_cbranch_scc0 L_w_{tag}
s_branch L_wd_{tag}""")
def ucheck(a, S, seq, tmp, tag):
    S.wait(seq)
    S.ins(f"v_cmp_eq_u32 vcc, 0, v{tmp}")
    S.ins(f"s_cbranch_vccnz L_uspin_{tag}")
    a.label(f"L_uok_{tag}")
    STUBS.append(f"""L_uspin_{tag}:
s_sleep 1
ds_read_b32 v{tmp}, v{vFU} offset:16
s_waitcnt lgkmcnt(0)
s_sub_u32 s34, s34, 1
s_cbranch_scc1 L_uok_{tag}
v_cmp_eq_u32 vcc, 0, v{tmp}
s_cbranch_vccnz L_uspin_{tag}
s_branch L_uok_{tag}""")

def emit_dense(a, opt, S, F):
    ops = []
    for tau in range(8):
        for s in range(8):
            g = Frag("G", 256 * tau - 16 - 32 * s)
            ops.append((tau, F[16 + 32 * s], g, tau == 0 and s == 0))
            if tau < 7: ops.append((tau + 1, F[272 + 32 * s], g, s == 0))
            if s == 7: ops.append(("end", tau))
    gl = []
    for i, op in enumerate(ops):
        if op[0] == "end": continue
        for g in (op[1], op[2]):
            if g.first is None:
                g.first = i
                if not g.issued: gl.append(g)
            g.last = i
    endpos = {op[1]: i for i, op in enumerate(ops) if op[0] == "end"}
    ring = [-1] * 8
    acc_last = {}
    side = []
    pinfo = {}
    def issue_partial(t):
        S.lds(f"ds_read_b32 v{dFLG}, v{vFA} offset:{4*t}")
        pinfo[t] = S.lds(f"ds_read_b128 {R(dPT,4)}, v{vPA} offset:{(t-2)*1024}")
    def queue_out(t):
        ac = dACC + 4 * (t % 3)
        rn = acc_last[t] + 8
        if t >= 2:
            if not opt.nol:
                def chk():
                    S.wait(pinfo[t])
                    S.ins(f"v_cmp_eq_u32 vcc, 0, v{dFLG}")
                def br():
                    S.ins(f"s_cbranch_vccnz L_pspin_{t}")
                    a.label(f"L_pok_{t}")
                STUBS.append(f"""L_pspin_{t}:
s_sleep 1
ds_read_b32 v{dFLG}, v{vFA} offset:{4*t}
ds_read_b128 {R(dPT,4)}, v{vPA} offset:{(t-2)*1024}
s_waitcnt lgkmcnt(0)
s_sub_u32 s34, s34, 1
s_cbranch_scc1 L_pok_{t}
v_cmp_eq_u32 vcc, 0, v{dFLG}
s_cbranch_vccnz L_pspin_{t}
s_branch L_pok_{t}""")
                side.append((0, chk)); side.append((0, br))
            side.append((rn, lambda: (S.ins(f"v_add_f32 v{dPT}, v{dPT}, v{ac}"), S.ins(f"v_add_f32 v{dPT+1}, v{dPT+1}, v{ac+1}"))))
            side.append((rn, lambda: (S.ins(f"v_add_f32 v{dPT+2}, v{dPT+2}, v{ac+2}"), S.ins(f"v_add_f32 v{dPT+3}, v{dPT+3}, v{ac+3}"))))
            src = dPT
        else:
            src = ac
        side.append((rn, lambda: S.ins(f"v_cvt_pk_bf16_f32 v{dOT}, v{src}, v{src+1}")))
        side.append((rn, lambda: S.ins(f"v_cvt_pk_bf16_f32 v{dOT+1}, v{src+2}, v{src+3}")))
        side.append((rn, lambda: S.lds(f"ds_write_b64 v{vOW}, {R(dOT,2)} offset:{t*512}")))
        def fin():
            S.lds(f"ds_write_b32 v{vFO}, v{vONE} offset:{32*t}")
            if opt.stamps == 2:
                stamp(a, opt, 10 + t, True); S.done = S.lds_n
        side.append((rn, fin))
    pend = list(gl)
    ug = next(g for g in gl if g.kind == "G" and g.key + 271 >= 1024)
    useq = [None, False]
    for i, op in enumerate(ops):
        if opt.stream and useq[0] is None and i + opt.la + 4 >= ug.first:
            useq[0] = ucheck_issue(S, 19)
        while pend and pend[0].first <= i + opt.la:
            if opt.stream and pend[0] is ug and not useq[1]:
                ucheck(a, S, useq[0], 19, "D"); useq[1] = True
            if pend[0].kind == "F":
                S.load(pend.pop(0)); continue
            slot = next((s for s in range(8) if ring[s] < i), None)
            if slot is None:
                assert pend[0].first > i
                break
            g = pend.pop(0); ring[slot] = g.last; g.reg = dG + 4 * slot; S.load(g)
        for t in range(2, 8):
            if t not in pinfo and i >= endpos[t] - 3:
                assert not side
                issue_partial(t)
        if op[0] == "end":
            queue_out(op[1])
            continue
        t, f, g, first = op
        S.wait(max(f.seq, g.seq))
        ac = dACC + 4 * (t % 3)
        S.ins(f"{MF} {R(ac,4)}, {R(f.reg,4)}, {R(g.reg,4)}, {'0' if first else R(ac,4)}")
        acc_last[t] = S.n
        if side and side[0][0] <= S.n: side.pop(0)[1]()
        if t == 7 and side and side[0][0] <= S.n: side.pop(0)[1]()
    while side:
        rn, fn = side.pop(0); S.until(rn); fn()

def level_frags():
    K = {}
    for d in (2, 3, 4):
        for h in (0, 1): K[("T2", d, h)] = Frag("T2", (d, h), lT2 + 4 * ((d - 2) * 2 + h))
    for d in (4, 5, 6): K[("T3", d)] = Frag("T3", d, lT3 + 4 * (d - 4))
    K[("T3", 7)] = Frag("T3", 7, lACC + 16)
    K["FX"] = Frag("FX", 0, lFX)
    K["F5"] = Frag("F", 528, lF5)
    return K

def emit_level(a, opt, S, K):
    acc = lambda t: lACC + 4 * (t - 2)
    inited = set()
    acc_last = {}
    vq = []
    wr = {}
    def drain(k):
        while k > 0 and vq and vq[0][0] <= S.n:
            rn, txt, key = vq.pop(0); S.ins(txt); wr[key] = S.n + 2; k -= 1
    def force(key):
        while any(q[2] == key for q in vq):
            rn, txt, kk = vq.pop(0); S.until(rn); S.ins(txt); wr[kk] = S.n + 2
    def need(f):
        if not f.issued: S.load(f)
        S.wait(f.seq)
    def mf(d, A, B, c):
        S.ins(f"{MF} {R(d,4)}, {R(A,4)}, {R(B,4)}, {c}")
        n = S.n
        drain(opt.lint)
        return n
    def am(t, A, B):
        c = R(acc(t), 4) if t in inited else "0"
        inited.add(t)
        acc_last[t] = mf(acc(t), A, B, c)
    G0 = [Frag("G", 256 * b - 16, lG) for b in range(6)]
    GM = [Frag("G", 256 * b - 24, lG + 4) for b in range(6)]
    S.load(G0[0]); S.load(GM[0])
    order = ["F5", "FX", ("T2", 2, 0), ("T2", 3, 0), ("T2", 4, 0), ("T2", 2, 1), ("T2", 3, 1), ("T2", 4, 1), ("T3", 7), ("T3", 4), ("T3", 5), ("T3", 6)]
    lazy = [K[k] for k in order if not K[k].issued]
    tsets = [[12, 16], [8, 56]]
    def publish(t):
        S.until(acc_last[t] + 8)
        S.lds(f"ds_write_b128 v{vPA}, {R(acc(t),4)} offset:{(t-2)*1024}")
        S.lds(f"ds_write_b32 v{vFA}, v{vONE} offset:{4*t}")
        if opt.stamps == 2:
            stamp(a, opt, 10 + t, True); S.done = S.lds_n
    def uses(b, h):
        if b < 0: return
        if h < 2: lst = [(b + d, K[("T2", d, h)]) for d in (2, 3, 4) if b + d <= 7]
        else: lst = [(b + d, K[("T3", d)]) for d in (7, 4, 5, 6) if b + d <= 7 and b <= 3]
        if lst: force((b, h))
        for t, f in lst:
            need(f); S.until(wr[(b, h)]); am(t, lW + 4 * h, f.reg)
    grp = 0
    prevkey = None
    for nb in range(7):
        b = nb - 1
        pairs = []
        if nb <= 5:
            g0, gm = G0[nb], GM[nb]
            pairs = [[(g0, 3), (g0, 5)], [(gm, 3), (gm, 5)]]
            if nb <= 3: pairs.append([(g0, 7), (gm, 9)])
        if opt.lprio == 2 and nb == 2: S.ins(f"s_setprio {opt.dconv}")
        for h in range(3):
            newv = []
            for _ in range(3):
                if lazy: S.load(lazy.pop(0))
            if h < len(pairs):
                tm = tsets[grp % 2]; grp += 1
                for q in list(vq):
                    if q[2] != prevkey: force(q[2])
                for j, (g, box) in enumerate(pairs[h]):
                    need(g)
                    n = mf(tm[j], g.reg, BOX[box], "0")
                    dst = lW + 4 * h + 2 * j
                    newv.append((n + 8, f"v_cvt_pk_bf16_f32 v{dst}, v{tm[j]}, v{tm[j]+1}", (nb, h)))
                    newv.append((n + 8, f"v_cvt_pk_bf16_f32 v{dst+1}, v{tm[j]+2}, v{tm[j]+3}", (nb, h)))
                if h == 0:
                    need(K["F5"]); am(nb + 2, K["F5"].reg, g0.reg)
                if h == 1 and nb <= 3:
                    need(K["FX"]); am(nb + 4, K["FX"].reg, g0.reg)
                if opt.stream and nb == 3 and h == 0: useq = ucheck_issue(S, 1)
                if h == len(pairs) - 1 and nb < 5:
                    if opt.stream and nb == 3: ucheck(a, S, useq, 1, "L")
                    S.load(G0[nb + 1]); S.load(GM[nb + 1])
            uses(b, h)
            if h == 2 and b >= 0: publish(b + 2)
            if newv:
                vq.extend(newv); prevkey = (nb, h)

def generate(opt):
    a = Asm()
    hdr = open("cdna_kernels/" + NAME + ".s.ref").read().split("\n")
    top = [l for l in hdr if l.startswith(";") and "@launch" not in l and "Override launch" not in l and "grid=ceil" not in l]
    out = "\n".join(top) + "\n"
    out += f"; @launch grid=(200,1,1) block=(1024,1,1) lds={LDS_TOTAL}\n"
    out += f""".amdgcn_target "amdgcn-amd-amdhsa--gfx950"
.text
.globl {NAME}_kernel
.p2align 8
.type {NAME}_kernel,@function
{NAME}_kernel:
"""
    stamp(a, opt, 0)
    if opt.stamps: a("s_memrealtime s[100:101]")
    a(f"""
s_and_b32 s3, s2, 7
s_mul_i32 s3, s3, 25
s_lshr_b32 s4, s2, 3
s_add_u32 s3, s3, s4
s_cmp_ge_u32 s3, 99
s_cselect_b32 s6, 56, 0
s_load_dwordx16 s[16:31], s[0:1], s6
s_load_dwordx2 s[32:33], s[0:1], 112
v_lshrrev_b32 v2, 6, v0
s_cselect_b32 s7, 9, 0
s_cselect_b32 s48, 1152, 0
v_readfirstlane_b32 s44, v2
s_cmp_ge_u32 s2, 200
s_cbranch_scc1 L_end
s_cmp_ge_u32 s3, 198
s_cbranch_scc1 L_end
v_and_b32 v{vLANE}, 63, v0
s_mul_i32 s4, s3, 5958
s_lshr_b32 s4, s4, 16
s_mul_i32 s5, s4, 11
s_sub_u32 s59, s3, s5
s_mul_i32 s5, s59, 6
s_min_u32 s5, s5, 58
s_sub_u32 s4, s4, s7
s_lshl_b32 s4, s4, 6
s_add_u32 s5, s5, s4
s_setprio 3
s_cmp_ge_u32 s44, 12
s_cbranch_scc1 L_mem0
s_sub_u32 s45, s44, 6
s_cmp_ge_u32 s44, 6
s_cselect_b32 s45, s45, s44
s_cselect_b32 s62, 1, 0
s_add_u32 s46, s5, s45
s_lshl_b32 s8, s46, 8
v_lshl_add_u32 v20, v{vLANE}, 2, s8
s_lshl_b32 s8, s46, 1
s_and_b32 s8, s8, -4
s_waitcnt lgkmcnt(0)
global_load_dword v{vP}, v20, s[18:19]
global_load_dword v{vP+1}, v20, s[20:21]
global_load_dword v{vP+2}, v20, s[22:23]
global_load_dword v{vP+3}, v20, s[24:25]
s_load_dword s40, s[26:27], s8
s_load_dword s41, s[28:29], s8
s_barrier
s_branch L_comp
L_mem0:
v_mov_b32 v8, 0
v_mov_b32 v9, 0
v_mov_b32 v10, 0
v_mov_b32 v11, 0
v_lshlrev_b32 v7, 4, v{vLANE}
ds_write_b128 v7, v[8:11] offset:{FL}
""")
    if opt.codepf:
        a(f"""
s_getpc_b64 s[52:53]
L_pc:
v_subrev_u32 v6, 768, v0
v_lshlrev_b32 v6, 7, v6
v_cmp_gt_u32 vcc, L_codeend-L_pc, v6
s_and_saveexec_b64 s[12:13], vcc
s_cbranch_execz L_nocpf
global_load_dword v12, v6, s[52:53]
L_nocpf:
s_mov_b64 exec, s[12:13]
""")
    a(f"""
s_lshl_b32 s47, s5, 1
s_sub_u32 s45, s44, 12
s_mul_i32 s9, s45, {256*1152}
s_add_u32 s9, s9, s47
s_add_u32 s10, s9, {1024*1152}
v_mul_u32_u24 v{vUO}, {4*1152}, v{vLANE}
s_mul_i32 s8, s59, 192
s_sub_u32 s8, s8, 768
v_add_u32 v6, s8, v0
v_mul_u32_u24 v6, 1152, v6
s_cmp_eq_u32 s45, 3
s_waitcnt lgkmcnt(0)
s_mov_b32 s18, {2048*1152}
s_mov_b32 s19, 0x00020000
s_barrier
""")
    if opt.upf:
        a(f"""
s_cbranch_scc1 L_noupf
buffer_load_dword v13, v6, s[16:19], s47 offen
L_noupf:
""")
    stamp(a, opt, 1)
    for k in range(8):
        tile, e = k // 4, k % 4
        a(f"buffer_load_dwordx3 {R(mUD+4*k,3)}, v{vUO}, s[16:19], s{9+tile} offen offset:{e*1152}")
    stamp(a, opt, 2)
    a(f"""
s_branch L_mem
L_comp:
""")
    stamp(a, opt, 1)
    a(f"""
s_mul_i32 s57, s45, {KCH}
s_add_u32 s57, s57, {KA}
s_lshl_b32 s8, s62, 12
s_add_u32 s8, s8, s57
v_mov_b32 v24, 0
v_mov_b32 v25, 0
v_mov_b32 v26, 0
v_mov_b32 v27, 0
v_lshl_add_u32 v23, v{vLANE}, 4, s8
v_and_b32 v22, 15, v{vLANE}
s_add_u32 s8, s57, 8192
v_lshl_add_u32 v22, v22, 4, s8
""")
    for k in range(4):
        a(f"ds_write_b128 v23, v[24:27] offset:{k*1024}")
    a(f"""
ds_write_b128 v22, v[24:27]
s_mov_b32 s34, 0x40000
s_mov_b32 s49, 0x01000c0c
s_cmp_lg_u32 s62, 0
s_cselect_b32 s49, 0x03020c0c, s49
v_mov_b32 v{vONE}, 1
s_mul_i32 s61, s45, {CHB}
s_mul_i32 s60, s62, {STGW}
s_add_u32 s60, s60, s61
s_mov_b32 m0, s60
s_mul_i32 s56, s45, {UCH}
s_add_u32 s56, s56, {UB}
s_mov_b32 s12, 0xbfb8aa3b
s_mov_b32 s13, 0x3e22f983
s_mov_b32 s14, 0x41000000
s_mov_b32 s15, 0x43800000
s_mov_b32 s63, 0x3fb8aa3b
s_movk_i32 s9, {PITCH}
s_mov_b32 s10, 0x76543210
s_mov_b32 s11, 0xfebbba88
v_and_b32 v20, 15, v{vLANE}
v_and_b32 v21, 48, v{vLANE}
v_lshl_add_u32 v22, v20, 5, v21
v_add_u32 v{vU}, s56, v22
v_and_b32 v23, 3, v20
v_sub_u32 v23, 3, v23
v_mul_u32_u24 v23, {KCP}, v23
v_and_b32 v24, 12, v20
v_lshlrev_b32 v24, 1, v24
v_sub_u32 v23, v23, v24
v_add_u32 v23, s57, v23
v_add_u32 v{vKF}, v23, v21
v_lshrrev_b32 v24, 1, v21
v_add_u32 v{vKT}, v23, v24
v_add_u32 v24, s60, v21
v_mad_u32_u24 v{vSR}, v20, s9, v24
v_min_u32 v25, 8, v20
v_mad_u32_u24 v{vSL1}, v25, s9, v24
v_lshlrev_b32 v25, 2, v20
v_lshrrev_b64 v[26:27], v25, s[10:11]
v_and_b32 v26, 15, v26
v_mad_u32_u24 v{vSL0}, v26, s9, v24
v_and_b32 v25, 32, v{vLANE}
v_and_b32 v26, 16, v{vLANE}
v_lshl_add_u32 v25, v25, 5, v26
v_lshl_add_u32 v25, v20, 5, v25
v_add_u32 v{vPW0}, s60, v25
v_lshl_add_u32 v25, v21, 1, v20
s_add_u32 s8, s60, 2048
v_lshl_add_u32 v{vPW1}, v25, 4, s8
s_cmp_lg_u32 s62, 0
s_cbranch_scc1 L_proL
s_add_u32 s8, s57, 1072
v_lshlrev_b32 v25, 4, v{vLANE}
v_sub_u32 v{vKD}, s8, v25
s_branch L_prodone
L_proL:
v_and_b32 v25, -2, v{vLANE}
v_sub_u32 v25, s57, v25
v_and_b32 v26, 1, v{vLANE}
v_mul_i32_i24 v27, {2*(719-848)}, v26
s_movk_i32 s8, {2*848}
v_add3_u32 v{vC8}, v25, v27, s8
v_mul_i32_i24 v27, {2*(783-655)}, v26
s_movk_i32 s8, {2*655}
v_add3_u32 v{vC9}, v25, v27, s8
v_mul_i32_i24 v27, {2*(895-976)}, v26
s_movk_i32 s8, {2*976}
v_add3_u32 v{vC11}, v25, v27, s8
v_add_u32 v{vC10}, 64, v{vC11}
s_add_u32 s8, s57, {2*DUMMY}
v_writelane_b32 v{vC8}, s8, 0
v_mov_b32 v25, s8
s_add_u32 s8, s57, {2*816}
v_writelane_b32 v{vC10}, s8, 0
s_add_u32 s8, s57, {2*(ZD-509)}
v_cmp_gt_u32 vcc, 6, v{vLANE}
v_lshlrev_b32 v26, 1, v{vLANE}
v_sub_u32 v26, s8, v26
v_cndmask_b32 v{vC12}, v25, v26, vcc
s_add_u32 s8, s57, {2*(ZX-1027)}
v_writelane_b32 v{vC12}, s8, 6
s_add_u32 s8, s57, {2*(ZX-1028)}
v_writelane_b32 v{vC12}, s8, 7
s_add_u32 s8, s57, {2*(Z3[1]-127)}
v_writelane_b32 v{vC12}, s8, 8
L_prodone:
s_waitcnt lgkmcnt(0)
s_lshl_b32 s8, s40, 16
s_and_b32 s40, s40, 0xffff0000
s_lshl_b32 s9, s41, 16
s_and_b32 s41, s41, 0xffff0000
s_bitcmp0_b32 s46, 0
s_cselect_b32 s40, s8, s40
s_cselect_b32 s41, s9, s41
v_mov_b32 v{vDT}, s63
v_mov_b32 v{vDSK}, 0
v_mul_f32 v{vDT}, s40, v{vDT}
v_writelane_b32 v{vDSK}, s41, 0
v_exp_f32 v{vDT}, v{vDT}
""")
    stamp(a, opt, 2)
    a(f"s_waitcnt vmcnt(0)")
    stamp(a, opt, 3)
    if opt.dprio == 1: a("s_setprio 2")
    elif opt.dprio == 0: a("s_setprio 0")
    else:
        b_ = opt.dprio - 2
        a(f"""
s_setprio {b_}
s_cmp_ge_u32 s45, 4
s_cbranch_scc1 L_prset
s_setprio {b_+1}
s_cmp_ge_u32 s45, 2
s_cbranch_scc1 L_prset
s_setprio {b_+2}
L_prset:
""")
    AB, CC, TA, TB = 52, 54, 56, 58
    LS = {0: 60, 2: 62, 4: 64, 6: 66}
    a(f"""
v_perm_b32 v{TA}, v{vP}, v{vP}, s49
v_mul_f32 v{TA}, s63, v{TA}
v_exp_f32 v{TA}, v{TA}
v_perm_b32 v{TA+1}, v{vP+1}, v{vP+1}, s49
v_cvt_pk_bf16_f32 v{vDT}, v{vDT}, v{TA}
v_perm_b32 v{CC}, v{vP+2}, v{vP+2}, s49
v_and_b32 v{TA}, 0xffff0000, v{vDT}
v_lshlrev_b32 v{vDT}, 16, v{vDT}
v_perm_b32 v{CC+1}, v{vP+3}, v{vP+3}, s49
v_pk_mul_f32 {R(AB,2)}, {R(TA,2)}, {R(vDT,2)} op_sel_hi:[1,0]
v_add_f32 v{vC2}, v{vDT}, v{vDT}
v_pk_mul_f32 {R(AB,2)}, {R(AB,2)}, s[12:13]
v_pk_mul_f32 {R(LS[0],2)}, {R(CC,2)}, {R(vC2,2)} op_sel_hi:[1,0]
v_pk_mul_f32 {R(TA,2)}, {R(AB,2)}, s[14:15] op_sel_hi:[1,0]
v_pk_mul_f32 {R(TB,2)}, {R(AB,2)}, s[14:15] op_sel:[0,1] op_sel_hi:[1,1]
v_fract_f32 v{AB+1}, v{AB+1}
v_exp_f32 v{AB}, v{AB}
v_cos_f32 v{Z_}, v{AB+1}
v_sin_f32 v{Z_+1}, v{AB+1}
v_fract_f32 v{TB+1}, v{TB+1}
v_pk_mul_f32 {R(Z_,2)}, {R(Z_,2)}, {R(AB,2)} op_sel_hi:[1,0]
v_exp_f32 v{TB}, v{TB}
v_cos_f32 v{ZZ}, v{TB+1}
v_sin_f32 v{ZZ+1}, v{TB+1}
v_fract_f32 v{TA+1}, v{TA+1}
v_pk_mul_f32 {R(ZZ,2)}, {R(ZZ,2)}, {R(TB,2)} op_sel_hi:[1,0]
v_exp_f32 v{TA}, v{TA}
v_cos_f32 v{W_}, v{TA+1}
v_sin_f32_e64 v{W_+1}, -v{TA+1}
s_nop 0
v_pk_mul_f32 {R(W_,2)}, {R(W_,2)}, {R(TA,2)} op_sel_hi:[1,0]
""")
    if opt.stamps == 1: stamp(a, opt, 10)
    pend = []
    tc = [0]
    def flush():
        for t, slot in pend: a(f"ds_write_addtid_b32 v{t} offset:{PITCH*slot}")
        pend.clear()
    def put(reg, slot):
        t = T_[tc[0] % 4]; tc[0] += 1
        a(f"v_cvt_pk_bf16_f32 v{t}, v{reg}, v{reg+1}")
        pend.append((t, slot))
        if len(pend) == opt.batch: flush()
    put(LS[0], 0)
    cur = LS[0]
    for b in range(1, 8):
        nxt = LS[b] if b in LS else X_
        cmul(a, nxt, cur, Z_); put(nxt, b); cur = nxt
    cmul(a, X_, LS[2], ZZ); put(X_, 10)
    cmul(a, Y_, LS[6], ZZ); put(Y_, 14)
    cmul(a, LS[2], LS[0], ZZ); put(LS[2], 8)
    cmul(a, LS[6], LS[4], ZZ); put(LS[6], 11)
    cmul(a, X_, LS[2], W_, conj=True); put(X_, 15)
    flush()
    for k in range(4): a(f"ds_read_b128 {R(vLF+4*k,4)}, v{vSL0} offset:{64*k}")
    if opt.dprio == 1: a("s_setprio 1")
    cmul(a, X_, LS[6], ZZ); put(X_, 1)
    cmul(a, Y_, X_, ZZ); put(Y_, 5)
    cur = LS[2]
    for b, slot in ((512, 0), (768, 4), (1024, 2), (1280, 6), (1536, 3), (1792, 7), (2048, 8)):
        nxt = X_ if cur != X_ else Y_
        cmul(a, nxt, cur, ZZ); put(nxt, slot); cur = nxt
    flush()
    for k in range(4): a(f"ds_read_b128 {R(vLF+16+4*k,4)}, v{vSL1} offset:{64*k}")
    if opt.stamps == 1: stamp(a, opt, 11)
    t = T_[tc[0] % 4]; tc[0] += 1
    a(f"v_mov_b32 v{t}, 0x3f80"); pend.append((t, 0))
    if len(pend) == opt.batch: flush()
    put(W_, 1)
    cur = W_
    for n in range(2):
        for j in range(16 * n, 16 * n + 16):
            if j < 2: continue
            nxt = X_ if cur != X_ else Y_
            cmul(a, nxt, cur, W_); put(nxt, j & 15); cur = nxt
            if opt.dprio == 1 and j == 11: a("s_setprio 0")
            if n == 1 and j == 19:
                a(f"s_waitcnt lgkmcnt({4 - len(pend)})")
            if n == 1 and 19 <= j < 27:
                k, m = (j - 19) // 2, (j - 19) % 2
                dd = vD + 8 * m
                a(f"{MF} {R(dd,4)}, {R(vLF+16*m+4*k,4)}, {R(vRF+4*k,4)}, {'0' if k == 0 else R(dd,4)}")
        flush()
        if n == 1 and opt.stamps == 1: stamp(a, opt, 12, True)
        for k in range(4): a(f"ds_read_b128 {R(vRF+4*k,4)}, v{vSR} offset:{64*k}")
    for k in range(4):
        a(f"s_waitcnt lgkmcnt({3-k})")
        for m in range(2):
            dd = vD + 8 * m + 4
            a(f"{MF} {R(dd,4)}, {R(vLF+16*m+4*k,4)}, {R(vRF+4*k,4)}, {'0' if k == 0 else R(dd,4)}")
    a(f"""
ds_write_b128 v{vPW0}, {R(vD,4)}
ds_write_b128 v{vPW1}, {R(vD+8,4)}
v_lshlrev_b32 v19, 4, v{vLANE}
s_add_u32 s8, s61, {OUTO}
s_lshl_b32 s9, s45, 4
s_add_u32 s9, s9, {FL + 32}
s_lshl_b32 s10, s45, 5
s_add_u32 s10, s10, {FLP}
s_lshl_b32 s11, s45, 2
s_add_u32 s11, s11, {FLO}
v_mov_b32 v{vPF}, s9
v_lshl_add_u32 v18, s62, 2, v{vPF}
ds_write_b128 v{vPW0}, {R(vD+4,4)} offset:512
ds_write_b128 v{vPW1}, {R(vD+12,4)} offset:256
ds_write_b32 v18, v{vONE}
v_lshl_add_u32 v{vOW}, v{vLANE}, 3, s8
v_add_u32 v{vPA}, s61, v19
v_mov_b32 v{vFA}, s10
v_mov_b32 v{vFO}, s11
v_and_b32 v{vFU}, 3, v{vLANE}
v_lshlrev_b32 v{vFU}, 2, v{vFU}
v_add_u32 v{vFU}, {FL}, v{vFU}
s_setprio 3
""")
    if opt.stamps == 1: stamp(a, opt, 13)
    wait_flags(a, [(20, vPF, 0), (21, vPF, 4)], "px")
    stamp(a, opt, 4)
    a("""
s_cmp_lg_u32 s62, 0
s_cbranch_scc1 L_expL
""")
    A_, B_, Pv, E, O, E2, O2 = 88, 100, 96, 108, 112, 116, 120
    d = lambda k: A_ + k
    a(f"""
v_lshl_add_u32 v19, v{vLANE}, 5, s61
ds_read_b128 {R(A_,4)}, v19
ds_read_b128 {R(B_,4)}, v19 offset:{STGW}
ds_read_b128 {R(A_+4,4)}, v19 offset:16
ds_read_b128 {R(B_+4,4)}, v19 offset:{STGW+16}
s_waitcnt lgkmcnt(0)
v_pk_add_f32 {R(A_+4,2)}, {R(A_+4,2)}, {R(B_+4,2)}
v_pk_add_f32 {R(A_+6,2)}, {R(A_+6,2)}, {R(B_+6,2)}
v_pk_add_f32 {R(A_,2)}, {R(A_,2)}, {R(B_,2)}
v_pk_add_f32 {R(A_+2,2)}, {R(A_+2,2)}, {R(B_+2,2)}
v_mov_b32_dpp v{Pv}, v{d(5)} wave_shr:1 row_mask:0xf bank_mask:0xf bound_ctrl:0
v_mov_b32_dpp v{Pv+1}, v{d(6)} wave_shr:1 row_mask:0xf bank_mask:0xf bound_ctrl:0
v_mov_b32_dpp v{Pv+2}, v{d(7)} wave_shr:1 row_mask:0xf bank_mask:0xf bound_ctrl:0
v_add_f32 v{d(0)}, v{d(0)}, v{vDSK}
v_cvt_pk_bf16_f32 v{E}, v{d(7)}, v{d(6)}
v_cvt_pk_bf16_f32 v{E+1}, v{d(5)}, v{d(4)}
v_cvt_pk_bf16_f32 v{E+2}, v{d(3)}, v{d(2)}
v_cvt_pk_bf16_f32 v{E+3}, v{d(1)}, v{d(0)}
ds_write_b128 v{vKD}, {R(E,4)}
v_cvt_pk_bf16_f32 v{O}, v{d(6)}, v{d(5)}
v_cvt_pk_bf16_f32 v{O+1}, v{d(4)}, v{d(3)}
v_cvt_pk_bf16_f32 v{O+2}, v{d(2)}, v{d(1)}
v_cvt_pk_bf16_f32 v{O+3}, v{d(0)}, v{Pv+2}
ds_write_b128 v{vKD}, {R(O,4)} offset:{KCP}
v_mov_b32 v{E2}, v{E+1}
v_mov_b32 v{E2+1}, v{E+2}
v_mov_b32 v{E2+2}, v{E+3}
v_cvt_pk_bf16_f32 v{E2+3}, v{Pv+2}, v{Pv+1}
ds_write_b128 v{vKD}, {R(E2,4)} offset:{2*KCP}
v_mov_b32 v{O2}, v{O+1}
v_mov_b32 v{O2+1}, v{O+2}
v_mov_b32 v{O2+2}, v{O+3}
v_cvt_pk_bf16_f32 v{O2+3}, v{Pv+1}, v{Pv}
ds_write_b128 v{vKD}, {R(O2,4)} offset:{3*KCP}
""")
    a(f"ds_write_b32 v{vPF}, v{vONE} offset:8")
    stamp(a, opt, 5)
    SD = Stream(a)
    F = {16 + 32 * s: Frag("F", 16 + 32 * s, dF + 4 * s) for s in range(16)}
    for k in range(opt.pre):
        SD.load(F[16 + 32 * (k // 2) + 256 * (k % 2)])
    a(f"s_setprio {opt.dconv}")
    wait_flags(a, [(18, vFU, 0), (19, vPF, 12)], "d")
    SD.done = SD.lds_n
    stamp(a, opt, 7, True)
    emit_dense(a, opt, SD, F)
    a("s_branch L_fin")
    a.label("L_expL")
    a(f"""
s_add_u32 s8, s61, 2032
v_mov_b32 v20, s8
v_add_u32 v19, s61, v19
ds_read_b128 v[68:71], v19 offset:2048
ds_read_b128 v[72:75], v19 offset:{2048+STGW}
ds_read_b128 v[76:79], v20
ds_read_b128 v[80:83], v20 offset:{STGW}
ds_read_b32 v84, v20 offset:{2048+8-2032}
ds_read_b32 v85, v20 offset:{2048+8-2032+STGW}
ds_read_b32 v86, v20 offset:{3072-2032}
ds_read_b32 v87, v20 offset:{3072-2032+STGW}
s_mov_b64 s[8:9], 1
s_mov_b64 s[10:11], 2
s_mov_b64 s[12:13], 0xc0
s_mov_b64 s[14:15], 0x100
s_waitcnt lgkmcnt(6)
v_pk_add_f32 v[68:69], v[68:69], v[72:73]
v_pk_add_f32 v[70:71], v[70:71], v[74:75]
v_cvt_pk_bf16_f32 v72, v68, v69
v_cvt_pk_bf16_f32 v73, v70, v71
""")
    for sg in range(4):
        o = sg * (KCP - 2)
        a(f"ds_write_b16 v{vC8}, v72 offset:{o}")
        a(f"ds_write_b16_d16_hi v{vC9}, v72 offset:{o}")
        a(f"ds_write_b16 v{vC10}, v73 offset:{o}")
        a(f"ds_write_b16_d16_hi v{vC11}, v73 offset:{o}")
    a(f"""
s_waitcnt lgkmcnt(15)
v_add_f32 v77, v77, v81
v_pk_add_f32 v[78:79], v[78:79], v[82:83]
v_add_f32 v84, v84, v85
v_add_f32 v86, v86, v87
v_cndmask_b32 v79, v79, v77, s[8:9]
v_cndmask_b32 v79, v79, v78, s[10:11]
v_cndmask_b32 v79, v79, v84, s[12:13]
v_cndmask_b32 v79, v79, v86, s[14:15]
v_cvt_pk_bf16_f32 v74, v79, v79
""")
    for sg in range(4):
        a(f"ds_write_b16 v{vC12}, v74 offset:{sg*(KCP-2)}")
    a(f"v_lshlrev_b32 v19, 4, v{vLANE}")
    a(f"v_add_u32 v19, {BOXL}, v19")
    a(f"ds_write_b32 v{vPF}, v{vONE} offset:12")
    stamp(a, opt, 5)
    SL = Stream(a)
    LK = level_frags()
    for k in ["FX", ("T2", 2, 0), ("T2", 3, 0), ("T2", 4, 0), ("T2", 2, 1), ("T2", 3, 1), ("T2", 4, 1), ("T3", 7), ("T3", 4), ("T3", 5), ("T3", 6)][:opt.prel]:
        SL.load(LK[k])
    a(f"s_setprio {opt.dconv + (1 if opt.lprio else 0)}")
    wait_flags(a, [(16, vFU, 0), (17, vPF, 8)], "l")
    SL.done = SL.lds_n
    stamp(a, opt, 7, True)
    for j, wdt in enumerate((3, 5, 7, 9)):
        SL.lds(f"ds_read_b128 {R(BOX[wdt],4)}, v19 offset:{1024*j}")
    if not opt.nol: emit_level(a, opt, SL, LK)
    a("s_branch L_fin")
    a.label("L_mem")
    a(f"""
s_add_u32 s48, s48, s47
s_mov_b32 s34, {2048*2304}
s_mov_b32 s35, 0x00020000
s_mov_b32 s50, 0x05040100
s_mov_b32 s51, 0x07060302
s_mov_b32 s36, 0x40000
v_and_b32 v4, 15, v{vLANE}
v_lshrrev_b32 v5, 4, v{vLANE}
v_lshlrev_b32 v6, 3, v5
v_sub_u32 v6, v6, v4
v_add_u32 v6, 15, v6
v_min_u32 v6, 31, v6
s_mov_b32 s11, {((1<<3)-1) << (11+15):#x}
s_cmp_eq_u32 s45, 1
s_cselect_b32 s11, {((1<<5)-1) << (6+15):#x}, s11
s_cmp_eq_u32 s45, 2
s_cselect_b32 s11, {((1<<7)-1) << (5+15):#x}, s11
s_cmp_eq_u32 s45, 3
s_cselect_b32 s11, {((1<<9)-1) << (4+15):#x}, s11
s_mov_b32 s8, 0x8001
s_mov_b32 s12, 0x10001
s_mov_b32 s10, 0x3f80
v_lshrrev_b32 v7, v6, s11
""")
    for w in range(4):
        d_ = 8 + w
        a(f"v_bfe_u32 v{d_}, v7, {2*w}, 2\nv_mul_u32_u24 v{d_}, s8, v{d_}\nv_and_b32 v{d_}, s12, v{d_}\nv_mul_u32_u24 v{d_}, s10, v{d_}")
    a(f"""
s_lshl_b32 s8, s45, 10
s_add_u32 s8, s8, {BOXL}
v_lshl_add_u32 v6, v{vLANE}, 4, s8
ds_write_b128 v6, v[8:11]
v_lshl_add_u32 v4, v4, 2, v5
v_mul_u32_u24 v{vST}, {4*2304}, v4
s_lshl_b32 s8, s45, 9
s_add_u32 s8, s8, {UB + 512}
v_lshl_add_u32 v{vX}, v{vLANE}, 3, s8
v_lshlrev_b32 v4, 3, v{vLANE}
v_min_u32 v5, 5, v{vLANE}
v_lshlrev_b32 v5, 2, v5
v_add_u32 v{vST}, s48, v{vST}
s_lshl_b32 s8, s45, 2
s_add_u32 s8, s8, {FL}
v_mov_b32 v14, s8
v_mov_b32 v{vONE}, 1
v_mov_b32 v8, 0
v_mov_b32 v9, 0
v_mov_b32 v10, 0
v_mov_b32 v11, 0
v_subrev_u32 v6, 768, v0
v_lshrrev_b32 v7, 5, v6
v_min_u32 v7, 5, v7
v_mul_u32_u24 v7, {UCH}, v7
v_and_b32 v6, 31, v6
v_lshl_add_u32 v6, v6, 4, v7
v_add_u32 v6, {UB}, v6
ds_write_b128 v6, v[8:11]
""")
    stamp(a, opt, 4)
    for tile in range(2):
        a(f"s_waitcnt vmcnt({4 - 4*tile})")
        q = lambda e, m: mUD + 4 * (4 * tile + e) + m
        for m in range(3):
            for hi in range(2):
                t = mT + 2 * ((2 * m + hi) % 4)
                a(f"v_perm_b32 v{t}, v{q(1,m)}, v{q(0,m)}, s{50+hi}")
                a(f"v_perm_b32 v{t+1}, v{q(3,m)}, v{q(2,m)}, s{50+hi}")
                a(f"ds_write_b64 v{vX}, {R(t,2)} offset:{(2*m+hi)*UCH + 2048*tile}")
        a(f"ds_write_b32 v14, v{vONE} offset:{16*tile}")
        stamp(a, opt, 6 if tile == 0 else 11)
    a(f"""
s_mov_b32 s56, s45
L_mtile:
s_lshl_b32 s8, s56, 5
s_add_u32 s8, s8, {FLO}
v_add_u32 v6, s8, v5
s_lshl_b32 s8, s56, 9
s_add_u32 s8, s8, {OUTO}
v_add_u32 v7, s8, v4
s_mul_i32 s57, s56, {256*2304}
L_mpoll:
s_sleep {opt.msleep}
ds_read_b32 v8, v6
s_waitcnt lgkmcnt(0)
s_sub_u32 s36, s36, 1
s_cbranch_scc1 L_mgo
v_cmp_eq_u32 vcc, 0, v8
s_cbranch_vccnz L_mpoll
L_mgo:
""")
    for c in range(6):
        a(f"ds_read_b64 {R(mIN+2*c,2)}, v7 offset:{CHB*c}")
    for e in range(4):
        if e == 0: a("s_waitcnt lgkmcnt(0)")
        for m in range(3):
            a(f"v_perm_b32 v{mSO+4*e+m}, v{mIN+2*(2*m+1)+(e>>1)}, v{mIN+2*(2*m)+(e>>1)}, s{50+(e&1)}")
        a(f"buffer_store_dwordx3 {R(mSO+4*e,3)}, v{vST}, s[32:35], s57 offen")
        if e < 3: a("s_add_u32 s57, s57, 2304")
    if opt.stamps:
        a("s_cmp_ge_u32 s56, 4\ns_cbranch_scc1 L_ms2")
        stamp(a, opt, 10)
        a.label("L_ms2")
    a("""
s_add_u32 s56, s56, 4
s_cmp_lt_u32 s56, 8
s_cbranch_scc1 L_mtile
""")
    a.label("L_fin")
    if opt.dbgst or opt.amp: stamp(a, opt, 8)
    if opt.stamps and not opt.dbgst and not opt.amp:
        stamp(a, opt, 8)
        a("s_waitcnt vmcnt(0)")
        stamp(a, opt, 9)
        a(f"""
s_load_dwordx2 s[8:9], s[0:1], 128
s_waitcnt lgkmcnt(0)
s_lshl_b32 s10, s2, 4
s_add_u32 s10, s10, s44
s_lshl_b32 s10, s10, 7
s_add_u32 s10, s10, {1<<20}
v_mov_b32 v20, s10
""")
        for k in range(1, NST):
            a(f"s_sub_u32 s11, s{64+2*k}, s64\nv_mov_b32 v21, s11\nglobal_store_dword v20, v21, s[8:9] offset:{4*k}")
        a("s_memrealtime s[10:11]\ns_waitcnt lgkmcnt(0)\nv_mov_b32 v21, s10\nglobal_store_dword v20, v21, s[8:9] offset:0")
        a("v_mov_b32 v21, s100\nglobal_store_dword v20, v21, s[8:9] offset:80")
        a("s_getreg_b32 s11, hwreg(HW_REG_HW_ID)\nv_mov_b32 v21, s11\nglobal_store_dword v20, v21, s[8:9] offset:84")
        a("s_getreg_b32 s11, hwreg(HW_REG_XCC_ID)\nv_mov_b32 v21, s11\nglobal_store_dword v20, v21, s[8:9] offset:88")
    if opt.amp:
        a(f"""
s_waitcnt vmcnt(0)
s_memtime s[82:83]
s_waitcnt lgkmcnt(0)
s_cmp_lg_u32 s2, 40
s_cbranch_scc1 L_end
s_cmp_lg_u32 s44, {opt.ampw}
s_cbranch_scc1 L_end
""")
        if opt.amp > 100: a(f"s_mov_b32 s10, {opt.amp}")
        else: a(f"s_sub_u32 s10, s{64+2*opt.amp}, s64\ns_lshl_b32 s10, s10, 2")
        a("""
s_add_u32 s10, s10, s82
L_amp:
s_memtime s[12:13]
s_waitcnt lgkmcnt(0)
s_sub_u32 s11, s12, s10
s_cmp_lt_i32 s11, 0
s_cbranch_scc1 L_amp
""")
    if opt.dbgst:
        a("""
s_waitcnt vmcnt(0)
s_memtime s[82:83]
s_cmp_lg_u32 s2, 40
s_cbranch_scc1 L_end
s_cmp_eq_u32 s44, 4
s_cselect_b32 s10, 0, 32
s_cbranch_scc1 L_dbgw
s_cmp_lg_u32 s44, 15
s_cbranch_scc1 L_end
L_dbgw:
s_load_dwordx2 s[8:9], s[0:1], 120
s_waitcnt lgkmcnt(0)
v_mov_b32 v20, s10
""")
        for j, k in enumerate((1, 2, 3, 4, 6, 7, 8, 9)):
            a(f"s_sub_u32 s11, s{64+2*k}, s64\nv_mov_b32 v21, s11\nglobal_store_dword v20, v21, s[8:9] offset:{4*j}")
    a.label("L_end")
    a("s_endpgm")
    for st in STUBS: a(st)
    a.label("L_codeend")
    out += a.text()
    out += f""".section .rodata,"a"
.p2align 6
.amdhsa_kernel {NAME}_kernel
  .amdhsa_next_free_vgpr 128
  .amdhsa_next_free_sgpr 102
  .amdhsa_accum_offset 128
  .amdhsa_group_segment_fixed_size 0
  .amdhsa_kernarg_size 136
  .amdhsa_user_sgpr_count 2
  .amdhsa_user_sgpr_kernarg_segment_ptr 1
  .amdhsa_system_sgpr_workgroup_id_x 1
.end_amdhsa_kernel
"""
    return out

if __name__ == "__main__":
    p = argparse.ArgumentParser()
    p.add_argument("-o", default="cdna_kernels/" + NAME + ".s")
    p.add_argument("--dump", type=int, default=0)
    p.add_argument("--stamps", type=int, default=0)
    p.add_argument("--la", type=int, default=6)
    p.add_argument("--batch", type=int, default=4)
    p.add_argument("--nol", type=int, default=0)
    p.add_argument("--msleep", type=int, default=1)
    p.add_argument("--lint", type=int, default=1)
    p.add_argument("--stream", type=int, default=1)
    p.add_argument("--dprio", type=int, default=2)
    p.add_argument("--dbgst", type=int, default=0)
    p.add_argument("--amp", type=int, default=0)
    p.add_argument("--ampw", type=int, default=4)
    p.add_argument("--dconv", type=int, default=0)
    p.add_argument("--pre", type=int, default=15)
    p.add_argument("--prel", type=int, default=11)
    p.add_argument("--lprio", type=int, default=1)
    p.add_argument("--codepf", type=int, default=1)
    p.add_argument("--upf", type=int, default=1)
    opt = p.parse_args()
    open(opt.o, "w").write(generate(opt))
```

```python
import sys, argparse

NAME = "concat_heads__ssm_conv_s4d__ssm_conv_s4d__prompt"

PITCH = 288
STGW = 4896
CHB = 10752
OUTO, OFLO = 6144, 10240
FL = 6 * CHB
KA = FL + 1024
KCP = 2112
KCH = 4 * KCP
UB = KA + 6 * KCH
UCH = 4608
BOXL = UB + 6 * UCH
LDS_TOTAL = BOXL + 4096
ZD, ZX = 543, 1615
Z2 = [687 + 64 * m for m in range(4)]
Z3 = [991, 1071]
DUMMY = 1040

vPA, vCF, vONE, vOW = 0, 1, 2, 3
vU, vKF, vKT, vSR, vSL0, vSL1, vPW0 = 4, 5, 6, 7, 8, 9, 10
vKD, vRD = 11, 12
vAC, vAM = 14, 13
BOX = {3: 112, 5: 116, 7: 120, 9: 124}
vLF, vRF, vD = 20, 52, 68
vP = 36
vDT, vDSK, vC2 = 84, 85, 86
Z_, W_, ZZ, X_, Y_ = 88, 90, 92, 94, 96
T_ = [98, 99, 100, 101]
dF, dACC, dG, dPT, dOT, dFLG, dCN, dUT = 20, 84, 96, 12, 16, 18, 8, 10
dTH, dTT = 6, 19
lT2, lT3, lFX, lF5, lACC, lW, lG, lUT = 20, 44, 60, 64, 68, 92, 104, 7
mUD, mT, mIN, mSO = 20, 52, 60, 72
MF = "v_mfma_f32_16x16x32_bf16"

class Asm:
    def __init__(self): self.lines = []
    def __call__(self, s):
        for l in s.strip("\n").split("\n"):
            if not l.strip(): continue
            self.lines.append(l if l.rstrip().endswith(":") and not l.startswith(" ") else "    " + l.strip())
    def label(self, l): self.lines.append(l + ":")
    def text(self): return "\n".join(self.lines) + "\n"

def R(a, n=1): return f"v{a}" if n == 1 else f"v[{a}:{a+n-1}]"

def cmul(a, dst, x, m, conj=False):
    if not conj:
        a(f"v_pk_mul_f32 {R(dst,2)}, {R(x,2)}, {R(m,2)} op_sel:[0,0] op_sel_hi:[0,1]")
        a(f"v_pk_fma_f32 {R(dst,2)}, {R(x,2)}, {R(m,2)}, {R(dst,2)} op_sel:[1,1,0] op_sel_hi:[1,0,1] neg_lo:[0,1,0]")
    else:
        a(f"v_pk_mul_f32 {R(dst,2)}, {R(x,2)}, {R(m,2)} op_sel:[0,0] op_sel_hi:[0,1] neg_hi:[0,1]")
        a(f"v_pk_fma_f32 {R(dst,2)}, {R(x,2)}, {R(m,2)}, {R(dst,2)} op_sel:[1,1,0] op_sel_hi:[1,0,1]")

NST = 18
def stamp(a, opt, idx, wait=False):
    if opt.stamps and idx is not None:
        a(f"s_memtime s[{64+2*idx}:{65+2*idx}]")
        if wait: a("s_waitcnt lgkmcnt(0)")

class Frag:
    def __init__(self, kind, key, reg=None):
        self.kind, self.key, self.reg = kind, key, reg
        self.first = None; self.last = None; self.issued = False; self.seq = -1

def frag_reads(f):
    k = f.key
    if f.kind == "G": return [("ds_read_b128", f.reg, 4, vU, 512 + 2 * k)]
    if f.kind in ("F", "FX"):
        o = 2 * (ZD - 3 - k) if f.kind == "F" else 2 * (ZX - 3 - 1040)
        return [("ds_read_b64", f.reg, 2, vKF, o), ("ds_read_b64", f.reg + 2, 2, vKF, o + 8)]
    if f.kind == "T2":
        d, h = k
        return [("ds_read_b64", f.reg + 2 * j, 2, vKT, 2 * (Z2[2 * h + j] - 3 - 16 * d)) for j in range(2)]
    if f.kind == "T3":
        return [("ds_read_b64", f.reg + 2 * j, 2, vKT, 2 * (Z3[j] - 3 - 16 * k)) for j in range(2)]
    raise ValueError

class Stream:
    def __init__(self, a):
        self.a = a; self.n = 0; self.lds_n = 0; self.done = 0
    def ins(self, s, w=1): self.a(s); self.n += w
    def lds(self, s): self.ins(s); self.lds_n += 1; return self.lds_n
    def wait(self, seq):
        if seq > self.done:
            k = min(self.lds_n - seq, 15)
            self.ins(f"s_waitcnt lgkmcnt({k})"); self.done = self.lds_n - k
    def until(self, n):
        if self.n < n: self.ins(f"s_nop {n - self.n - 1}", n - self.n)
    def load(self, f):
        for (mn, d, n, ar, off) in frag_reads(f):
            f.seq = self.lds(f"{mn} {R(d,n)}, v{ar} offset:{off}")
        f.issued = True

STUBS = []
def wait_flags(a, reads, tag):
    rd = "\n".join(f"ds_read_b32 v{t}, v{vCF} offset:{o}" for t, o in reads)
    comb = "" if len(reads) == 1 else f"v_and_b32 v{reads[0][0]}, v{reads[0][0]}, v{reads[1][0]}\n"
    a.label(f"L_w_{tag}")
    a(f"{rd}\ns_waitcnt lgkmcnt(0)\n{comb}v_cmp_eq_u32 vcc, 0, v{reads[0][0]}\ns_cbranch_vccnz L_ws_{tag}")
    a.label(f"L_wd_{tag}")
    STUBS.append(f"L_ws_{tag}:\ns_sleep 1\ns_sub_u32 s34, s34, 1\ns_cbranch_scc0 L_w_{tag}\ns_branch L_wd_{tag}")

def flag_check(a, S, seq, tmp, off, tag, extra=""):
    S.wait(seq)
    S.ins(f"v_cmp_eq_u32 vcc, 0, v{tmp}")
    S.ins(f"s_cbranch_vccnz L_sp_{tag}")
    a.label(f"L_ok_{tag}")
    STUBS.append(f"""L_sp_{tag}:
s_sleep 1
ds_read_b32 v{tmp}, v{vCF} offset:{off}
{extra}s_waitcnt lgkmcnt(0)
s_sub_u32 s34, s34, 1
s_cbranch_scc1 L_ok_{tag}
v_cmp_eq_u32 vcc, 0, v{tmp}
s_cbranch_vccnz L_sp_{tag}
s_branch L_ok_{tag}""")

def cnt_check(a, S, seq, tmp, rd, val, tag, extra=""):
    S.wait(seq)
    S.ins(f"v_cmp_gt_u32 vcc, {val}, v{tmp}")
    S.ins(f"s_cbranch_vccnz L_sp_{tag}")
    a.label(f"L_ok_{tag}")
    STUBS.append(f"""L_sp_{tag}:
s_sleep 1
{rd}
{extra}s_waitcnt lgkmcnt(0)
s_sub_u32 s34, s34, 1
s_cbranch_scc1 L_ok_{tag}
v_cmp_gt_u32 vcc, {val}, v{tmp}
s_cbranch_vccnz L_sp_{tag}
s_branch L_ok_{tag}""")

def dprio(opt, t): return max(opt.ptop - t // opt.pstep, 0)

def emit_dense(a, opt, S, F):
    ops = []
    for tau in range(8):
        gs = [Frag("G", 256 * tau - 16 - 32 * s) for s in range(8)]
        for s in range(8): gs[s].tile = tau if s == 0 else None
        lag = opt.blk
        for s in range(8 + lag):
            if s < 8: ops.append((tau, F[16 + 32 * s], gs[s], tau == 0 and s == 0))
            if s == 7 and lag: ops.append(("end", tau))
            if tau < 7 and 0 <= s - lag < 8: ops.append((tau + 1, F[272 + 32 * (s - lag)], gs[s - lag], s == lag))
            if s == 7 and not lag: ops.append(("end", tau))
    gl = []
    for i, op in enumerate(ops):
        if op[0] == "end": continue
        for g in (op[1], op[2]):
            if g.first is None:
                g.first = i
                if not g.issued: gl.append(g)
            g.last = i
    endpos = {op[1]: i for i, op in enumerate(ops) if op[0] == "end"}
    tfirst = {g.tile: g.first for g in gl if g.kind == "G" and g.tile is not None}
    ring = [-1] * 8
    acc_last = {}
    side = []
    pinfo = {}
    PRD = f"ds_read_addtid_b32 v{dFLG} offset:{OFLO + 256}"
    def ptxt(t): return f"ds_read_b128 {R(dPT,4)}, v{vPA} offset:{(t-2)*1024}"
    def queue_out(t):
        ac = dACC + 4 * (t % 3)
        rn = acc_last[t] + 8
        if t >= 2:
            if not opt.nol:
                side.append((0, lambda: cnt_check(a, S, pinfo[t], dFLG, PRD, t, f"p{t}", ptxt(t) + "\n")))
            side.append((rn, lambda: (S.ins(f"v_add_f32 v{dPT}, v{dPT}, v{ac}"), S.ins(f"v_add_f32 v{dPT+1}, v{dPT+1}, v{ac+1}"))))
            side.append((rn, lambda: (S.ins(f"v_add_f32 v{dPT+2}, v{dPT+2}, v{ac+2}"), S.ins(f"v_add_f32 v{dPT+3}, v{dPT+3}, v{ac+3}"))))
            src = dPT
        else:
            src = ac
        side.append((rn, lambda: (S.ins(f"v_cvt_pk_bf16_f32 v{dOT}, v{src}, v{src+1}"), S.ins(f"v_cvt_pk_bf16_f32 v{dOT+1}, v{src+2}, v{src+3}"))))
        side.append((rn, lambda: (S.lds(f"ds_write_addtid_b32 v{dOT} offset:{OUTO + 512*t}"), S.ins(f"v_mov_b32 v{dCN}, {t+1}"))))
        side.append((rn, lambda: S.lds(f"ds_write_addtid_b32 v{dOT+1} offset:{OUTO + 512*t + 256}")))
        def fin():
            S.lds(f"ds_write_addtid_b32 v{dCN} offset:{OFLO}")
            if opt.stamps == 2:
                stamp(a, opt, 10 + t, True); S.done = S.lds_n
        side.append((rn, fin))
    pend = list(gl)
    useq = {}
    thr = {}
    for i, op in enumerate(ops):
        if opt.defer and i == 2:
            klseq = S.lds(f"ds_read_b32 v{dFLG}, v{vCF} offset:12")
        for t in range(1, 8):
            if t not in useq and i + opt.la + 3 >= tfirst[t]:
                useq[t] = S.lds(f"ds_read_b32 v{dUT}, v{vCF} offset:{16 + 4*t}")
        while pend and pend[0].first <= i + opt.la:
            if pend[0].kind == "F":
                if opt.defer and pend[0].key == 496: flag_check(a, S, klseq, dFLG, 12, "kl")
                S.load(pend.pop(0)); continue
            slot = next((s for s in range(8) if ring[s] < i), None)
            if slot is None:
                assert pend[0].first > i
                break
            g = pend.pop(0)
            if g.tile: flag_check(a, S, useq[g.tile], dUT, 16 + 4 * g.tile, f"du{g.tile}")
            ring[slot] = g.last; g.reg = dG + 4 * slot; S.load(g)
        for t in range(2, 8):
            if t not in pinfo and i >= endpos[t] - 3:
                while side:
                    rn, fn = side.pop(0); S.until(rn); fn()
                S.lds(PRD)
                pinfo[t] = S.lds(ptxt(t))
        if opt.thr:
            for t in range(opt.thr, 8):
                if t not in thr and i + 5 >= endpos[t - 1]:
                    thr[t] = S.lds(f"ds_read_b32 v{dTT}, v{dTH}")
        if op[0] == "end":
            t1 = op[1] + 1
            if opt.thr and opt.thr <= t1 < 8:
                S.wait(thr[t1])
                S.ins(f"v_cmp_gt_u32 vcc, {t1 - opt.thr + 1}, v{dTT}")
                S.ins(f"s_cbranch_vccnz L_th_{t1}")
                a.label(f"L_tk_{t1}")
                STUBS.append(f"""L_th_{t1}:
s_sleep 1
ds_read_b32 v{dTT}, v{dTH}
s_waitcnt lgkmcnt(0)
s_sub_u32 s34, s34, 1
s_cbranch_scc1 L_tk_{t1}
v_cmp_gt_u32 vcc, {t1 - opt.thr + 1}, v{dTT}
s_cbranch_vccnz L_th_{t1}
s_branch L_tk_{t1}""")
            queue_out(op[1])
            if op[1] < 7 and (dprio(opt, op[1] + 1) != dprio(opt, op[1]) or (opt.alow and op[1] == 1)): S.ins(f"s_setprio {dprio(opt, op[1] + 1)}")
            continue
        t, f, g, first = op
        S.wait(max(f.seq, g.seq))
        ac = dACC + 4 * (t % 3)
        S.ins(f"{MF} {R(ac,4)}, {R(f.reg,4)}, {R(g.reg,4)}, {'0' if first else R(ac,4)}")
        acc_last[t] = S.n
        isq0 = f.key < 272
        if opt.sidem == 0 or isq0 or opt.blk:
            if side and side[0][0] <= S.n: side.pop(0)[1]()
        if isq0 and t == 7 and side and side[0][0] <= S.n: side.pop(0)[1]()
        if opt.sidem == 0 and t == 7 and not isq0 and side and side[0][0] <= S.n: side.pop(0)[1]()
    while side:
        rn, fn = side.pop(0); S.until(rn); fn()

def level_frags():
    K = {}
    for d in (2, 3, 4):
        for h in (0, 1): K[("T2", d, h)] = Frag("T2", (d, h), lT2 + 4 * ((d - 2) * 2 + h))
    for d in (4, 5, 6): K[("T3", d)] = Frag("T3", d, lT3 + 4 * (d - 4))
    K[("T3", 7)] = Frag("T3", 7, lACC + 16)
    K["FX"] = Frag("FX", 0, lFX)
    K["F5"] = Frag("F", 528, lF5)
    return K
LORDER = ["FX", ("T2", 2, 0), ("T2", 3, 0), ("T2", 4, 0), ("T2", 2, 1), ("T2", 3, 1), ("T2", 4, 1), ("T3", 7), ("T3", 4), ("T3", 5), ("T3", 6)]

def emit_level(a, opt, S, K):
    acc = lambda t: lACC + 4 * (t - 2)
    inited = set(); acc_last = {}; vq = []; wr = {}; pubq = []
    def drain(k):
        while k > 0 and vq and vq[0][0] <= S.n:
            rn, txt, key = vq.pop(0); S.ins(txt); wr[key] = S.n + 2; k -= 1
    def force(key):
        while any(q[2] == key for q in vq):
            rn, txt, kk = vq.pop(0); S.until(rn); S.ins(txt); wr[kk] = S.n + 2
    def need(f):
        if not f.issued: S.load(f)
        S.wait(f.seq)
    def mf(d, A, B, c):
        S.ins(f"{MF} {R(d,4)}, {R(A,4)}, {R(B,4)}, {c}")
        n = S.n
        if pubq: pubflush()
        else: drain(1)
        return n
    def am(t, A, B):
        c = R(acc(t), 4) if t in inited else "0"
        inited.add(t)
        acc_last[t] = mf(acc(t), A, B, c)
    G0 = [Frag("G", 256 * b - 16, lG) for b in range(6)]
    GM = [Frag("G", 256 * b - 24, lG + 4) for b in range(6)]
    S.load(G0[0]); S.load(GM[0])
    lo = ["F5", "FX", ("T2", 2, 0), ("T2", 2, 1), ("T2", 3, 0), ("T2", 4, 0), ("T2", 3, 1), ("T2", 4, 1), ("T3", 7), ("T3", 4), ("T3", 5), ("T3", 6)] if opt.e2 else ["F5"] + LORDER
    lazy = [K[k] for k in lo if not K[k].issued]
    tsets = [[12, 16], [8, 56]]
    def publish(t):
        S.until(acc_last[t] + 8)
        S.lds(f"ds_write_b128 v{vPA}, {R(acc(t),4)} offset:{(t-2)*1024}")
        S.ins(f"v_mov_b32 v{vONE}, {t}")
        pubq.append(t)
    def pubflush():
        while pubq:
            t = pubq.pop(0)
            S.lds(f"ds_write_addtid_b32 v{vONE} offset:{OFLO + 256}")
            if opt.stamps == 2:
                stamp(a, opt, 10 + t, True); S.done = S.lds_n
    def uses(b, h, ds=None):
        if b < 0 or b > 5: return
        if h < 2: lst = [(b + d, K[("T2", d, h)]) for d in (ds or ((3, 4) if opt.e2 else (2, 3, 4))) if b + d <= 7]
        else: lst = [(b + d, K[("T3", d)]) for d in (7, 4, 5, 6) if b + d <= 7 and b <= 3]
        if lst: force((b, h))
        for t, f in lst:
            need(f); S.until(wr[(b, h)]); am(t, lW + 4 * h, f.reg)
    grp = 0; prevkey = None
    lp = lambda nb: min(dprio(opt, max(nb - opt.lead, 0)) + opt.lup, 3)
    for nb in range(7):
        b = nb - 1
        pairs = []
        if nb <= 5:
            g0, gm = G0[nb], GM[nb]
            pairs = [[(g0, 3), (g0, 5)], [(gm, 3), (gm, 5)]]
            if nb <= 3: pairs.append([(g0, 7), (gm, 9)])
        if nb > 0 and (lp(nb) != lp(nb - 1) or (opt.alow and nb == 2)): S.ins(f"s_setprio {lp(nb)}")
        for h in range(3):
            newv = []
            for _ in range(3):
                if lazy: S.load(lazy.pop(0))
            if h < len(pairs):
                tm = tsets[grp % 2]; grp += 1
                for q in list(vq):
                    if q[2] != prevkey: force(q[2])
                for j, (g, box) in enumerate(pairs[h]):
                    need(g)
                    n = mf(tm[j], g.reg, BOX[box], "0")
                    dst = lW + 4 * h + 2 * j
                    newv.append((n + 8, f"v_cvt_pk_bf16_f32 v{dst}, v{tm[j]}, v{tm[j]+1}", (nb, h)))
                    newv.append((n + 8, f"v_cvt_pk_bf16_f32 v{dst+1}, v{tm[j]+2}, v{tm[j]+3}", (nb, h)))
                if h == 0:
                    need(K["F5"]); am(nb + 2, K["F5"].reg, g0.reg)
                    if nb < 5: useq = S.lds(f"ds_read_b32 v{lUT}, v{vCF} offset:{16 + 4*(nb+1)}")
                if h == 1 and nb <= 3:
                    need(K["FX"]); am(nb + 4, K["FX"].reg, g0.reg)
                if h == len(pairs) - 1 and nb < 5:
                    flag_check(a, S, useq, lUT, 16 + 4 * (nb + 1), f"lu{nb+1}")
                    S.load(G0[nb + 1]); S.load(GM[nb + 1])
            if opt.e2:
                if h == 0 and b >= 0: uses(b, 1, (2,))
                uses(b, h)
                if h == 0 and b >= 0: publish(b + 2)
                if h == 2: uses(nb, 0, (2,))
            else:
                uses(b, h)
                if h == 2 and b >= 0: publish(b + 2)
            if newv:
                vq.extend(newv); prevkey = (nb, h)
    pubflush()

def kprio(a, opt, i):
    p = max(opt.ktop - i, opt.kmin)
    if opt.klead:
        a(f"s_setprio {max(p,0)}\ns_cbranch_scc0 L_kp{i}\ns_setprio {min(max(p,0)+1,3)}\nL_kp{i}:")
    else:
        a(f"s_setprio {max(p,0)}")

def pack64(vals, bits):
    c = 0
    for i, v in enumerate(vals): c |= v << (bits * i)
    return c & 0xffffffff, c >> 32

def generate(opt):
    a = Asm()
    hdr = open("cdna_kernels/" + NAME + ".s.ref").read().split("\n")
    top = [l for l in hdr if l.startswith(";") and "@launch" not in l and "Override launch" not in l and "grid=ceil" not in l]
    out = "\n".join(top) + "\n"
    out += f"; @launch grid=(200,1,1) block=(1024,1,1) lds={LDS_TOTAL}\n"
    out += f""".amdgcn_target "amdgcn-amd-amdhsa--gfx950"
.text
.globl {NAME}_kernel
.p2align 8
.type {NAME}_kernel,@function
{NAME}_kernel:
"""
    stamp(a, opt, 0)
    if opt.stamps: a("s_memrealtime s[100:101]")
    a(f"""
s_and_b32 s3, s2, 7
s_mul_i32 s3, s3, 25
s_lshr_b32 s4, s2, 3
s_add_u32 s3, s3, s4
s_cmp_ge_u32 s3, 99
s_cselect_b32 s6, 56, 0
s_load_dwordx16 s[16:31], s[0:1], s6
s_load_dwordx2 s[32:33], s[0:1], 112
""")
    if opt.codepf == 1:
        a(f"""
s_getpc_b64 s[52:53]
L_pc:
v_lshlrev_b32 v6, 7, v0
v_cmp_gt_u32 vcc, L_codeend-L_pc, v6
s_and_saveexec_b64 s[12:13], vcc
s_cbranch_execz L_nocpf
global_load_dword v102, v6, s[52:53]
L_nocpf:
s_mov_b64 exec, s[12:13]
s_cmp_ge_u32 s3, 99
""")
    a(f"""
v_lshrrev_b32 v2, 6, v0
s_cselect_b32 s7, 9, 0
s_cselect_b32 s48, 1152, 0
v_readfirstlane_b32 s44, v2
s_cmp_ge_u32 s2, 200
s_cbranch_scc1 L_end
s_cmp_ge_u32 s3, 198
s_cbranch_scc1 L_end
v_and_b32 v1, 63, v0
s_mul_i32 s4, s3, 5958
s_lshr_b32 s4, s4, 16
s_mul_i32 s5, s4, 11
s_sub_u32 s59, s3, s5
s_mul_i32 s5, s59, 6
s_min_u32 s5, s5, 58
s_sub_u32 s4, s4, s7
s_lshl_b32 s4, s4, 6
s_add_u32 s5, s5, s4
s_setprio 3
""")
    if opt.gate:
        a(f"""
v_mov_b32 v8, 0
v_mov_b32 v9, 0
v_mov_b32 v10, 0
v_mov_b32 v11, 0
v_lshlrev_b32 v7, 4, v1
ds_write_b128 v7, v[8:11] offset:{FL}
s_waitcnt lgkmcnt(0)
s_barrier
""")
    a(f"""
s_cmp_ge_u32 s44, 12
s_cbranch_scc1 L_mem0
s_sub_u32 s45, s44, 6
s_cmp_ge_u32 s44, 6
s_cselect_b32 s45, s45, s44
s_cselect_b32 s62, 1, 0
s_add_u32 s46, s5, s45
s_lshl_b32 s8, s46, 8
v_lshl_add_u32 v20, v1, 2, s8
s_lshl_b32 s8, s46, 1
s_and_b32 s8, s8, -4
s_waitcnt lgkmcnt(0)
global_load_dword v{vP}, v20, s[18:19]
global_load_dword v{vP+1}, v20, s[20:21]
global_load_dword v{vP+2}, v20, s[22:23]
global_load_dword v{vP+3}, v20, s[24:25]
s_load_dword s40, s[26:27], s8
s_load_dword s41, s[28:29], s8
""")
    if opt.codepf == 3:
        a("""
s_cmp_lt_u32 s44, 10
s_cbranch_scc1 L_nocpf
s_getpc_b64 s[52:53]
L_pc:
v_subrev_u32 v6, 640, v0
v_lshlrev_b32 v6, 7, v6
v_min_u32 v6, L_codeend-L_pc-4, v6
global_load_dword v87, v6, s[52:53]
L_nocpf:
""")
    if opt.gate:
        a(f"""
v_lshlrev_b32 v21, 2, v1
v_mov_b32 v{vONE}, 1
ds_add_u32 v21, v{vONE} offset:{FL + 768 - 65536 if False else 0}
""".replace("v21, v2 offset:0", "v21, v2 offset:%d" % (FL + 768)))
    if opt.stamps == 1: stamp(a, opt, 14)
    if not opt.lateb and not opt.gate: a("s_barrier")
    stamp(a, opt, 1)
    sl0 = pack64([0,1,2,3,4,5,6,7,8,8,10,11,11,11,14,15], 4)
    ta0 = pack64([2*(848-8), 2*(719-8), 2*(1008-8), 2*(927-8)], 16)
    ta1 = pack64([2*(655-8), 2*(783-8), 2*(976-8), 2*(895-8)], 16)
    a(f"""
s_mul_i32 s57, s45, {KCH}
s_add_u32 s57, s57, {KA}
s_lshl_b32 s8, s62, 12
s_add_u32 s8, s8, s57
v_mov_b32 v24, 0
v_mov_b32 v25, 0
v_mov_b32 v26, 0
v_mov_b32 v27, 0
v_lshl_add_u32 v23, v1, 4, s8
v_and_b32 v20, 15, v1
s_add_u32 s8, s57, 8192
v_lshl_add_u32 v22, v20, 4, s8
""")
    for k in range(4):
        a(f"ds_write_b128 v23, v[24:27] offset:{k*1024}")
    a(f"""
ds_write_b128 v22, v[24:27]
s_mov_b32 s34, 0x40000
s_mov_b32 s49, 0x01000c0c
s_cmp_lg_u32 s62, 0
s_cselect_b32 s49, 0x03020c0c, s49
v_mov_b32 v{vONE}, 1
s_mul_i32 s61, s45, {CHB}
s_mul_i32 s60, s62, {STGW}
s_add_u32 s60, s60, s61
s_mov_b32 m0, s60
s_mul_i32 s56, s45, {UCH}
s_add_u32 s56, s56, {UB}
s_mov_b32 s12, 0xbfb8aa3b
s_mov_b32 s13, 0x3e22f983
s_mov_b32 s14, 0x41000000
s_mov_b32 s15, 0x43800000
s_mov_b32 s63, 0x3fb8aa3b
s_mov_b32 s35, 0x7fff7fff
s_movk_i32 s9, {PITCH}
s_mov_b32 s10, {sl0[0]:#x}
s_mov_b32 s11, {sl0[1]:#x}
v_and_b32 v21, 48, v1
v_lshl_add_u32 v22, v20, 5, v21
v_add_u32 v{vU}, s56, v22
v_and_b32 v23, 3, v20
v_sub_u32 v23, 3, v23
v_mul_u32_u24 v23, {KCP}, v23
v_and_b32 v24, 12, v20
v_lshlrev_b32 v24, 1, v24
v_sub_u32 v23, v23, v24
v_add_u32 v23, s57, v23
v_add_u32 v{vKF}, v23, v21
v_lshrrev_b32 v24, 1, v21
v_add_u32 v{vKT}, v23, v24
v_add_u32 v24, s60, v21
v_mad_u32_u24 v{vSR}, v20, s9, v24
v_add_u32 v{vSL1}, {16*PITCH}, v24
v_lshlrev_b32 v25, 2, v20
v_lshrrev_b64 v[26:27], v25, s[10:11]
v_and_b32 v26, 15, v26
v_mad_u32_u24 v{vSL0}, v26, s9, v24
v_and_b32 v25, 32, v1
v_and_b32 v26, 16, v1
v_lshl_add_u32 v27, v25, 5, v26
v_lshl_add_u32 v27, v20, 5, v27
v_add_u32 v{vPW0}, s60, v27
v_lshl_add_u32 v{vPA}, v1, 4, s61
v_and_b32 v27, 1, v1
v_lshl_add_u32 v25, v27, 4, v25
v_and_b32 v27, 14, v1
v_lshl_add_u32 v27, v26, 1, v27
v_sub_u32 v27, s57, v27
s_mov_b32 s10, {ta1[0]:#x}
s_mov_b32 s11, {ta1[1]:#x}
s_cmp_lg_u32 s62, 0
s_cselect_b32 s10, {ta0[0]:#x}, s10
s_cselect_b32 s11, {ta0[1]:#x}, s11
v_lshrrev_b64 v[22:23], v25, s[10:11]
v_and_b32 v22, 0xffff, v22
v_add_u32 v{vAC}, v27, v22
s_cbranch_scc1 L_proL
s_add_u32 s8, s57, 1072
v_lshlrev_b32 v25, 4, v1
v_sub_u32 v{vKD}, s8, v25
v_lshl_add_u32 v{vRD}, v1, 5, s61
{"v_min_u32 v25, 5, v1" if opt.thr else ""}
{"v_mul_u32_u24 v25, %d, v25" % CHB if opt.thr else ""}
{"v_add_u32 v%d, %d, v25" % (dTH, OFLO) if opt.thr else ""}
s_branch L_prodone
L_proL:
s_add_u32 s8, s57, {2*DUMMY}
v_mov_b32 v{vAM}, s8
""")
    for lane, idx in ((0, ZD-511), (1, ZD-512), (2, ZD-513), (3, ZD-514), (16, Z3[1]-127), (32, ZX-1027), (33, ZX-1028), (34, Z2[3]-63), (48, ZD-509), (52, ZD-510)):
        a(f"s_add_u32 s8, s57, {2*idx}\nv_writelane_b32 v{vAM}, s8, {lane}")
    a(f"""
L_prodone:
{"s_barrier" if opt.lateb and not opt.gate else ""}
s_lshl_b32 s8, s45, 7
s_add_u32 s8, s8, {FL}
v_mov_b32 v{vCF}, s8
s_waitcnt lgkmcnt(0)
s_lshl_b32 s8, s40, 16
s_and_b32 s40, s40, 0xffff0000
s_lshl_b32 s9, s41, 16
s_and_b32 s41, s41, 0xffff0000
s_bitcmp0_b32 s46, 0
s_cselect_b32 s40, s8, s40
s_cselect_b32 s41, s9, s41
v_mov_b32 v{vDT}, s63
v_mov_b32 v{vDSK}, 0
v_mul_f32 v{vDT}, s40, v{vDT}
v_writelane_b32 v{vDSK}, s41, 0
v_exp_f32 v{vDT}, v{vDT}
s_cmp_lg_u32 s62, 0
""")
    stamp(a, opt, 2)
    if opt.codepf == 3:
        a("s_waitcnt vmcnt(1)\ns_cmp_ge_u32 s44, 10\ns_cbranch_scc1 L_pw\ns_waitcnt vmcnt(0)\nL_pw:\ns_cmp_lg_u32 s62, 0")
    else:
        a("s_waitcnt vmcnt(0)")
    stamp(a, opt, 3)
    if opt.chain: a(f"ds_write_b32 v{vCF}, v{vONE} offset:96")
    kprio(a, opt, 0)
    MH = "v_mfma_f32_16x16x32_f16"
    AB, CC, TA, TB, zf, wf, Zf, w2, w4, MX, MT = 52, 54, 56, 58, 60, 62, 64, 66, 68, 70, 71
    hz1, hz2, hz4, hZ1, hZ2, hZ4 = 88, 89, 90, 91, 92, 93
    RR = {j: 94 + j for j in range(1, 17)}
    LL = {}
    free = list(range(111, 128))
    def hmul(dst, x, m, conj=False):
        if not conj:
            a(f"v_pk_mul_f16 v{dst}, v{x}, v{m} op_sel:[0,0] op_sel_hi:[0,1]")
            a(f"v_pk_fma_f16 v{dst}, v{x}, v{m}, v{dst} op_sel:[1,1,0] op_sel_hi:[1,0,1] neg_lo:[0,1,0]")
        else:
            a(f"v_pk_mul_f16 v{dst}, v{x}, v{m} op_sel:[0,0] op_sel_hi:[0,1] neg_hi:[0,1]")
            a(f"v_pk_fma_f16 v{dst}, v{x}, v{m}, v{dst} op_sel:[1,1,0] op_sel_hi:[1,0,1]")
    dpp = lambda c, rm="0xf": f"v_max_u32_dpp v{MX}, v{MX}, v{MX} {c} row_mask:{rm} bank_mask:0xf"
    a(f"""
v_perm_b32 v{TA}, v{vP}, v{vP}, s49
v_and_b32 v{MX}, s35, v{vP+2}
v_mul_f32 v{TA}, s63, v{TA}
v_and_b32 v{MT}, s35, v{vP+3}
v_exp_f32 v{TA}, v{TA}
v_pk_max_u16 v{MX}, v{MX}, v{MT}
v_perm_b32 v{TA+1}, v{vP+1}, v{vP+1}, s49
v_lshlrev_b32 v{MT}, 16, v{MX}
v_cvt_pk_bf16_f32 v{vDT}, v{vDT}, v{TA}
v_max_u32 v{MX}, v{MX}, v{MT}
v_and_b32 v{TA}, 0xffff0000, v{vDT}
v_lshlrev_b32 v{vDT}, 16, v{vDT}
{dpp("row_shr:1")}
v_pk_mul_f32 {R(AB,2)}, {R(TA,2)}, {R(vDT,2)} op_sel_hi:[1,0]
v_pk_mul_f32 {R(AB,2)}, {R(AB,2)}, s[12:13]
{dpp("row_shr:2")}
v_pk_mul_f32 {R(TA,2)}, {R(AB,2)}, s[14:15] op_sel_hi:[1,0]
v_pk_mul_f32 {R(TB,2)}, {R(AB,2)}, s[14:15] op_sel:[0,1] op_sel_hi:[1,1]
{dpp("row_shr:4")}
v_fract_f32 v{AB+1}, v{AB+1}
v_exp_f32 v{AB}, v{AB}
{dpp("row_shr:8")}
v_cos_f32 v{zf}, v{AB+1}
v_sin_f32 v{zf+1}, v{AB+1}
{dpp("row_bcast:15", "0xa")}
v_fract_f32 v{TB+1}, v{TB+1}
v_pk_mul_f32 {R(zf,2)}, {R(zf,2)}, {R(AB,2)} op_sel_hi:[1,0]
{dpp("row_bcast:31", "0xc")}
v_exp_f32 v{TB}, v{TB}
v_cos_f32 v{Zf}, v{TB+1}
v_readlane_b32 s10, v{MX}, 63
v_sin_f32 v{Zf+1}, v{TB+1}
v_fract_f32 v{TA+1}, v{TA+1}
v_perm_b32 v{CC}, v{vP+2}, v{vP+2}, s49
s_and_b32 s10, s10, 0x7f800000
s_sub_u32 s8, 0x7f000000, s10
s_add_u32 s10, s10, 0x00800000
v_pk_mul_f32 {R(Zf,2)}, {R(Zf,2)}, {R(TB,2)} op_sel_hi:[1,0]
v_perm_b32 v{CC+1}, v{vP+3}, v{vP+3}, s49
v_exp_f32 v{TA}, v{TA}
v_cos_f32 v{wf}, v{TA+1}
v_sin_f32_e64 v{wf+1}, -v{TA+1}
v_pk_mul_f32 {R(CC,2)}, {R(CC,2)}, s[8:9] op_sel_hi:[1,0]
v_cvt_pk_f16_f32 v{hz1}, v{zf}, v{zf+1}
v_pk_mul_f32 {R(wf,2)}, {R(wf,2)}, {R(TA,2)} op_sel_hi:[1,0]
v_cvt_pk_f16_f32 v{hZ1}, v{Zf}, v{Zf+1}
v_mul_f32 v{vC2}, s10, v{vDT}
s_cmp_lg_u32 s62, 0
""")
    if opt.stamps == 1: stamp(a, opt, 10)
    pend = []
    def flush():
        for t, slot in pend: a(f"ds_write_addtid_b32 v{t} offset:{PITCH*slot}")
        pend.clear()
    def put(reg, slot):
        pend.append((reg, slot))
        if len(pend) == opt.batch: flush()
    rot = [0]
    def tmp():
        r = 120 + rot[0] % 8; rot[0] += 1; return r
    keep = {0: 111, 2: 112, 4: 113, 6: 114, 256: 115, 260: 116, 512: 117, 768: 118, 1024: 119}
    def L(b, src, m, slot, conj=False):
        dst = keep.get(b) or tmp()
        hmul(dst, src, m, conj); put(dst, slot)
    a(f"v_cvt_pk_f16_f32 v{keep[0]}, v{CC}, v{CC+1}"); put(keep[0], 0)
    hmul(hz2, hz1, hz1)
    a(f"v_cvt_pk_f16_f32 v{RR[1]}, v{wf}, v{wf+1}")
    L(1, keep[0], hz1, 1); L(2, keep[0], hz2, 2)
    hmul(hz4, hz2, hz2)
    L(3, keep[2], hz1, 3); L(4, keep[0], hz4, 4); L(5, keep[4], hz1, 5); L(6, keep[4], hz2, 6); L(7, keep[6], hz1, 7)
    L(256, keep[0], hZ1, 8); L(258, keep[2], hZ1, 10); L(260, keep[4], hZ1, 11); L(262, keep[6], hZ1, 14)
    L(264, keep[256], RR[1], 15, conj=True)
    flush()
    for k in range(4): a(f"ds_read_b128 {R(vLF+4*k,4)}, v{vSL0} offset:{64*k}")
    kprio(a, opt, 1)
    hmul(hZ2, hZ1, hZ1)
    cmul(a, w2, wf, wf)
    L(512, keep[0], hZ2, 0); L(516, keep[4], hZ2, 1); L(768, keep[256], hZ2, 4); L(772, keep[260], hZ2, 5)
    hmul(hZ4, hZ2, hZ2)
    cmul(a, w4, w2, w2)
    L(1024, keep[0], hZ4, 8); L(1280, keep[256], hZ4, 12); L(1536, keep[512], hZ4, 9); L(1792, keep[768], hZ4, 13); L(2048, keep[1024], hZ4, 6)
    flush()
    for k in range(4): a(f"ds_read_b128 {R(vLF+16+4*k,4)}, v{vSR} offset:{64*k}")
    if opt.stamps == 1: stamp(a, opt, 11)
    if opt.k4: kprio(a, opt, 2)
    t = tmp()
    a(f"v_mov_b32 v{t}, 0x3c00"); put(t, 0); put(RR[1], 1)
    a(f"v_cvt_pk_f16_f32 v{RR[2]}, v{w2}, v{w2+1}"); put(RR[2], 2)
    a(f"v_cvt_pk_f16_f32 v{RR[4]}, v{w4}, v{w4+1}"); put(RR[4], 4)
    hmul(RR[3], RR[1], RR[2]); put(RR[3], 3)
    hmul(RR[8], RR[4], RR[4]); put(RR[8], 8)
    for j in (5, 6, 7): hmul(RR[j], RR[j-4], RR[4]); put(RR[j], j)
    hmul(RR[16], RR[8], RR[8])
    if opt.rhi:
        a(f"ds_write_addtid_b32 v{RR[16]} offset:{PITCH*16}")
    for j in range(9, 16):
        hmul(RR[j], RR[j-8], RR[8]); put(RR[j], j)
        if j == 11 and not opt.k4: kprio(a, opt, 2)
    flush()
    if opt.rhi:
        WF = 104
        for k in range(4):
            a(f"ds_read_b128 {R(vRF+4*k,4)}, v{vSR} offset:{64*k}")
            a(f"ds_read_b128 {R(WF+4*k,4)}, v{vSL1} offset:{64*k}")
        if opt.stamps == 1: stamp(a, opt, 12, True)
        if opt.k4: kprio(a, opt, 3)
        else: a(f"s_setprio {opt.xprio}")
        def mm(n, k, m):
            dd = vD + 8 * m + 4 * n
            src = (vRF if n == 0 else WF) + 4 * k
            a(f"{MH} {R(dd,4)}, {R(vLF+16*m+4*k,4)}, {R(src,4)}, {'0' if k == 0 else R(dd,4)}")
        for k in range(4):
            a(f"s_waitcnt lgkmcnt({6-2*k})")
            for e in range(4):
                t = tmp(); x = vRF + 4 * k + e; m_ = WF + 4 * k + e
                a(f"v_pk_mul_f16 v{t}, v{x}, v{m_} op_sel:[0,0] op_sel_hi:[0,1]")
                a(f"v_pk_fma_f16 v{m_}, v{x}, v{m_}, v{t} op_sel:[1,1,0] op_sel_hi:[1,0,1] neg_lo:[0,1,0]")
                if e == 0: mm(0, k, 0)
                if e == 1 and k > 0: mm(1, k - 1, 0)
                if e == 2: mm(0, k, 1)
                if e == 3 and k > 0: mm(1, k - 1, 1)
        a("s_nop 1")
        mm(1, 3, 0); mm(1, 3, 1)
        a(f"s_setprio {opt.xprio}\ns_nop 0" if opt.k4 else "s_nop 1")
    else:
        for k in range(4): a(f"ds_read_b128 {R(vRF+4*k,4)}, v{vSR} offset:{64*k}")
        put(RR[16], 0)
        for j in range(17, 32):
            t = tmp()
            hmul(t, RR[j-16], RR[16]); put(t, j - 16)
            if j == 19:
                a(f"s_waitcnt lgkmcnt({4 - len(pend)})")
            if 19 <= j < 27:
                k, m = (j - 19) // 2, (j - 19) % 2
                dd = vD + 8 * m
                a(f"{MH} {R(dd,4)}, {R(vLF+16*m+4*k,4)}, {R(vRF+4*k,4)}, {'0' if k == 0 else R(dd,4)}")
        flush()
        if opt.stamps == 1: stamp(a, opt, 12, True)
        for k in range(4): a(f"ds_read_b128 {R(vRF+4*k,4)}, v{vSR} offset:{64*k}")
        a(f"s_setprio {opt.xprio}")
        for k in range(4):
            a(f"s_waitcnt lgkmcnt({3-k})")
            for m in range(2):
                dd = vD + 8 * m + 4
                a(f"{MH} {R(dd,4)}, {R(vLF+16*m+4*k,4)}, {R(vRF+4*k,4)}, {'0' if k == 0 else R(dd,4)}")
    a(f"""
ds_write_b128 v{vPW0}, {R(vD,4)}
s_cmp_lg_u32 s62, 0
s_cbranch_scc1 L_xL
ds_write_addtid_b32 v{vD+8} offset:2048
ds_write_addtid_b32 v{vD+10} offset:2560
s_nop 2
ds_write_b128 v{vPW0}, {R(vD+4,4)} offset:512
ds_write_addtid_b32 v{vD+12} offset:2304
ds_write_b32 v{vCF}, v{vONE}
""")
    if opt.stamps == 1: stamp(a, opt, 13)
    wait_flags(a, [(20, 4)], "pxd")
    stamp(a, opt, 4)
    A_, B_, Pv, E, O, E2, O2 = 88, 100, 96, 108, 112, 116, 120
    d = lambda k: A_ + k
    a(f"""
ds_read_b128 {R(A_+4,4)}, v{vRD} offset:16
ds_read_b128 {R(B_+4,4)}, v{vRD} offset:{STGW+16}
ds_read_b128 {R(A_,4)}, v{vRD}
ds_read_b128 {R(B_,4)}, v{vRD} offset:{STGW}
ds_read_addtid_b32 v20 offset:{STGW+2048}
ds_read_addtid_b32 v21 offset:{STGW+2304}
s_waitcnt lgkmcnt(4)
v_pk_add_f32 {R(A_+4,2)}, {R(A_+4,2)}, {R(B_+4,2)}
v_pk_add_f32 {R(A_+6,2)}, {R(A_+6,2)}, {R(B_+6,2)}
v_pk_mul_f32 {R(A_+4,2)}, {R(A_+4,2)}, {R(vC2,2)} op_sel_hi:[1,0]
v_pk_mul_f32 {R(A_+6,2)}, {R(A_+6,2)}, {R(vC2,2)} op_sel_hi:[1,0]
s_waitcnt lgkmcnt(2)
v_pk_add_f32 {R(A_,2)}, {R(A_,2)}, {R(B_,2)}
v_pk_add_f32 {R(A_+2,2)}, {R(A_+2,2)}, {R(B_+2,2)}
v_fma_f32 v{A_}, v{A_}, v{vC2}, v{vDSK}
v_mul_f32 v{A_+1}, v{A_+1}, v{vC2}
v_pk_mul_f32 {R(A_+2,2)}, {R(A_+2,2)}, {R(vC2,2)} op_sel_hi:[1,0]
v_mov_b32_dpp v{Pv}, v{d(5)} wave_shr:1 row_mask:0xf bank_mask:0xf bound_ctrl:0
v_mov_b32_dpp v{Pv+1}, v{d(6)} wave_shr:1 row_mask:0xf bank_mask:0xf bound_ctrl:0
v_mov_b32_dpp v{Pv+2}, v{d(7)} wave_shr:1 row_mask:0xf bank_mask:0xf bound_ctrl:0
v_cvt_pk_bf16_f32 v{E}, v{d(7)}, v{d(6)}
v_cvt_pk_bf16_f32 v{E+1}, v{d(5)}, v{d(4)}
v_cvt_pk_bf16_f32 v{E+2}, v{d(3)}, v{d(2)}
v_cvt_pk_bf16_f32 v{E+3}, v{d(1)}, v{d(0)}
ds_write_b128 v{vKD}, {R(E,4)}
v_cvt_pk_bf16_f32 v{O}, v{d(6)}, v{d(5)}
v_cvt_pk_bf16_f32 v{O+1}, v{d(4)}, v{d(3)}
v_cvt_pk_bf16_f32 v{O+2}, v{d(2)}, v{d(1)}
v_cvt_pk_bf16_f32 v{O+3}, v{d(0)}, v{Pv+2}
ds_write_b128 v{vKD}, {R(O,4)} offset:{KCP}
v_mov_b32 v{E2}, v{E+1}
v_mov_b32 v{E2+1}, v{E+2}
v_mov_b32 v{E2+2}, v{E+3}
v_cvt_pk_bf16_f32 v{E2+3}, v{Pv+2}, v{Pv+1}
ds_write_b128 v{vKD}, {R(E2,4)} offset:{2*KCP}
v_mov_b32 v{O2}, v{O+1}
v_mov_b32 v{O2+1}, v{O+2}
v_mov_b32 v{O2+2}, v{O+3}
v_cvt_pk_bf16_f32 v{O2+3}, v{Pv+1}, v{Pv}
ds_write_b128 v{vKD}, {R(O2,4)} offset:{3*KCP}
s_waitcnt lgkmcnt(4)
v_add_f32 v20, v20, v{vD+9}
v_add_f32 v21, v21, v{vD+13}
v_mul_f32 v20, v20, v{vC2}
v_mul_f32 v21, v21, v{vC2}
v_cvt_pk_bf16_f32 v20, v20, v21
""")
    for sg in range(4):
        a(f"ds_write_b16 v{vAC}, v20 offset:{sg*(KCP-2)+16}")
        a(f"ds_write_b16_d16_hi v{vAC}, v20 offset:{sg*(KCP-2)}")
    a(f"ds_write_b32 v{vCF}, v{vONE} offset:8")
    stamp(a, opt, 5)
    SD = Stream(a)
    F = {16 + 32 * s: Frag("F", 16 + 32 * s, dF + 4 * s) for s in range(16)}
    for k in range(opt.pre):
        SD.load(F[16 + 32 * k] if opt.blk else F[16 + 32 * (k // 2) + 256 * (k % 2)])
    a(f"s_setprio {dprio(opt, 0)}")
    if opt.alow: a(f"s_cmp_ge_u32 s45, 2\ns_cbranch_scc1 L_dl\ns_setprio {dprio(opt, 0) - 1}\nL_dl:")
    wait_flags(a, [(18, 16)] if opt.defer else [(18, 16), (19, 12)], "d")
    SD.done = SD.lds_n
    stamp(a, opt, 7, True)
    emit_dense(a, opt, SD, F)
    a("s_branch L_fin")
    a.label("L_xL")
    a(f"""
ds_write_addtid_b32 v{vD+9} offset:2048
v_mov_b32 v20, s61
s_nop 2
ds_write_b128 v{vPW0}, {R(vD+4,4)} offset:512
ds_write_addtid_b32 v{vD+13} offset:2304
ds_write_b32 v{vCF}, v{vONE} offset:4
s_mov_b32 m0, s61
""")
    if opt.stamps == 1: stamp(a, opt, 13)
    wait_flags(a, [(21, 0)], "pxl")
    stamp(a, opt, 4)
    n0, n1 = vD + 8, vD + 12
    a(f"""
ds_read_addtid_b32 v24 offset:2048
ds_read_addtid_b32 v25 offset:2304
ds_read_addtid_b32 v26 offset:2560
ds_read_b128 v[32:35], v20 offset:2032
ds_read_b128 v[36:39], v20 offset:{2032+STGW}
s_mov_b32 s8, -2
s_waitcnt lgkmcnt(2)
v_add_f32 v24, v24, v{n0}
v_add_f32 v25, v25, v{n1}
v_add_f32 v26, v26, v{n0+2}
v_mul_f32 v24, v24, v{vC2}
v_mul_f32 v25, v25, v{vC2}
v_mul_f32 v26, v26, v{vC2}
v_cvt_pk_bf16_f32 v40, v24, v25
v_mov_b32_dpp v42, v24 quad_perm:[0,0,0,0] row_mask:0xf bank_mask:0xf
""")
    for sg in range(4):
        a(f"ds_write_b16_d16_hi v{vAC}, v40 offset:{sg*(KCP-2)}")
    a(f"""
s_waitcnt lgkmcnt(4)
v_mov_b32_dpp v42, v26 quad_perm:[0,1,2,3] row_mask:0x2 bank_mask:0xf
v_add_f32 v33, v33, v37
v_add_f32 v34, v34, v38
v_mul_f32 v33, v33, v{vC2}
v_mul_f32 v34, v34, v{vC2}
s_mov_b32 exec_lo, s8
s_mov_b32 exec_hi, s8
""")
    for sg in range(4):
        a(f"ds_write_b16 v{vAC}, v40 offset:{sg*(KCP-2)+16}")
    a(f"""
s_mov_b64 exec, -1
v_mov_b32_dpp v42, v33 quad_perm:[0,1,2,3] row_mask:0x8 bank_mask:0x1
v_mov_b32_dpp v42, v34 quad_perm:[0,1,2,3] row_mask:0x8 bank_mask:0x2
v_subrev_u32 v19, s61, v{vPA}
v_cvt_pk_bf16_f32 v42, v42, v42
v_add_u32 v19, {BOXL}, v19
""")
    for sg in range(4):
        a(f"ds_write_b16 v{vAM}, v42 offset:{sg*(KCP-2)}")
    a(f"ds_write_b32 v{vCF}, v{vONE} offset:12")
    stamp(a, opt, 5)
    SL = Stream(a)
    LK = level_frags()
    for k in LORDER[:opt.prel]:
        SL.load(LK[k])
    a(f"s_setprio {min(dprio(opt, 0) + opt.lup, 3)}")
    if opt.alow: a(f"s_cmp_ge_u32 s45, 2\ns_cbranch_scc1 L_ll\ns_setprio {dprio(opt, 0) - 1}\nL_ll:")
    wait_flags(a, [(16, 16), (17, 8)], "l")
    SL.done = SL.lds_n
    stamp(a, opt, 7, True)
    for j, wdt in enumerate((3, 5, 7, 9)):
        SL.lds(f"ds_read_b128 {R(BOX[wdt],4)}, v19 offset:{1024*j}")
    if not opt.nol: emit_level(a, opt, SL, LK)
    a("s_branch L_fin")
    a(f"""
L_mem0:
s_sub_u32 s45, s44, 12
v_mov_b32 v8, 0
v_mov_b32 v9, 0
v_mov_b32 v10, 0
v_mov_b32 v11, 0
v_lshlrev_b32 v7, 4, v1
{"" if opt.gate else "ds_write_b128 v7, v[8:11] offset:%d" % FL}
v_min_u32 v5, 5, v1
v_mul_u32_u24 v16, {CHB}, v5
ds_write_b32 v16, v8 offset:{OFLO}
ds_write_b32 v16, v8 offset:{OFLO + 256}
s_lshl_b32 s47, s5, 1
s_mul_i32 s9, s45, {512*1152}
s_add_u32 s9, s9, s47
s_add_u32 s10, s9, {256*1152}
v_mul_u32_u24 v19, {4*1152}, v1
""")
    if opt.mord:
        a("""
s_cmp_eq_u32 s45, 0
s_cbranch_scc1 L_mp
s_setprio 2
s_cmp_eq_u32 s45, 1
s_cbranch_scc1 L_mp
s_setprio 1
s_cmp_eq_u32 s45, 2
s_cbranch_scc1 L_mp
s_setprio 0
L_mp:
""")
    a(f"""
s_waitcnt lgkmcnt(0)
s_mov_b32 s18, {2048*1152}
s_mov_b32 s19, 0x00020000
""")
    if opt.stamps == 1: stamp(a, opt, 14)
    if opt.codepf == 2:
        a("""
s_getpc_b64 s[52:53]
L_pc:
v_lshlrev_b32 v6, 7, v1
v_add_u32 v7, 8192, v6
v_min_u32 v7, L_codeend-L_pc-4, v7
s_cmp_lg_u32 s45, 0
""")
    if opt.gate:
        a(f"""
s_mul_i32 s8, s59, 192
s_lshl_b32 s11, s45, 6
s_add_u32 s8, s8, s11
v_add_u32 v6, s8, v1
v_mul_u32_u24 v6, 1152, v6
v_mov_b32 v17, {FL + 768}
s_mov_b32 s36, 0x40000
L_gw:
ds_read_b32 v7, v17
s_waitcnt lgkmcnt(0)
s_sub_u32 s36, s36, 1
s_cbranch_scc1 L_gok
v_cmp_gt_u32 vcc, 12, v7
s_cbranch_vccz L_gok
s_sleep 1
s_branch L_gw
L_gok:
""")
        if opt.upf:
            a(f"""
s_cmp_eq_u32 s45, 3
s_cbranch_scc1 L_noupf
buffer_load_dword v13, v6, s[16:19], s47 offen
L_noupf:
""")
    else:
        a("s_barrier")
    if opt.codepf == 2:
        a("""
s_cbranch_scc1 L_nocpf
global_load_dword v12, v6, s[52:53]
global_load_dword v13, v7, s[52:53]
L_nocpf:
""")
    if opt.chain:
        a(f"""
s_cmp_lt_u32 s45, {opt.chain}
s_cbranch_scc1 L_chok
v_mov_b32 v6, {FL + 96 + 128*opt.trig}
s_mov_b32 s36, 0x40000
L_chw:
s_sleep 2
ds_read_b32 v7, v6
s_waitcnt lgkmcnt(0)
s_sub_u32 s36, s36, 1
s_cbranch_scc1 L_chok
v_cmp_eq_u32 vcc, 0, v7
s_cbranch_vccnz L_chw
L_chok:
""")
    stamp(a, opt, 1)
    for k in range(8):
        tile, e = k // 4, k % 4
        a(f"buffer_load_dwordx3 {R(mUD+4*k,3)}, v19, s[16:19], s{9+tile} offen offset:{e*1152}" + (" nt" if opt.nt else ""))
    stamp(a, opt, 2)
    a(f"""
s_setprio 3
""")
    a(f"""
v_and_b32 v4, 15, v1
v_lshrrev_b32 v15, 4, v1
s_cmp_lg_u32 s45, 0
s_cbranch_scc1 L_nobox
v_lshrrev_b32 v7, 5, v1
v_mul_u32_u24 v7, {UCH}, v7
v_and_b32 v6, 31, v1
v_lshl_add_u32 v6, v6, 4, v7
v_add_u32 v6, {UB}, v6
ds_write_b128 v6, v[8:11]
ds_write_b128 v6, v[8:11] offset:{2*UCH}
ds_write_b128 v6, v[8:11] offset:{4*UCH}
v_lshlrev_b32 v6, 3, v15
v_sub_u32 v6, v6, v4
v_add_u32 v6, 15, v6
v_min_u32 v6, 31, v6
s_mov_b32 s8, 0x8001
s_mov_b32 s12, 0x10001
s_mov_b32 s10, 0x3f80
v_lshlrev_b32 v17, 4, v1
v_add_u32 v17, {BOXL}, v17
""")
    for j, (wdt, lo) in enumerate(((3, 11), (5, 6), (7, 5), (9, 4))):
        a(f"s_mov_b32 s11, {((1<<wdt)-1) << (lo+15):#x}\nv_lshrrev_b32 v7, v6, s11")
        for w in range(4):
            d_ = 8 + w
            a(f"v_bfe_u32 v{d_}, v7, {2*w}, 2\nv_mul_u32_u24 v{d_}, s8, v{d_}\nv_and_b32 v{d_}, s12, v{d_}\nv_mul_u32_u24 v{d_}, s10, v{d_}")
        a(f"ds_write_b128 v17, v[8:11] offset:{1024*j}")
    a(f"""
L_nobox:
s_add_u32 s48, s48, s47
s_mov_b32 s34, {2048*2304}
s_mov_b32 s35, 0x00020000
s_mov_b32 s50, 0x05040100
s_mov_b32 s51, 0x07060302
s_mov_b32 s36, 0x40000
v_lshl_add_u32 v4, v4, 2, v15
v_mul_u32_u24 v18, {4*2304}, v4
s_lshl_b32 s8, s45, 10
s_add_u32 s8, s8, {UB + 512}
v_lshl_add_u32 v3, v1, 3, s8
v_add_u32 v18, s48, v18
s_lshl_b32 s8, s45, 3
s_add_u32 s8, s8, {FL + 16}
v_lshl_add_u32 v14, v5, 7, s8
v_mov_b32 v2, 1
""")
    stamp(a, opt, 4)
    for tile in range(2):
        a(f"s_waitcnt vmcnt({4 - 4*tile})")
        q = lambda e, m: mUD + 4 * (4 * tile + e) + m
        for m in range(3):
            for hi in range(2):
                t = mT + 2 * ((2 * m + hi) % 4)
                a(f"v_perm_b32 v{t}, v{q(1,m)}, v{q(0,m)}, s{50+hi}")
                a(f"v_perm_b32 v{t+1}, v{q(3,m)}, v{q(2,m)}, s{50+hi}")
                a(f"ds_write_b64 v3, {R(t,2)} offset:{(2*m+hi)*UCH + 512*tile}")
        a(f"ds_write_b32 v14, v2 offset:{4*tile}")
        stamp(a, opt, 6 if tile == 0 else 11)
    a(f"""
s_bitcmp1_b32 s45, 0
s_cselect_b32 s50, s51, s50
s_mul_i32 s57, s45, 2304
s_mov_b32 s56, 1
s_lshr_b32 s8, s45, 1
s_lshl_b32 s8, s8, 8
s_add_u32 s8, s8, {OUTO}
v_lshl_add_u32 v4, v1, 2, s8
L_mpoll:
ds_read_b32 v8, v16 offset:{OFLO}
s_waitcnt lgkmcnt(0)
v_cmp_gt_u32 vcc, s56, v8
s_cbranch_vccz L_mgo
s_sleep {opt.msleep}
s_sub_u32 s36, s36, 1
s_cbranch_scc0 L_mpoll
L_mgo:
""")
    for c in range(6):
        a(f"ds_read_b32 v{mIN+c}, v4 offset:{CHB*c}")
    a(f"v_add_u32 v4, 512, v4")
    for m in range(3):
        a(f"s_waitcnt lgkmcnt({4-2*m})")
        a(f"v_perm_b32 v{mSO+m}, v{mIN+2*m+1}, v{mIN+2*m}, s50")
    a(f"""
buffer_store_dwordx3 {R(mSO,3)}, v18, s[32:35], s57 offen
s_add_u32 s57, s57, {256*2304}
s_add_u32 s56, s56, 1
""")
    if opt.stamps:
        a(f"s_cmp_lg_u32 s56, 2\ns_cbranch_scc1 L_ms")
        stamp(a, opt, 10)
        a.label(f"L_ms")
    a(f"s_cmp_le_u32 s56, 8\ns_cbranch_scc1 L_mpoll")
    a.label("L_fin")
    if opt.stamps:
        stamp(a, opt, 8)
        a("s_waitcnt vmcnt(0)")
        stamp(a, opt, 9)
        a(f"""
s_load_dwordx2 s[8:9], s[0:1], 128
s_waitcnt lgkmcnt(0)
s_lshl_b32 s10, s2, 4
s_add_u32 s10, s10, s44
s_lshl_b32 s10, s10, 7
s_add_u32 s10, s10, {1<<20}
v_mov_b32 v20, s10
""")
        for k in range(1, NST):
            a(f"s_sub_u32 s11, s{64+2*k}, s64\nv_mov_b32 v21, s11\nglobal_store_dword v20, v21, s[8:9] offset:{4*k}")
        a("s_memrealtime s[10:11]\ns_waitcnt lgkmcnt(0)\nv_mov_b32 v21, s10\nglobal_store_dword v20, v21, s[8:9] offset:0")
        a("v_mov_b32 v21, s100\nglobal_store_dword v20, v21, s[8:9] offset:80")
        a("s_getreg_b32 s11, hwreg(HW_REG_HW_ID)\nv_mov_b32 v21, s11\nglobal_store_dword v20, v21, s[8:9] offset:84")
        a("s_getreg_b32 s11, hwreg(HW_REG_XCC_ID)\nv_mov_b32 v21, s11\nglobal_store_dword v20, v21, s[8:9] offset:88")
        a("v_mov_b32 v21, s64\nglobal_store_dword v20, v21, s[8:9] offset:92")
    a.label("L_end")
    a("s_endpgm")
    for st in STUBS: a(st)
    a.label("L_codeend")
    out += a.text()
    out += f""".section .rodata,"a"
.p2align 6
.amdhsa_kernel {NAME}_kernel
  .amdhsa_next_free_vgpr 128
  .amdhsa_next_free_sgpr 102
  .amdhsa_accum_offset 128
  .amdhsa_group_segment_fixed_size 0
  .amdhsa_kernarg_size 136
  .amdhsa_user_sgpr_count 2
  .amdhsa_user_sgpr_kernarg_segment_ptr 1
  .amdhsa_system_sgpr_workgroup_id_x 1
.end_amdhsa_kernel
"""
    return out

if __name__ == "__main__":
    p = argparse.ArgumentParser()
    p.add_argument("-o", default="cdna_kernels/" + NAME + ".s")
    for k, v in dict(stamps=0, la=6, batch=8, pre=15, prel=1, codepf=3, chain=3, trig=0, rhi=1, sidem=1, blk=8, k4=1, alow=1, e2=1, gate=0, nt=1, kmin=0, upf=0, nol=0, msleep=1, quarter=1,
                     ptop=2, pstep=3, lead=1, xprio=2, mord=1, lateb=1, defer=1, ktop=3, klead=0, thr=0, lup=0).items():
        p.add_argument("--" + k, type=int, default=v)
    opt = p.parse_args()
    open(opt.o, "w").write(generate(opt))
```

```python
import sys, argparse

NAME = "concat_heads__ssm_conv_s4d__ssm_conv_s4d__prompt"

PITCH = 288
STGW = 4896
CHB = 10752
OUTO, OFLO = 6144, 10240
FL = 6 * CHB
KA = FL + 1024
KCP = 2112
KCH = 4 * KCP
UB = KA + 6 * KCH
UCH = 4608
BOXL = UB + 6 * UCH
LDS_TOTAL = BOXL + 4096
ZD, ZX = 543, 1615
Z2 = [687 + 64 * m for m in range(4)]
Z3 = [991, 1071]
DUMMY = 1040

vPA, vCF, vONE, vOW = 0, 1, 2, 3
vU, vKF, vKT, vSR, vSL0, vSL1, vPW0 = 4, 5, 6, 7, 8, 9, 10
vKD, vRD = 11, 12
vAC, vAM = 14, 13
BOX = {3: 112, 5: 116, 7: 120, 9: 124}
vLF, vRF, vD = 20, 52, 68
vP = 36
vDT, vDSK, vC2 = 84, 85, 86
Z_, W_, ZZ, X_, Y_ = 88, 90, 92, 94, 96
T_ = [98, 99, 100, 101]
dF, dACC, dG, dPT, dOT, dFLG, dCN, dUT = 20, 84, 96, 12, 16, 18, 8, 10
dTH, dTT = 6, 19
lT2, lT3, lFX, lF5, lACC, lW, lG, lUT = 20, 44, 60, 64, 68, 92, 104, 7
mUD, mT, mIN, mSO = 20, 52, 60, 72
MF = "v_mfma_f32_16x16x32_bf16"

class Asm:
    def __init__(self): self.lines = []
    def __call__(self, s):
        for l in s.strip("\n").split("\n"):
            if not l.strip(): continue
            self.lines.append(l if l.rstrip().endswith(":") and not l.startswith(" ") else "    " + l.strip())
    def label(self, l): self.lines.append(l + ":")
    def text(self): return "\n".join(self.lines) + "\n"

def R(a, n=1): return f"v{a}" if n == 1 else f"v[{a}:{a+n-1}]"

def cmul(a, dst, x, m, conj=False):
    if not conj:
        a(f"v_pk_mul_f32 {R(dst,2)}, {R(x,2)}, {R(m,2)} op_sel:[0,0] op_sel_hi:[0,1]")
        a(f"v_pk_fma_f32 {R(dst,2)}, {R(x,2)}, {R(m,2)}, {R(dst,2)} op_sel:[1,1,0] op_sel_hi:[1,0,1] neg_lo:[0,1,0]")
    else:
        a(f"v_pk_mul_f32 {R(dst,2)}, {R(x,2)}, {R(m,2)} op_sel:[0,0] op_sel_hi:[0,1] neg_hi:[0,1]")
        a(f"v_pk_fma_f32 {R(dst,2)}, {R(x,2)}, {R(m,2)}, {R(dst,2)} op_sel:[1,1,0] op_sel_hi:[1,0,1]")

NST = 18
def stamp(a, opt, idx, wait=False):
    if opt.stamps and idx is not None:
        a(f"s_memtime s[{64+2*idx}:{65+2*idx}]")
        if wait: a("s_waitcnt lgkmcnt(0)")

class Frag:
    def __init__(self, kind, key, reg=None):
        self.kind, self.key, self.reg = kind, key, reg
        self.first = None; self.last = None; self.issued = False; self.seq = -1

def frag_reads(f):
    k = f.key
    if f.kind == "G": return [("ds_read_b128", f.reg, 4, vU, 512 + 2 * k)]
    if f.kind in ("F", "FX"):
        o = 2 * (ZD - 3 - k) if f.kind == "F" else 2 * (ZX - 3 - 1040)
        return [("ds_read_b64", f.reg, 2, vKF, o), ("ds_read_b64", f.reg + 2, 2, vKF, o + 8)]
    if f.kind == "T2":
        d, h = k
        return [("ds_read_b64", f.reg + 2 * j, 2, vKT, 2 * (Z2[2 * h + j] - 3 - 16 * d)) for j in range(2)]
    if f.kind == "T3":
        return [("ds_read_b64", f.reg + 2 * j, 2, vKT, 2 * (Z3[j] - 3 - 16 * k)) for j in range(2)]
    raise ValueError

class Stream:
    def __init__(self, a):
        self.a = a; self.n = 0; self.lds_n = 0; self.done = 0
    def ins(self, s, w=1): self.a(s); self.n += w
    def lds(self, s): self.ins(s); self.lds_n += 1; return self.lds_n
    def wait(self, seq):
        if seq > self.done:
            k = min(self.lds_n - seq, 15)
            self.ins(f"s_waitcnt lgkmcnt({k})"); self.done = self.lds_n - k
    def until(self, n):
        if self.n < n: self.ins(f"s_nop {n - self.n - 1}", n - self.n)
    def load(self, f):
        for (mn, d, n, ar, off) in frag_reads(f):
            f.seq = self.lds(f"{mn} {R(d,n)}, v{ar} offset:{off}")
        f.issued = True

STUBS = []
def wait_flags(a, reads, tag):
    rd = "\n".join(f"ds_read_b32 v{t}, v{vCF} offset:{o}" for t, o in reads)
    comb = "" if len(reads) == 1 else f"v_and_b32 v{reads[0][0]}, v{reads[0][0]}, v{reads[1][0]}\n"
    a.label(f"L_w_{tag}")
    a(f"{rd}\ns_waitcnt lgkmcnt(0)\n{comb}v_cmp_eq_u32 vcc, 0, v{reads[0][0]}\ns_cbranch_vccnz L_ws_{tag}")
    a.label(f"L_wd_{tag}")
    STUBS.append(f"L_ws_{tag}:\ns_sleep 1\ns_sub_u32 s34, s34, 1\ns_cbranch_scc0 L_w_{tag}\ns_branch L_wd_{tag}")

def flag_check(a, S, seq, tmp, off, tag, extra=""):
    S.wait(seq)
    S.ins(f"v_cmp_eq_u32 vcc, 0, v{tmp}")
    S.ins(f"s_cbranch_vccnz L_sp_{tag}")
    a.label(f"L_ok_{tag}")
    STUBS.append(f"""L_sp_{tag}:
s_sleep 1
ds_read_b32 v{tmp}, v{vCF} offset:{off}
{extra}s_waitcnt lgkmcnt(0)
s_sub_u32 s34, s34, 1
s_cbranch_scc1 L_ok_{tag}
v_cmp_eq_u32 vcc, 0, v{tmp}
s_cbranch_vccnz L_sp_{tag}
s_branch L_ok_{tag}""")

def cnt_check(a, S, seq, tmp, rd, val, tag, extra=""):
    S.wait(seq)
    S.ins(f"v_cmp_gt_u32 vcc, {val}, v{tmp}")
    S.ins(f"s_cbranch_vccnz L_sp_{tag}")
    a.label(f"L_ok_{tag}")
    STUBS.append(f"""L_sp_{tag}:
s_sleep 1
{rd}
{extra}s_waitcnt lgkmcnt(0)
s_sub_u32 s34, s34, 1
s_cbranch_scc1 L_ok_{tag}
v_cmp_gt_u32 vcc, {val}, v{tmp}
s_cbranch_vccnz L_sp_{tag}
s_branch L_ok_{tag}""")

def dprio(opt, t): return max(opt.ptop - t // opt.pstep, 0)

def emit_dense(a, opt, S, F):
    ops = []
    for tau in range(8):
        gs = [Frag("G", 256 * tau - 16 - 32 * s) for s in range(8)]
        for s in range(8): gs[s].tile = tau if s == 0 else None
        lag = opt.blk
        for s in range(8 + lag):
            if s < 8: ops.append((tau, F[16 + 32 * s], gs[s], tau == 0 and s == 0))
            if s == 7 and lag: ops.append(("end", tau))
            if tau < 7 and 0 <= s - lag < 8: ops.append((tau + 1, F[272 + 32 * (s - lag)], gs[s - lag], s == lag))
            if s == 7 and not lag: ops.append(("end", tau))
    gl = []
    for i, op in enumerate(ops):
        if op[0] == "end": continue
        for g in (op[1], op[2]):
            if g.first is None:
                g.first = i
                if not g.issued: gl.append(g)
            g.last = i
    endpos = {op[1]: i for i, op in enumerate(ops) if op[0] == "end"}
    tfirst = {g.tile: g.first for g in gl if g.kind == "G" and g.tile is not None}
    ring = [-1] * 8
    acc_last = {}
    side = []
    pinfo = {}
    PRD = f"ds_read_addtid_b32 v{dFLG} offset:{OFLO + 256}"
    def ptxt(t): return f"ds_read_b128 {R(dPT,4)}, v{vPA} offset:{(t-2)*1024}"
    def queue_out(t):
        ac = dACC + 4 * (t % 3)
        rn = acc_last[t] + 8
        if t >= 2:
            if not opt.nol:
                side.append((0, lambda: cnt_check(a, S, pinfo[t], dFLG, PRD, t, f"p{t}", ptxt(t) + "\n")))
            side.append((rn, lambda: (S.ins(f"v_add_f32 v{dPT}, v{dPT}, v{ac}"), S.ins(f"v_add_f32 v{dPT+1}, v{dPT+1}, v{ac+1}"))))
            side.append((rn, lambda: (S.ins(f"v_add_f32 v{dPT+2}, v{dPT+2}, v{ac+2}"), S.ins(f"v_add_f32 v{dPT+3}, v{dPT+3}, v{ac+3}"))))
            src = dPT
        else:
            src = ac
        side.append((rn, lambda: (S.ins(f"v_cvt_pk_bf16_f32 v{dOT}, v{src}, v{src+1}"), S.ins(f"v_cvt_pk_bf16_f32 v{dOT+1}, v{src+2}, v{src+3}"))))
        side.append((rn, lambda: (S.lds(f"ds_write_addtid_b32 v{dOT} offset:{OUTO + 512*t}"), S.ins(f"v_mov_b32 v{dCN}, {t+1}"))))
        side.append((rn, lambda: S.lds(f"ds_write_addtid_b32 v{dOT+1} offset:{OUTO + 512*t + 256}")))
        def fin():
            S.lds(f"ds_write_addtid_b32 v{dCN} offset:{OFLO}")
            if opt.stamps == 2:
                stamp(a, opt, 10 + t, True); S.done = S.lds_n
        side.append((rn, fin))
    pend = list(gl)
    useq = {}
    thr = {}
    for i, op in enumerate(ops):
        if opt.defer and i == 2:
            klseq = S.lds(f"ds_read_b32 v{dFLG}, v{vCF} offset:12")
        for t in range(1, 8):
            if t not in useq and i + opt.la + 3 >= tfirst[t]:
                useq[t] = S.lds(f"ds_read_b32 v{dUT}, v{vCF} offset:{16 + 4*t}")
        while pend and pend[0].first <= i + opt.la:
            if pend[0].kind == "F":
                if opt.defer and pend[0].key == 496: flag_check(a, S, klseq, dFLG, 12, "kl")
                S.load(pend.pop(0)); continue
            slot = next((s for s in range(8) if ring[s] < i), None)
            if slot is None:
                assert pend[0].first > i
                break
            g = pend.pop(0)
            if g.tile: flag_check(a, S, useq[g.tile], dUT, 16 + 4 * g.tile, f"du{g.tile}")
            ring[slot] = g.last; g.reg = dG + 4 * slot; S.load(g)
        for t in range(2, 8):
            if t not in pinfo and i >= endpos[t] - 3:
                while side:
                    rn, fn = side.pop(0); S.until(rn); fn()
                S.lds(PRD)
                pinfo[t] = S.lds(ptxt(t))
        if opt.thr:
            for t in range(opt.thr, 8):
                if t not in thr and i + 5 >= endpos[t - 1]:
                    thr[t] = S.lds(f"ds_read_b32 v{dTT}, v{dTH}")
        if op[0] == "end":
            t1 = op[1] + 1
            if opt.thr and opt.thr <= t1 < 8:
                S.wait(thr[t1])
                S.ins(f"v_cmp_gt_u32 vcc, {t1 - opt.thr + 1}, v{dTT}")
                S.ins(f"s_cbranch_vccnz L_th_{t1}")
                a.label(f"L_tk_{t1}")
                STUBS.append(f"""L_th_{t1}:
s_sleep 1
ds_read_b32 v{dTT}, v{dTH}
s_waitcnt lgkmcnt(0)
s_sub_u32 s34, s34, 1
s_cbranch_scc1 L_tk_{t1}
v_cmp_gt_u32 vcc, {t1 - opt.thr + 1}, v{dTT}
s_cbranch_vccnz L_th_{t1}
s_branch L_tk_{t1}""")
            queue_out(op[1])
            if op[1] < 7 and (dprio(opt, op[1] + 1) != dprio(opt, op[1]) or (opt.alow and op[1] == 1)): S.ins(f"s_setprio {dprio(opt, op[1] + 1)}")
            continue
        t, f, g, first = op
        S.wait(max(f.seq, g.seq))
        ac = dACC + 4 * (t % 3)
        S.ins(f"{MF} {R(ac,4)}, {R(f.reg,4)}, {R(g.reg,4)}, {'0' if first else R(ac,4)}")
        acc_last[t] = S.n
        isq0 = f.key < 272
        if opt.sidem == 0 or isq0 or opt.blk:
            if side and side[0][0] <= S.n: side.pop(0)[1]()
        if isq0 and t == 7 and side and side[0][0] <= S.n: side.pop(0)[1]()
        if opt.sidem == 0 and t == 7 and not isq0 and side and side[0][0] <= S.n: side.pop(0)[1]()
    while side:
        rn, fn = side.pop(0); S.until(rn); fn()

def level_frags():
    K = {}
    for d in (2, 3, 4):
        for h in (0, 1): K[("T2", d, h)] = Frag("T2", (d, h), lT2 + 4 * ((d - 2) * 2 + h))
    for d in (4, 5, 6): K[("T3", d)] = Frag("T3", d, lT3 + 4 * (d - 4))
    K[("T3", 7)] = Frag("T3", 7, lACC + 16)
    K["FX"] = Frag("FX", 0, lFX)
    K["F5"] = Frag("F", 528, lF5)
    return K
LORDER = ["FX", ("T2", 2, 0), ("T2", 3, 0), ("T2", 4, 0), ("T2", 2, 1), ("T2", 3, 1), ("T2", 4, 1), ("T3", 7), ("T3", 4), ("T3", 5), ("T3", 6)]

def emit_level(a, opt, S, K):
    acc = lambda t: lACC + 4 * (t - 2)
    inited = set(); acc_last = {}; vq = []; wr = {}; pubq = []
    def drain(k):
        while k > 0 and vq and vq[0][0] <= S.n:
            rn, txt, key = vq.pop(0); S.ins(txt); wr[key] = S.n + 2; k -= 1
    def force(key):
        while any(q[2] == key for q in vq):
            rn, txt, kk = vq.pop(0); S.until(rn); S.ins(txt); wr[kk] = S.n + 2
    def need(f):
        if not f.issued: S.load(f)
        S.wait(f.seq)
    def mf(d, A, B, c):
        S.ins(f"{MF} {R(d,4)}, {R(A,4)}, {R(B,4)}, {c}")
        n = S.n
        if pubq: pubflush()
        else: drain(1)
        return n
    def am(t, A, B):
        c = R(acc(t), 4) if t in inited else "0"
        inited.add(t)
        acc_last[t] = mf(acc(t), A, B, c)
    G0 = [Frag("G", 256 * b - 16, lG) for b in range(6)]
    GM = [Frag("G", 256 * b - 24, lG + 4) for b in range(6)]
    S.load(G0[0]); S.load(GM[0])
    lo = ["F5", "FX", ("T2", 2, 0), ("T2", 2, 1), ("T2", 3, 0), ("T2", 4, 0), ("T2", 3, 1), ("T2", 4, 1), ("T3", 7), ("T3", 4), ("T3", 5), ("T3", 6)] if opt.e2 else ["F5"] + LORDER
    lazy = [K[k] for k in lo if not K[k].issued]
    tsets = [[12, 16], [8, 56]]
    def publish(t):
        S.until(acc_last[t] + 8)
        S.lds(f"ds_write_b128 v{vPA}, {R(acc(t),4)} offset:{(t-2)*1024}")
        S.ins(f"v_mov_b32 v{vONE}, {t}")
        pubq.append(t)
    def pubflush():
        while pubq:
            t = pubq.pop(0)
            S.lds(f"ds_write_addtid_b32 v{vONE} offset:{OFLO + 256}")
            if opt.stamps == 2:
                stamp(a, opt, 10 + t, True); S.done = S.lds_n
    def uses(b, h, ds=None):
        if b < 0 or b > 5: return
        if h < 2: lst = [(b + d, K[("T2", d, h)]) for d in (ds or ((3, 4) if opt.e2 else (2, 3, 4))) if b + d <= 7]
        else: lst = [(b + d, K[("T3", d)]) for d in (7, 4, 5, 6) if b + d <= 7 and b <= 3]
        if lst: force((b, h))
        for t, f in lst:
            need(f); S.until(wr[(b, h)]); am(t, lW + 4 * h, f.reg)
    grp = 0; prevkey = None
    lp = lambda nb: min(dprio(opt, max(nb - opt.lead, 0)) + opt.lup, 3)
    for nb in range(7):
        b = nb - 1
        pairs = []
        if nb <= 5:
            g0, gm = G0[nb], GM[nb]
            pairs = [[(g0, 3), (g0, 5)], [(gm, 3), (gm, 5)]]
            if nb <= 3: pairs.append([(g0, 7), (gm, 9)])
        if nb > 0 and (lp(nb) != lp(nb - 1) or (opt.alow and nb == 2)): S.ins(f"s_setprio {lp(nb)}")
        for h in range(3):
            newv = []
            for _ in range(3):
                if lazy: S.load(lazy.pop(0))
            if h < len(pairs):
                tm = tsets[grp % 2]; grp += 1
                for q in list(vq):
                    if q[2] != prevkey: force(q[2])
                for j, (g, box) in enumerate(pairs[h]):
                    need(g)
                    n = mf(tm[j], g.reg, BOX[box], "0")
                    dst = lW + 4 * h + 2 * j
                    newv.append((n + 8, f"v_cvt_pk_bf16_f32 v{dst}, v{tm[j]}, v{tm[j]+1}", (nb, h)))
                    newv.append((n + 8, f"v_cvt_pk_bf16_f32 v{dst+1}, v{tm[j]+2}, v{tm[j]+3}", (nb, h)))
                if h == 0:
                    need(K["F5"]); am(nb + 2, K["F5"].reg, g0.reg)
                    if nb < 5: useq = S.lds(f"ds_read_b32 v{lUT}, v{vCF} offset:{16 + 4*(nb+1)}")
                if h == 1 and nb <= 3:
                    need(K["FX"]); am(nb + 4, K["FX"].reg, g0.reg)
                if h == len(pairs) - 1 and nb < 5:
                    flag_check(a, S, useq, lUT, 16 + 4 * (nb + 1), f"lu{nb+1}")
                    S.load(G0[nb + 1]); S.load(GM[nb + 1])
            if opt.e2:
                if h == 0 and b >= 0: uses(b, 1, (2,))
                uses(b, h)
                if h == 0 and b >= 0: publish(b + 2)
                if h == 2: uses(nb, 0, (2,))
            else:
                uses(b, h)
                if h == 2 and b >= 0: publish(b + 2)
            if newv:
                vq.extend(newv); prevkey = (nb, h)
    pubflush()

def kprio(a, opt, i):
    p = max(opt.ktop - i, opt.kmin)
    if opt.klead:
        a(f"s_setprio {max(p,0)}\ns_cbranch_scc0 L_kp{i}\ns_setprio {min(max(p,0)+1,3)}\nL_kp{i}:")
    else:
        a(f"s_setprio {max(p,0)}")

def pack64(vals, bits):
    c = 0
    for i, v in enumerate(vals): c |= v << (bits * i)
    return c & 0xffffffff, c >> 32

def generate(opt):
    a = Asm()
    hdr = open("cdna_kernels/" + NAME + ".s.ref").read().split("\n")
    top = [l for l in hdr if l.startswith(";") and "@launch" not in l and "Override launch" not in l and "grid=ceil" not in l]
    out = "\n".join(top) + "\n"
    out += f"; @launch grid=(200,1,1) block=(1024,1,1) lds={LDS_TOTAL}\n"
    out += f""".amdgcn_target "amdgcn-amd-amdhsa--gfx950"
.text
.globl {NAME}_kernel
.p2align 8
.type {NAME}_kernel,@function
{NAME}_kernel:
"""
    stamp(a, opt, 0)
    if opt.stamps: a("s_memrealtime s[100:101]")
    a(f"""
s_and_b32 s3, s2, 7
s_mul_i32 s3, s3, 25
s_lshr_b32 s4, s2, 3
s_add_u32 s3, s3, s4
s_cmp_ge_u32 s3, 99
s_cselect_b32 s6, 56, 0
s_load_dwordx16 s[16:31], s[0:1], s6
s_load_dwordx2 s[32:33], s[0:1], 112
""")
    if opt.codepf == 1:
        a(f"""
s_getpc_b64 s[52:53]
L_pc:
v_lshlrev_b32 v6, 7, v0
v_cmp_gt_u32 vcc, L_codeend-L_pc, v6
s_and_saveexec_b64 s[12:13], vcc
s_cbranch_execz L_nocpf
global_load_dword v102, v6, s[52:53]
L_nocpf:
s_mov_b64 exec, s[12:13]
s_cmp_ge_u32 s3, 99
""")
    a(f"""
v_lshrrev_b32 v2, 6, v0
s_cselect_b32 s7, 9, 0
s_cselect_b32 s48, 1152, 0
v_readfirstlane_b32 s44, v2
s_cmp_ge_u32 s2, 200
s_cbranch_scc1 L_end
s_cmp_ge_u32 s3, 198
s_cbranch_scc1 L_end
v_and_b32 v1, 63, v0
s_mul_i32 s4, s3, 5958
s_lshr_b32 s4, s4, 16
s_mul_i32 s5, s4, 11
s_sub_u32 s59, s3, s5
s_mul_i32 s5, s59, 6
s_min_u32 s5, s5, 58
s_sub_u32 s4, s4, s7
s_lshl_b32 s4, s4, 6
s_add_u32 s5, s5, s4
s_setprio 3
""")
    if opt.gate:
        a(f"""
v_mov_b32 v8, 0
v_mov_b32 v9, 0
v_mov_b32 v10, 0
v_mov_b32 v11, 0
v_lshlrev_b32 v7, 4, v1
ds_write_b128 v7, v[8:11] offset:{FL}
s_waitcnt lgkmcnt(0)
s_barrier
""")
    a(f"""
s_cmp_ge_u32 s44, 12
s_cbranch_scc1 L_mem0
s_sub_u32 s45, s44, 6
s_cmp_ge_u32 s44, 6
s_cselect_b32 s45, s45, s44
s_cselect_b32 s62, 1, 0
s_add_u32 s46, s5, s45
s_lshl_b32 s8, s46, 8
v_lshl_add_u32 v20, v1, 2, s8
s_lshl_b32 s8, s46, 1
s_and_b32 s8, s8, -4
s_waitcnt lgkmcnt(0)
global_load_dword v{vP}, v20, s[18:19]
global_load_dword v{vP+1}, v20, s[20:21]
global_load_dword v{vP+2}, v20, s[22:23]
global_load_dword v{vP+3}, v20, s[24:25]
s_load_dword s40, s[26:27], s8
s_load_dword s41, s[28:29], s8
""")
    if opt.codepf == 3:
        a("""
s_cmp_lt_u32 s44, 10
s_cbranch_scc1 L_nocpf
s_getpc_b64 s[52:53]
L_pc:
v_subrev_u32 v6, 640, v0
v_lshlrev_b32 v6, 7, v6
v_min_u32 v6, L_codeend-L_pc-4, v6
global_load_dword v87, v6, s[52:53]
L_nocpf:
""")
    if opt.gate:
        a(f"""
v_lshlrev_b32 v21, 2, v1
v_mov_b32 v{vONE}, 1
ds_add_u32 v21, v{vONE} offset:{FL + 768 - 65536 if False else 0}
""".replace("v21, v2 offset:0", "v21, v2 offset:%d" % (FL + 768)))
    if opt.stamps == 1: stamp(a, opt, 14)
    if not opt.lateb and not opt.gate: a("s_barrier")
    stamp(a, opt, 1)
    sl0 = pack64([0,1,2,3,4,5,6,7,8,8,10,11,11,11,14,15], 4)
    ta0 = pack64([2*(848-8), 2*(719-8), 2*(1008-8), 2*(927-8)], 16)
    ta1 = pack64([2*(655-8), 2*(783-8), 2*(976-8), 2*(895-8)], 16)
    a(f"""
s_mul_i32 s57, s45, {KCH}
s_add_u32 s57, s57, {KA}
s_lshl_b32 s8, s62, 12
s_add_u32 s8, s8, s57
v_mov_b32 v24, 0
v_mov_b32 v25, 0
v_mov_b32 v26, 0
v_mov_b32 v27, 0
v_lshl_add_u32 v23, v1, 4, s8
v_and_b32 v20, 15, v1
s_add_u32 s8, s57, 8192
v_lshl_add_u32 v22, v20, 4, s8
""")
    for k in range(4):
        a(f"ds_write_b128 v23, v[24:27] offset:{k*1024}")
    a(f"""
ds_write_b128 v22, v[24:27]
s_mov_b32 s34, 0x40000
s_mov_b32 s49, 0x01000c0c
s_cmp_lg_u32 s62, 0
s_cselect_b32 s49, 0x03020c0c, s49
v_mov_b32 v{vONE}, 1
s_mul_i32 s61, s45, {CHB}
s_mul_i32 s60, s62, {STGW}
s_add_u32 s60, s60, s61
s_mov_b32 m0, s60
s_mul_i32 s56, s45, {UCH}
s_add_u32 s56, s56, {UB}
s_mov_b32 s12, 0xbfb8aa3b
s_mov_b32 s13, 0x3e22f983
s_mov_b32 s14, 0x41000000
s_mov_b32 s15, 0x43800000
s_mov_b32 s63, 0x3fb8aa3b
s_mov_b32 s35, 0x7fff7fff
s_movk_i32 s9, {PITCH}
s_mov_b32 s10, {sl0[0]:#x}
s_mov_b32 s11, {sl0[1]:#x}
v_and_b32 v21, 48, v1
v_lshl_add_u32 v22, v20, 5, v21
v_add_u32 v{vU}, s56, v22
v_and_b32 v23, 3, v20
v_sub_u32 v23, 3, v23
v_mul_u32_u24 v23, {KCP}, v23
v_and_b32 v24, 12, v20
v_lshlrev_b32 v24, 1, v24
v_sub_u32 v23, v23, v24
v_add_u32 v23, s57, v23
v_add_u32 v{vKF}, v23, v21
v_lshrrev_b32 v24, 1, v21
v_add_u32 v{vKT}, v23, v24
v_add_u32 v24, s60, v21
v_mad_u32_u24 v{vSR}, v20, s9, v24
v_add_u32 v{vSL1}, {16*PITCH}, v24
v_lshlrev_b32 v25, 2, v20
v_lshrrev_b64 v[26:27], v25, s[10:11]
v_and_b32 v26, 15, v26
v_mad_u32_u24 v{vSL0}, v26, s9, v24
v_and_b32 v25, 32, v1
v_and_b32 v26, 16, v1
v_lshl_add_u32 v27, v25, 5, v26
v_lshl_add_u32 v27, v20, 5, v27
v_add_u32 v{vPW0}, s60, v27
v_lshl_add_u32 v{vPA}, v1, 4, s61
v_and_b32 v27, 1, v1
v_lshl_add_u32 v25, v27, 4, v25
v_and_b32 v27, 14, v1
v_lshl_add_u32 v27, v26, 1, v27
v_sub_u32 v27, s57, v27
s_mov_b32 s10, {ta1[0]:#x}
s_mov_b32 s11, {ta1[1]:#x}
s_cmp_lg_u32 s62, 0
s_cselect_b32 s10, {ta0[0]:#x}, s10
s_cselect_b32 s11, {ta0[1]:#x}, s11
v_lshrrev_b64 v[22:23], v25, s[10:11]
v_and_b32 v22, 0xffff, v22
v_add_u32 v{vAC}, v27, v22
s_cbranch_scc1 L_proL
s_add_u32 s8, s57, 1072
v_lshlrev_b32 v25, 4, v1
v_sub_u32 v{vKD}, s8, v25
v_lshl_add_u32 v{vRD}, v1, 5, s61
{"v_min_u32 v25, 5, v1" if opt.thr else ""}
{"v_mul_u32_u24 v25, %d, v25" % CHB if opt.thr else ""}
{"v_add_u32 v%d, %d, v25" % (dTH, OFLO) if opt.thr else ""}
s_branch L_prodone
L_proL:
s_add_u32 s8, s57, {2*DUMMY}
v_mov_b32 v{vAM}, s8
""")
    for lane, idx in ((0, ZD-511), (1, ZD-512), (2, ZD-513), (3, ZD-514), (16, Z3[1]-127), (32, ZX-1027), (33, ZX-1028), (34, Z2[3]-63), (48, ZD-509), (52, ZD-510)):
        a(f"s_add_u32 s8, s57, {2*idx}\nv_writelane_b32 v{vAM}, s8, {lane}")
    a(f"""
L_prodone:
{"s_barrier" if opt.lateb and not opt.gate else ""}
s_lshl_b32 s8, s45, 7
s_add_u32 s8, s8, {FL}
v_mov_b32 v{vCF}, s8
s_waitcnt lgkmcnt(0)
s_lshl_b32 s8, s40, 16
s_and_b32 s40, s40, 0xffff0000
s_lshl_b32 s9, s41, 16
s_and_b32 s41, s41, 0xffff0000
s_bitcmp0_b32 s46, 0
s_cselect_b32 s40, s8, s40
s_cselect_b32 s41, s9, s41
v_mov_b32 v{vDT}, s63
v_mov_b32 v{vDSK}, 0
v_mul_f32 v{vDT}, s40, v{vDT}
v_writelane_b32 v{vDSK}, s41, 0
v_exp_f32 v{vDT}, v{vDT}
s_cmp_lg_u32 s62, 0
""")
    stamp(a, opt, 2)
    if opt.codepf == 3:
        a("s_waitcnt vmcnt(1)\ns_cmp_ge_u32 s44, 10\ns_cbranch_scc1 L_pw\ns_waitcnt vmcnt(0)\nL_pw:\ns_cmp_lg_u32 s62, 0")
    else:
        a("s_waitcnt vmcnt(0)")
    stamp(a, opt, 3)
    if opt.chain: a(f"ds_write_b32 v{vCF}, v{vONE} offset:96")
    kprio(a, opt, 0)
    MH = "v_mfma_f32_16x16x32_f16"
    AB, CC, TA, TB, zf, wf, Zf, w2, w4, MX, MT = 52, 54, 56, 58, 60, 62, 64, 66, 68, 70, 71
    hz1, hz2, hz4, hZ1, hZ2, hZ4 = 88, 89, 90, 91, 92, 93
    RR = {j: 94 + j for j in range(1, 17)}
    LL = {}
    free = list(range(111, 128))
    def hmul(dst, x, m, conj=False):
        if not conj:
            a(f"v_pk_mul_f16 v{dst}, v{x}, v{m} op_sel:[0,0] op_sel_hi:[0,1]")
            a(f"v_pk_fma_f16 v{dst}, v{x}, v{m}, v{dst} op_sel:[1,1,0] op_sel_hi:[1,0,1] neg_lo:[0,1,0]")
        else:
            a(f"v_pk_mul_f16 v{dst}, v{x}, v{m} op_sel:[0,0] op_sel_hi:[0,1] neg_hi:[0,1]")
            a(f"v_pk_fma_f16 v{dst}, v{x}, v{m}, v{dst} op_sel:[1,1,0] op_sel_hi:[1,0,1]")
    dpp = lambda c, rm="0xf": f"v_max_u32_dpp v{MX}, v{MX}, v{MX} {c} row_mask:{rm} bank_mask:0xf"
    a(f"""
v_perm_b32 v{TA}, v{vP}, v{vP}, s49
v_and_b32 v{MX}, s35, v{vP+2}
v_mul_f32 v{TA}, s63, v{TA}
v_and_b32 v{MT}, s35, v{vP+3}
v_exp_f32 v{TA}, v{TA}
v_pk_max_u16 v{MX}, v{MX}, v{MT}
v_perm_b32 v{TA+1}, v{vP+1}, v{vP+1}, s49
v_lshlrev_b32 v{MT}, 16, v{MX}
v_cvt_pk_bf16_f32 v{vDT}, v{vDT}, v{TA}
v_max_u32 v{MX}, v{MX}, v{MT}
v_and_b32 v{TA}, 0xffff0000, v{vDT}
v_lshlrev_b32 v{vDT}, 16, v{vDT}
{dpp("row_shr:1")}
v_pk_mul_f32 {R(AB,2)}, {R(TA,2)}, {R(vDT,2)} op_sel_hi:[1,0]
v_pk_mul_f32 {R(AB,2)}, {R(AB,2)}, s[12:13]
{dpp("row_shr:2")}
v_pk_mul_f32 {R(TA,2)}, {R(AB,2)}, s[14:15] op_sel_hi:[1,0]
v_pk_mul_f32 {R(TB,2)}, {R(AB,2)}, s[14:15] op_sel:[0,1] op_sel_hi:[1,1]
{dpp("row_shr:4")}
v_fract_f32 v{AB+1}, v{AB+1}
v_exp_f32 v{AB}, v{AB}
{dpp("row_shr:8")}
v_cos_f32 v{zf}, v{AB+1}
v_sin_f32 v{zf+1}, v{AB+1}
{dpp("row_bcast:15", "0xa")}
v_fract_f32 v{TB+1}, v{TB+1}
v_pk_mul_f32 {R(zf,2)}, {R(zf,2)}, {R(AB,2)} op_sel_hi:[1,0]
{dpp("row_bcast:31", "0xc")}
v_exp_f32 v{TB}, v{TB}
v_cos_f32 v{Zf}, v{TB+1}
v_readlane_b32 s10, v{MX}, 63
v_sin_f32 v{Zf+1}, v{TB+1}
v_fract_f32 v{TA+1}, v{TA+1}
v_perm_b32 v{CC}, v{vP+2}, v{vP+2}, s49
s_and_b32 s10, s10, 0x7f800000
s_sub_u32 s8, 0x7f000000, s10
s_add_u32 s10, s10, 0x00800000
v_pk_mul_f32 {R(Zf,2)}, {R(Zf,2)}, {R(TB,2)} op_sel_hi:[1,0]
v_perm_b32 v{CC+1}, v{vP+3}, v{vP+3}, s49
v_exp_f32 v{TA}, v{TA}
v_cos_f32 v{wf}, v{TA+1}
v_sin_f32_e64 v{wf+1}, -v{TA+1}
v_pk_mul_f32 {R(CC,2)}, {R(CC,2)}, s[8:9] op_sel_hi:[1,0]
v_cvt_pk_f16_f32 v{hz1}, v{zf}, v{zf+1}
v_pk_mul_f32 {R(wf,2)}, {R(wf,2)}, {R(TA,2)} op_sel_hi:[1,0]
v_cvt_pk_f16_f32 v{hZ1}, v{Zf}, v{Zf+1}
v_mul_f32 v{vC2}, s10, v{vDT}
s_cmp_lg_u32 s62, 0
""")
    if opt.stamps == 1: stamp(a, opt, 10)
    pend = []
    def flush():
        for t, slot in pend: a(f"ds_write_addtid_b32 v{t} offset:{PITCH*slot}")
        pend.clear()
    def put(reg, slot):
        pend.append((reg, slot))
        if len(pend) == opt.batch: flush()
    rot = [0]
    def tmp():
        r = 120 + rot[0] % 8; rot[0] += 1; return r
    keep = {0: 111, 2: 112, 4: 113, 6: 114, 256: 115, 260: 116, 512: 117, 768: 118, 1024: 119}
    def L(b, src, m, slot, conj=False):
        dst = keep.get(b) or tmp()
        hmul(dst, src, m, conj); put(dst, slot)
    a(f"v_cvt_pk_f16_f32 v{keep[0]}, v{CC}, v{CC+1}"); put(keep[0], 0)
    hmul(hz2, hz1, hz1)
    a(f"v_cvt_pk_f16_f32 v{RR[1]}, v{wf}, v{wf+1}")
    L(1, keep[0], hz1, 1); L(2, keep[0], hz2, 2)
    hmul(hz4, hz2, hz2)
    L(3, keep[2], hz1, 3); L(4, keep[0], hz4, 4); L(5, keep[4], hz1, 5); L(6, keep[4], hz2, 6); L(7, keep[6], hz1, 7)
    L(256, keep[0], hZ1, 8); L(258, keep[2], hZ1, 10); L(260, keep[4], hZ1, 11); L(262, keep[6], hZ1, 14)
    L(264, keep[256], RR[1], 15, conj=True)
    flush()
    for k in range(4): a(f"ds_read_b128 {R(vLF+4*k,4)}, v{vSL0} offset:{64*k}")
    kprio(a, opt, 1)
    hmul(hZ2, hZ1, hZ1)
    cmul(a, w2, wf, wf)
    L(512, keep[0], hZ2, 0); L(516, keep[4], hZ2, 1); L(768, keep[256], hZ2, 4); L(772, keep[260], hZ2, 5)
    hmul(hZ4, hZ2, hZ2)
    cmul(a, w4, w2, w2)
    L(1024, keep[0], hZ4, 8); L(1280, keep[256], hZ4, 12); L(1536, keep[512], hZ4, 9); L(1792, keep[768], hZ4, 13); L(2048, keep[1024], hZ4, 6)
    flush()
    for k in range(4): a(f"ds_read_b128 {R(vLF+16+4*k,4)}, v{vSR} offset:{64*k}")
    if opt.stamps == 1: stamp(a, opt, 11)
    if opt.k4: kprio(a, opt, 2)
    t = tmp()
    a(f"v_mov_b32 v{t}, 0x3c00"); put(t, 0); put(RR[1], 1)
    a(f"v_cvt_pk_f16_f32 v{RR[2]}, v{w2}, v{w2+1}"); put(RR[2], 2)
    a(f"v_cvt_pk_f16_f32 v{RR[4]}, v{w4}, v{w4+1}"); put(RR[4], 4)
    hmul(RR[3], RR[1], RR[2]); put(RR[3], 3)
    hmul(RR[8], RR[4], RR[4]); put(RR[8], 8)
    for j in (5, 6, 7): hmul(RR[j], RR[j-4], RR[4]); put(RR[j], j)
    hmul(RR[16], RR[8], RR[8])
    if opt.rhi:
        a(f"ds_write_addtid_b32 v{RR[16]} offset:{PITCH*16}")
    for j in range(9, 16):
        hmul(RR[j], RR[j-8], RR[8]); put(RR[j], j)
        if j == 11 and not opt.k4: kprio(a, opt, 2)
    flush()
    if opt.rhi:
        WF = 104
        for k in range(4):
            a(f"ds_read_b128 {R(vRF+4*k,4)}, v{vSR} offset:{64*k}")
            a(f"ds_read_b128 {R(WF+4*k,4)}, v{vSL1} offset:{64*k}")
        if opt.stamps == 1: stamp(a, opt, 12, True)
        if opt.k4: kprio(a, opt, 3)
        else: a(f"s_setprio {opt.xprio}")
        def mm(n, k, m):
            dd = vD + 8 * m + 4 * n
            src = (vRF if n == 0 else WF) + 4 * k
            a(f"{MH} {R(dd,4)}, {R(vLF+16*m+4*k,4)}, {R(src,4)}, {'0' if k == 0 else R(dd,4)}")
        for k in range(4):
            a(f"s_waitcnt lgkmcnt({6-2*k})")
            for e in range(4):
                t = tmp(); x = vRF + 4 * k + e; m_ = WF + 4 * k + e
                a(f"v_pk_mul_f16 v{t}, v{x}, v{m_} op_sel:[0,0] op_sel_hi:[0,1]")
                a(f"v_pk_fma_f16 v{m_}, v{x}, v{m_}, v{t} op_sel:[1,1,0] op_sel_hi:[1,0,1] neg_lo:[0,1,0]")
                if e == 0: mm(0, k, 0)
                if e == 1 and k > 0: mm(1, k - 1, 0)
                if e == 2: mm(0, k, 1)
                if e == 3 and k > 0: mm(1, k - 1, 1)
        a("s_nop 1")
        mm(1, 3, 0); mm(1, 3, 1)
        a(f"s_setprio {opt.xprio}\ns_nop 0" if opt.k4 else "s_nop 1")
    else:
        for k in range(4): a(f"ds_read_b128 {R(vRF+4*k,4)}, v{vSR} offset:{64*k}")
        put(RR[16], 0)
        for j in range(17, 32):
            t = tmp()
            hmul(t, RR[j-16], RR[16]); put(t, j - 16)
            if j == 19:
                a(f"s_waitcnt lgkmcnt({4 - len(pend)})")
            if 19 <= j < 27:
                k, m = (j - 19) // 2, (j - 19) % 2
                dd = vD + 8 * m
                a(f"{MH} {R(dd,4)}, {R(vLF+16*m+4*k,4)}, {R(vRF+4*k,4)}, {'0' if k == 0 else R(dd,4)}")
        flush()
        if opt.stamps == 1: stamp(a, opt, 12, True)
        for k in range(4): a(f"ds_read_b128 {R(vRF+4*k,4)}, v{vSR} offset:{64*k}")
        a(f"s_setprio {opt.xprio}")
        for k in range(4):
            a(f"s_waitcnt lgkmcnt({3-k})")
            for m in range(2):
                dd = vD + 8 * m + 4
                a(f"{MH} {R(dd,4)}, {R(vLF+16*m+4*k,4)}, {R(vRF+4*k,4)}, {'0' if k == 0 else R(dd,4)}")
    a(f"""
ds_write_b128 v{vPW0}, {R(vD,4)}
s_cmp_lg_u32 s62, 0
s_cbranch_scc1 L_xL
ds_write_addtid_b32 v{vD+8} offset:2048
ds_write_addtid_b32 v{vD+10} offset:2560
s_nop 2
ds_write_b128 v{vPW0}, {R(vD+4,4)} offset:512
ds_write_addtid_b32 v{vD+12} offset:2304
ds_write_b32 v{vCF}, v{vONE}
""")
    if opt.stamps == 1: stamp(a, opt, 13)
    wait_flags(a, [(20, 4)], "pxd")
    stamp(a, opt, 4)
    A_, B_, Pv, E, O, E2, O2 = 88, 100, 96, 108, 112, 116, 120
    d = lambda k: A_ + k
    a(f"""
ds_read_b128 {R(A_+4,4)}, v{vRD} offset:16
ds_read_b128 {R(B_+4,4)}, v{vRD} offset:{STGW+16}
ds_read_b128 {R(A_,4)}, v{vRD}
ds_read_b128 {R(B_,4)}, v{vRD} offset:{STGW}
ds_read_addtid_b32 v20 offset:{STGW+2048}
ds_read_addtid_b32 v21 offset:{STGW+2304}
s_waitcnt lgkmcnt(4)
v_pk_add_f32 {R(A_+4,2)}, {R(A_+4,2)}, {R(B_+4,2)}
v_pk_add_f32 {R(A_+6,2)}, {R(A_+6,2)}, {R(B_+6,2)}
v_pk_mul_f32 {R(A_+4,2)}, {R(A_+4,2)}, {R(vC2,2)} op_sel_hi:[1,0]
v_pk_mul_f32 {R(A_+6,2)}, {R(A_+6,2)}, {R(vC2,2)} op_sel_hi:[1,0]
s_waitcnt lgkmcnt(2)
v_pk_add_f32 {R(A_,2)}, {R(A_,2)}, {R(B_,2)}
v_pk_add_f32 {R(A_+2,2)}, {R(A_+2,2)}, {R(B_+2,2)}
v_fma_f32 v{A_}, v{A_}, v{vC2}, v{vDSK}
v_mul_f32 v{A_+1}, v{A_+1}, v{vC2}
v_pk_mul_f32 {R(A_+2,2)}, {R(A_+2,2)}, {R(vC2,2)} op_sel_hi:[1,0]
v_mov_b32_dpp v{Pv}, v{d(5)} wave_shr:1 row_mask:0xf bank_mask:0xf bound_ctrl:0
v_mov_b32_dpp v{Pv+1}, v{d(6)} wave_shr:1 row_mask:0xf bank_mask:0xf bound_ctrl:0
v_mov_b32_dpp v{Pv+2}, v{d(7)} wave_shr:1 row_mask:0xf bank_mask:0xf bound_ctrl:0
v_cvt_pk_bf16_f32 v{E}, v{d(7)}, v{d(6)}
v_cvt_pk_bf16_f32 v{E+1}, v{d(5)}, v{d(4)}
v_cvt_pk_bf16_f32 v{E+2}, v{d(3)}, v{d(2)}
v_cvt_pk_bf16_f32 v{E+3}, v{d(1)}, v{d(0)}
ds_write_b128 v{vKD}, {R(E,4)}
v_cvt_pk_bf16_f32 v{O}, v{d(6)}, v{d(5)}
v_cvt_pk_bf16_f32 v{O+1}, v{d(4)}, v{d(3)}
v_cvt_pk_bf16_f32 v{O+2}, v{d(2)}, v{d(1)}
v_cvt_pk_bf16_f32 v{O+3}, v{d(0)}, v{Pv+2}
ds_write_b128 v{vKD}, {R(O,4)} offset:{KCP}
v_mov_b32 v{E2}, v{E+1}
v_mov_b32 v{E2+1}, v{E+2}
v_mov_b32 v{E2+2}, v{E+3}
v_cvt_pk_bf16_f32 v{E2+3}, v{Pv+2}, v{Pv+1}
ds_write_b128 v{vKD}, {R(E2,4)} offset:{2*KCP}
v_mov_b32 v{O2}, v{O+1}
v_mov_b32 v{O2+1}, v{O+2}
v_mov_b32 v{O2+2}, v{O+3}
v_cvt_pk_bf16_f32 v{O2+3}, v{Pv+1}, v{Pv}
ds_write_b128 v{vKD}, {R(O2,4)} offset:{3*KCP}
s_waitcnt lgkmcnt(4)
v_add_f32 v20, v20, v{vD+9}
v_add_f32 v21, v21, v{vD+13}
v_mul_f32 v20, v20, v{vC2}
v_mul_f32 v21, v21, v{vC2}
v_cvt_pk_bf16_f32 v20, v20, v21
""")
    for sg in range(4):
        a(f"ds_write_b16 v{vAC}, v20 offset:{sg*(KCP-2)+16}")
        a(f"ds_write_b16_d16_hi v{vAC}, v20 offset:{sg*(KCP-2)}")
    a(f"ds_write_b32 v{vCF}, v{vONE} offset:8")
    stamp(a, opt, 5)
    SD = Stream(a)
    F = {16 + 32 * s: Frag("F", 16 + 32 * s, dF + 4 * s) for s in range(16)}
    for k in range(opt.pre):
        SD.load(F[16 + 32 * k] if opt.blk else F[16 + 32 * (k // 2) + 256 * (k % 2)])
    a(f"s_setprio {dprio(opt, 0)}")
    if opt.alow: a(f"s_cmp_ge_u32 s45, 2\ns_cbranch_scc1 L_dl\ns_setprio {dprio(opt, 0) - 1}\nL_dl:")
    wait_flags(a, [(18, 16)] if opt.defer else [(18, 16), (19, 12)], "d")
    SD.done = SD.lds_n
    stamp(a, opt, 7, True)
    emit_dense(a, opt, SD, F)
    a("s_branch L_fin")
    a.label("L_xL")
    a(f"""
ds_write_addtid_b32 v{vD+9} offset:2048
v_mov_b32 v20, s61
s_nop 2
ds_write_b128 v{vPW0}, {R(vD+4,4)} offset:512
ds_write_addtid_b32 v{vD+13} offset:2304
ds_write_b32 v{vCF}, v{vONE} offset:4
s_mov_b32 m0, s61
""")
    if opt.stamps == 1: stamp(a, opt, 13)
    wait_flags(a, [(21, 0)], "pxl")
    stamp(a, opt, 4)
    n0, n1 = vD + 8, vD + 12
    a(f"""
ds_read_addtid_b32 v24 offset:2048
ds_read_addtid_b32 v25 offset:2304
ds_read_addtid_b32 v26 offset:2560
ds_read_b128 v[32:35], v20 offset:2032
ds_read_b128 v[36:39], v20 offset:{2032+STGW}
s_mov_b32 s8, -2
s_waitcnt lgkmcnt(2)
v_add_f32 v24, v24, v{n0}
v_add_f32 v25, v25, v{n1}
v_add_f32 v26, v26, v{n0+2}
v_mul_f32 v24, v24, v{vC2}
v_mul_f32 v25, v25, v{vC2}
v_mul_f32 v26, v26, v{vC2}
v_cvt_pk_bf16_f32 v40, v24, v25
v_mov_b32_dpp v42, v24 quad_perm:[0,0,0,0] row_mask:0x4 bank_mask:0xf
""")
    for sg in range(4):
        a(f"ds_write_b16_d16_hi v{vAC}, v40 offset:{sg*(KCP-2)}")
    a(f"""
s_waitcnt lgkmcnt(4)
v_mov_b32_dpp v42, v26 quad_perm:[0,1,2,3] row_mask:0x2 bank_mask:0xf
v_add_f32 v33, v33, v37
v_pk_add_f32 v[34:35], v[34:35], v[38:39]
v_mul_f32 v33, v33, v{vC2}
v_pk_mul_f32 v[34:35], v[34:35], {R(vC2,2)} op_sel_hi:[1,0]
s_mov_b32 exec_lo, s8
s_mov_b32 exec_hi, s8
""")
    for sg in range(4):
        a(f"ds_write_b16 v{vAC}, v40 offset:{sg*(KCP-2)+16}")
    a(f"""
s_mov_b64 exec, -1
v_mov_b32_dpp v42, v33 quad_perm:[0,1,2,3] row_mask:0x8 bank_mask:0x1
v_mov_b32_dpp v42, v34 quad_perm:[0,1,2,3] row_mask:0x8 bank_mask:0x2
v_mov_b32_dpp v42, v35 quad_perm:[0,1,2,3] row_mask:0x1 bank_mask:0xf
v_subrev_u32 v19, s61, v{vPA}
v_cvt_pk_bf16_f32 v42, v42, v42
v_add_u32 v19, {BOXL}, v19
""")
    for sg in range(4):
        a(f"ds_write_b16 v{vAM}, v42 offset:{sg*(KCP-2)}")
    a(f"ds_write_b32 v{vCF}, v{vONE} offset:12")
    stamp(a, opt, 5)
    SL = Stream(a)
    LK = level_frags()
    for k in LORDER[:opt.prel]:
        SL.load(LK[k])
    a(f"s_setprio {min(dprio(opt, 0) + opt.lup, 3)}")
    if opt.alow: a(f"s_cmp_ge_u32 s45, 2\ns_cbranch_scc1 L_ll\ns_setprio {dprio(opt, 0) - 1}\nL_ll:")
    wait_flags(a, [(16, 16), (17, 8)], "l")
    SL.done = SL.lds_n
    stamp(a, opt, 7, True)
    for j, wdt in enumerate((3, 5, 7, 9)):
        SL.lds(f"ds_read_b128 {R(BOX[wdt],4)}, v19 offset:{1024*j}")
    if not opt.nol: emit_level(a, opt, SL, LK)
    a("s_branch L_fin")
    a(f"""
L_mem0:
s_sub_u32 s45, s44, 12
v_mov_b32 v8, 0
v_mov_b32 v9, 0
v_mov_b32 v10, 0
v_mov_b32 v11, 0
v_lshlrev_b32 v7, 4, v1
{"" if opt.gate else "ds_write_b128 v7, v[8:11] offset:%d" % FL}
v_min_u32 v5, 5, v1
v_mul_u32_u24 v16, {CHB}, v5
ds_write_b32 v16, v8 offset:{OFLO}
ds_write_b32 v16, v8 offset:{OFLO + 256}
s_lshl_b32 s47, s5, 1
s_mul_i32 s9, s45, {512*1152}
s_add_u32 s9, s9, s47
s_add_u32 s10, s9, {256*1152}
v_mul_u32_u24 v19, {4*1152}, v1
""")
    if opt.mord:
        a("""
s_cmp_eq_u32 s45, 0
s_cbranch_scc1 L_mp
s_setprio 2
s_cmp_eq_u32 s45, 1
s_cbranch_scc1 L_mp
s_setprio 1
s_cmp_eq_u32 s45, 2
s_cbranch_scc1 L_mp
s_setprio 0
L_mp:
""")
    a(f"""
s_waitcnt lgkmcnt(0)
s_mov_b32 s18, {2048*1152}
s_mov_b32 s19, 0x00020000
""")
    if opt.stamps == 1: stamp(a, opt, 14)
    if opt.codepf == 2:
        a("""
s_getpc_b64 s[52:53]
L_pc:
v_lshlrev_b32 v6, 7, v1
v_add_u32 v7, 8192, v6
v_min_u32 v7, L_codeend-L_pc-4, v7
s_cmp_lg_u32 s45, 0
""")
    if opt.gate:
        a(f"""
s_mul_i32 s8, s59, 192
s_lshl_b32 s11, s45, 6
s_add_u32 s8, s8, s11
v_add_u32 v6, s8, v1
v_mul_u32_u24 v6, 1152, v6
v_mov_b32 v17, {FL + 768}
s_mov_b32 s36, 0x40000
L_gw:
ds_read_b32 v7, v17
s_waitcnt lgkmcnt(0)
s_sub_u32 s36, s36, 1
s_cbranch_scc1 L_gok
v_cmp_gt_u32 vcc, 12, v7
s_cbranch_vccz L_gok
s_sleep 1
s_branch L_gw
L_gok:
""")
        if opt.upf:
            a(f"""
s_cmp_eq_u32 s45, 3
s_cbranch_scc1 L_noupf
buffer_load_dword v13, v6, s[16:19], s47 offen
L_noupf:
""")
    else:
        a("s_barrier")
    if opt.codepf == 2:
        a("""
s_cbranch_scc1 L_nocpf
global_load_dword v12, v6, s[52:53]
global_load_dword v13, v7, s[52:53]
L_nocpf:
""")
    if opt.chain:
        a(f"""
s_cmp_lt_u32 s45, {opt.chain}
s_cbranch_scc1 L_chok
v_mov_b32 v6, {FL + 96 + 128*opt.trig}
s_mov_b32 s36, 0x40000
L_chw:
s_sleep 2
ds_read_b32 v7, v6
s_waitcnt lgkmcnt(0)
s_sub_u32 s36, s36, 1
s_cbranch_scc1 L_chok
v_cmp_eq_u32 vcc, 0, v7
s_cbranch_vccnz L_chw
L_chok:
""")
    stamp(a, opt, 1)
    for k in range(8):
        tile, e = k // 4, k % 4
        a(f"buffer_load_dwordx3 {R(mUD+4*k,3)}, v19, s[16:19], s{9+tile} offen offset:{e*1152}" + (" nt" if opt.nt else ""))
    stamp(a, opt, 2)
    a(f"""
s_setprio 3
""")
    a(f"""
v_and_b32 v4, 15, v1
v_lshrrev_b32 v15, 4, v1
s_cmp_lg_u32 s45, 0
s_cbranch_scc1 L_nobox
v_lshrrev_b32 v7, 5, v1
v_mul_u32_u24 v7, {UCH}, v7
v_and_b32 v6, 31, v1
v_lshl_add_u32 v6, v6, 4, v7
v_add_u32 v6, {UB}, v6
ds_write_b128 v6, v[8:11]
ds_write_b128 v6, v[8:11] offset:{2*UCH}
ds_write_b128 v6, v[8:11] offset:{4*UCH}
v_lshlrev_b32 v6, 3, v15
v_sub_u32 v6, v6, v4
v_add_u32 v6, 15, v6
v_min_u32 v6, 31, v6
s_mov_b32 s8, 0x8001
s_mov_b32 s12, 0x10001
s_mov_b32 s10, 0x3f80
v_lshlrev_b32 v17, 4, v1
v_add_u32 v17, {BOXL}, v17
""")
    for j, (wdt, lo) in enumerate(((3, 11), (5, 6), (7, 5), (9, 4))):
        a(f"s_mov_b32 s11, {((1<<wdt)-1) << (lo+15):#x}\nv_lshrrev_b32 v7, v6, s11")
        for w in range(4):
            d_ = 8 + w
            a(f"v_bfe_u32 v{d_}, v7, {2*w}, 2\nv_mul_u32_u24 v{d_}, s8, v{d_}\nv_and_b32 v{d_}, s12, v{d_}\nv_mul_u32_u24 v{d_}, s10, v{d_}")
        a(f"ds_write_b128 v17, v[8:11] offset:{1024*j}")
    a(f"""
L_nobox:
s_add_u32 s48, s48, s47
s_mov_b32 s34, {2048*2304}
s_mov_b32 s35, 0x00020000
s_mov_b32 s50, 0x05040100
s_mov_b32 s51, 0x07060302
s_mov_b32 s36, 0x40000
v_lshl_add_u32 v4, v4, 2, v15
v_mul_u32_u24 v18, {4*2304}, v4
s_lshl_b32 s8, s45, 10
s_add_u32 s8, s8, {UB + 512}
v_lshl_add_u32 v3, v1, 3, s8
v_add_u32 v18, s48, v18
s_lshl_b32 s8, s45, 3
s_add_u32 s8, s8, {FL + 16}
v_lshl_add_u32 v14, v5, 7, s8
v_mov_b32 v2, 1
""")
    stamp(a, opt, 4)
    for tile in range(2):
        a(f"s_waitcnt vmcnt({4 - 4*tile})")
        q = lambda e, m: mUD + 4 * (4 * tile + e) + m
        for m in range(3):
            for hi in range(2):
                t = mT + 2 * ((2 * m + hi) % 4)
                a(f"v_perm_b32 v{t}, v{q(1,m)}, v{q(0,m)}, s{50+hi}")
                a(f"v_perm_b32 v{t+1}, v{q(3,m)}, v{q(2,m)}, s{50+hi}")
                a(f"ds_write_b64 v3, {R(t,2)} offset:{(2*m+hi)*UCH + 512*tile}")
        a(f"ds_write_b32 v14, v2 offset:{4*tile}")
        stamp(a, opt, 6 if tile == 0 else 11)
    a(f"""
s_bitcmp1_b32 s45, 0
s_cselect_b32 s50, s51, s50
s_mul_i32 s57, s45, 2304
s_mov_b32 s56, 1
s_lshr_b32 s8, s45, 1
s_lshl_b32 s8, s8, 8
s_add_u32 s8, s8, {OUTO}
v_lshl_add_u32 v4, v1, 2, s8
L_mpoll:
ds_read_b32 v8, v16 offset:{OFLO}
s_waitcnt lgkmcnt(0)
v_cmp_gt_u32 vcc, s56, v8
s_cbranch_vccz L_mgo
s_sleep {opt.msleep}
s_sub_u32 s36, s36, 1
s_cbranch_scc0 L_mpoll
L_mgo:
""")
    for c in range(6):
        a(f"ds_read_b32 v{mIN+c}, v4 offset:{CHB*c}")
    a(f"v_add_u32 v4, 512, v4")
    for m in range(3):
        a(f"s_waitcnt lgkmcnt({4-2*m})")
        a(f"v_perm_b32 v{mSO+m}, v{mIN+2*m+1}, v{mIN+2*m}, s50")
    a(f"""
buffer_store_dwordx3 {R(mSO,3)}, v18, s[32:35], s57 offen
s_add_u32 s57, s57, {256*2304}
s_add_u32 s56, s56, 1
""")
    if opt.stamps:
        a(f"s_cmp_lg_u32 s56, 2\ns_cbranch_scc1 L_ms")
        stamp(a, opt, 10)
        a.label(f"L_ms")
    a(f"s_cmp_le_u32 s56, 8\ns_cbranch_scc1 L_mpoll")
    a.label("L_fin")
    if opt.stamps:
        stamp(a, opt, 8)
        a("s_waitcnt vmcnt(0)")
        stamp(a, opt, 9)
        a(f"""
s_load_dwordx2 s[8:9], s[0:1], 128
s_waitcnt lgkmcnt(0)
s_lshl_b32 s10, s2, 4
s_add_u32 s10, s10, s44
s_lshl_b32 s10, s10, 7
s_add_u32 s10, s10, {1<<20}
v_mov_b32 v20, s10
""")
        for k in range(1, NST):
            a(f"s_sub_u32 s11, s{64+2*k}, s64\nv_mov_b32 v21, s11\nglobal_store_dword v20, v21, s[8:9] offset:{4*k}")
        a("s_memrealtime s[10:11]\ns_waitcnt lgkmcnt(0)\nv_mov_b32 v21, s10\nglobal_store_dword v20, v21, s[8:9] offset:0")
        a("v_mov_b32 v21, s100\nglobal_store_dword v20, v21, s[8:9] offset:80")
        a("s_getreg_b32 s11, hwreg(HW_REG_HW_ID)\nv_mov_b32 v21, s11\nglobal_store_dword v20, v21, s[8:9] offset:84")
        a("s_getreg_b32 s11, hwreg(HW_REG_XCC_ID)\nv_mov_b32 v21, s11\nglobal_store_dword v20, v21, s[8:9] offset:88")
        a("v_mov_b32 v21, s64\nglobal_store_dword v20, v21, s[8:9] offset:92")
    if opt.amp:
        a(f"""
s_waitcnt vmcnt(0)
s_memtime s[82:83]
s_waitcnt lgkmcnt(0)
s_cmp_lg_u32 s2, {opt.ampg}
s_cbranch_scc1 L_end
s_cmp_lg_u32 s44, {opt.ampw}
s_cbranch_scc1 L_end
s_add_u32 s10, s82, {opt.amp}
L_amp:
s_memtime s[12:13]
s_waitcnt lgkmcnt(0)
s_sub_u32 s11, s12, s10
s_cmp_lt_i32 s11, 0
s_cbranch_scc1 L_amp
""")
    a.label("L_end")
    a("s_endpgm")
    for st in STUBS: a(st)
    a.label("L_codeend")
    out += a.text()
    out += f""".section .rodata,"a"
.p2align 6
.amdhsa_kernel {NAME}_kernel
  .amdhsa_next_free_vgpr 128
  .amdhsa_next_free_sgpr 102
  .amdhsa_accum_offset 128
  .amdhsa_group_segment_fixed_size 0
  .amdhsa_kernarg_size 136
  .amdhsa_user_sgpr_count 2
  .amdhsa_user_sgpr_kernarg_segment_ptr 1
  .amdhsa_system_sgpr_workgroup_id_x 1
.end_amdhsa_kernel
"""
    return out

if __name__ == "__main__":
    p = argparse.ArgumentParser()
    p.add_argument("-o", default="cdna_kernels/" + NAME + ".s")
    for k, v in dict(stamps=0, la=6, batch=8, pre=15, prel=1, codepf=3, chain=3, trig=0, rhi=1, sidem=1, blk=8, amp=0, ampg=0, ampw=15, k4=1, alow=1, e2=1, gate=0, nt=1, kmin=0, upf=0, nol=0, msleep=1, quarter=1,
                     ptop=2, pstep=3, lead=1, xprio=2, mord=1, lateb=1, defer=1, ktop=3, klead=0, thr=0, lup=0).items():
        p.add_argument("--" + k, type=int, default=v)
    opt = p.parse_args()
    open(opt.o, "w").write(generate(opt))
```

```python
import sys, argparse

NAME = "concat_heads__ssm_conv_s4d__ssm_conv_s4d__prompt"

PITCH = 288
STGW = 4896
CHB = 10752
OUTO, OFLO = 6144, 10240
FL = 6 * CHB
KA = FL + 1024
KCP = 2112
KCH = 4 * KCP
UB = KA + 6 * KCH
UCH = 4608
BOXL = UB + 6 * UCH
LDS_TOTAL = BOXL + 4096
ZD, ZX = 543, 1615
Z2 = [687 + 64 * m for m in range(4)]
Z3 = [991, 1071]
DUMMY = 1040

vPA, vCF, vONE, vOW = 0, 1, 2, 3
vU, vKF, vKT, vSR, vSL0, vSL1, vPW0 = 4, 5, 6, 7, 8, 9, 10
vKD, vRD = 11, 12
vAC, vAM = 14, 13
BOX = {3: 112, 5: 116, 7: 120, 9: 124}
vLF, vRF, vD = 20, 52, 68
vP = 36
vDT, vDSK, vC2 = 84, 85, 86
Z_, W_, ZZ, X_, Y_ = 88, 90, 92, 94, 96
T_ = [98, 99, 100, 101]
dF, dACC, dG, dPT, dOT, dFLG, dCN, dUT = 20, 84, 96, 12, 16, 18, 8, 10
dTH, dTT = 6, 19
lT2, lT3, lFX, lF5, lACC, lW, lG, lUT = 20, 44, 60, 64, 68, 92, 104, 7
mUD, mT, mIN, mSO = 20, 52, 60, 72
MF = "v_mfma_f32_16x16x32_bf16"

class Asm:
    def __init__(self): self.lines = []
    def __call__(self, s):
        for l in s.strip("\n").split("\n"):
            if not l.strip(): continue
            self.lines.append(l if l.rstrip().endswith(":") and not l.startswith(" ") else "    " + l.strip())
    def label(self, l): self.lines.append(l + ":")
    def text(self): return "\n".join(self.lines) + "\n"

def R(a, n=1): return f"v{a}" if n == 1 else f"v[{a}:{a+n-1}]"

def cmul(a, dst, x, m, conj=False):
    if not conj:
        a(f"v_pk_mul_f32 {R(dst,2)}, {R(x,2)}, {R(m,2)} op_sel:[0,0] op_sel_hi:[0,1]")
        a(f"v_pk_fma_f32 {R(dst,2)}, {R(x,2)}, {R(m,2)}, {R(dst,2)} op_sel:[1,1,0] op_sel_hi:[1,0,1] neg_lo:[0,1,0]")
    else:
        a(f"v_pk_mul_f32 {R(dst,2)}, {R(x,2)}, {R(m,2)} op_sel:[0,0] op_sel_hi:[0,1] neg_hi:[0,1]")
        a(f"v_pk_fma_f32 {R(dst,2)}, {R(x,2)}, {R(m,2)}, {R(dst,2)} op_sel:[1,1,0] op_sel_hi:[1,0,1]")

NST = 18
def stamp(a, opt, idx, wait=False):
    if opt.stamps and idx is not None:
        a(f"s_memtime s[{64+2*idx}:{65+2*idx}]")
        if wait: a("s_waitcnt lgkmcnt(0)")

class Frag:
    def __init__(self, kind, key, reg=None):
        self.kind, self.key, self.reg = kind, key, reg
        self.first = None; self.last = None; self.issued = False; self.seq = -1

def frag_reads(f):
    k = f.key
    if f.kind == "G": return [("ds_read_b128", f.reg, 4, vU, 512 + 2 * k)]
    if f.kind in ("F", "FX"):
        o = 2 * (ZD - 3 - k) if f.kind == "F" else 2 * (ZX - 3 - 1040)
        return [("ds_read_b64", f.reg, 2, vKF, o), ("ds_read_b64", f.reg + 2, 2, vKF, o + 8)]
    if f.kind == "T2":
        d, h = k
        return [("ds_read_b64", f.reg + 2 * j, 2, vKT, 2 * (Z2[2 * h + j] - 3 - 16 * d)) for j in range(2)]
    if f.kind == "T3":
        return [("ds_read_b64", f.reg + 2 * j, 2, vKT, 2 * (Z3[j] - 3 - 16 * k)) for j in range(2)]
    raise ValueError

class Stream:
    def __init__(self, a):
        self.a = a; self.n = 0; self.lds_n = 0; self.done = 0
    def ins(self, s, w=1): self.a(s); self.n += w
    def lds(self, s): self.ins(s); self.lds_n += 1; return self.lds_n
    def wait(self, seq):
        if seq > self.done:
            k = min(self.lds_n - seq, 15)
            self.ins(f"s_waitcnt lgkmcnt({k})"); self.done = self.lds_n - k
    def until(self, n):
        if self.n < n: self.ins(f"s_nop {n - self.n - 1}", n - self.n)
    def load(self, f):
        for (mn, d, n, ar, off) in frag_reads(f):
            f.seq = self.lds(f"{mn} {R(d,n)}, v{ar} offset:{off}")
        f.issued = True

STUBS = []
def wait_flags(a, reads, tag):
    rd = "\n".join(f"ds_read_b32 v{t}, v{vCF} offset:{o}" for t, o in reads)
    comb = "" if len(reads) == 1 else f"v_and_b32 v{reads[0][0]}, v{reads[0][0]}, v{reads[1][0]}\n"
    a.label(f"L_w_{tag}")
    a(f"{rd}\ns_waitcnt lgkmcnt(0)\n{comb}v_cmp_eq_u32 vcc, 0, v{reads[0][0]}\ns_cbranch_vccnz L_ws_{tag}")
    a.label(f"L_wd_{tag}")
    STUBS.append(f"L_ws_{tag}:\ns_sleep 1\ns_sub_u32 s34, s34, 1\ns_cbranch_scc0 L_w_{tag}\ns_branch L_wd_{tag}")

def flag_check(a, S, seq, tmp, off, tag, extra=""):
    S.wait(seq)
    S.ins(f"v_cmp_eq_u32 vcc, 0, v{tmp}")
    S.ins(f"s_cbranch_vccnz L_sp_{tag}")
    a.label(f"L_ok_{tag}")
    STUBS.append(f"""L_sp_{tag}:
s_sleep 1
ds_read_b32 v{tmp}, v{vCF} offset:{off}
{extra}s_waitcnt lgkmcnt(0)
s_sub_u32 s34, s34, 1
s_cbranch_scc1 L_ok_{tag}
v_cmp_eq_u32 vcc, 0, v{tmp}
s_cbranch_vccnz L_sp_{tag}
s_branch L_ok_{tag}""")

def cnt_check(a, S, seq, tmp, rd, val, tag, extra=""):
    S.wait(seq)
    S.ins(f"v_cmp_gt_u32 vcc, {val}, v{tmp}")
    S.ins(f"s_cbranch_vccnz L_sp_{tag}")
    a.label(f"L_ok_{tag}")
    STUBS.append(f"""L_sp_{tag}:
s_sleep 1
{rd}
{extra}s_waitcnt lgkmcnt(0)
s_sub_u32 s34, s34, 1
s_cbranch_scc1 L_ok_{tag}
v_cmp_gt_u32 vcc, {val}, v{tmp}
s_cbranch_vccnz L_sp_{tag}
s_branch L_ok_{tag}""")

def dprio(opt, t): return max(opt.ptop - t // opt.pstep, 0)

def emit_dense(a, opt, S, F):
    ops = []
    for tau in range(8):
        gs = [Frag("G", 256 * tau - 16 - 32 * s) for s in range(8)]
        for s in range(8): gs[s].tile = tau if s == 0 else None
        lag = opt.blk
        for s in range(8 + lag):
            if s < 8: ops.append((tau, F[16 + 32 * s], gs[s], tau == 0 and s == 0))
            if s == 7 and lag: ops.append(("end", tau))
            if tau < 7 and 0 <= s - lag < 8: ops.append((tau + 1, F[272 + 32 * (s - lag)], gs[s - lag], s == lag))
            if s == 7 and not lag: ops.append(("end", tau))
    gl = []
    for i, op in enumerate(ops):
        if op[0] == "end": continue
        for g in (op[1], op[2]):
            if g.first is None:
                g.first = i
                if not g.issued: gl.append(g)
            g.last = i
    endpos = {op[1]: i for i, op in enumerate(ops) if op[0] == "end"}
    tfirst = {g.tile: g.first for g in gl if g.kind == "G" and g.tile is not None}
    ring = [-1] * 8
    acc_last = {}
    side = []
    pinfo = {}
    PRD = f"ds_read_addtid_b32 v{dFLG} offset:{OFLO + 256}"
    def ptxt(t): return f"ds_read_b128 {R(dPT,4)}, v{vPA} offset:{(t-2)*1024}"
    def queue_out(t):
        ac = dACC + 4 * (t % 3)
        rn = acc_last[t] + 8
        if t >= 2:
            if not opt.nol:
                side.append((0, lambda: cnt_check(a, S, pinfo[t], dFLG, PRD, t, f"p{t}", ptxt(t) + "\n")))
            side.append((rn, lambda: (S.ins(f"v_add_f32 v{dPT}, v{dPT}, v{ac}"), S.ins(f"v_add_f32 v{dPT+1}, v{dPT+1}, v{ac+1}"))))
            side.append((rn, lambda: (S.ins(f"v_add_f32 v{dPT+2}, v{dPT+2}, v{ac+2}"), S.ins(f"v_add_f32 v{dPT+3}, v{dPT+3}, v{ac+3}"))))
            src = dPT
        else:
            src = ac
        side.append((rn, lambda: (S.ins(f"v_cvt_pk_bf16_f32 v{dOT}, v{src}, v{src+1}"), S.ins(f"v_cvt_pk_bf16_f32 v{dOT+1}, v{src+2}, v{src+3}"))))
        side.append((rn, lambda: (S.lds(f"ds_write_addtid_b32 v{dOT} offset:{OUTO + 512*t}"), S.ins(f"v_mov_b32 v{dCN}, {t+1}"))))
        side.append((rn, lambda: S.lds(f"ds_write_addtid_b32 v{dOT+1} offset:{OUTO + 512*t + 256}")))
        def fin():
            S.lds(f"ds_write_addtid_b32 v{dCN} offset:{OFLO}")
            if opt.stamps == 2:
                stamp(a, opt, 10 + t, True); S.done = S.lds_n
        side.append((rn, fin))
    pend = list(gl)
    useq = {}
    thr = {}
    for i, op in enumerate(ops):
        if opt.defer and i == 2:
            klseq = S.lds(f"ds_read_b32 v{dFLG}, v{vCF} offset:12")
        for t in range(1, 8):
            if t not in useq and i + opt.la + 3 >= tfirst[t]:
                useq[t] = S.lds(f"ds_read_b32 v{dUT}, v{vCF} offset:{16 + 4*t}")
        while pend and pend[0].first <= i + opt.la:
            if pend[0].kind == "F":
                if opt.defer and pend[0].key == 496: flag_check(a, S, klseq, dFLG, 12, "kl")
                S.load(pend.pop(0)); continue
            slot = next((s for s in range(8) if ring[s] < i), None)
            if slot is None:
                assert pend[0].first > i
                break
            g = pend.pop(0)
            if g.tile: flag_check(a, S, useq[g.tile], dUT, 16 + 4 * g.tile, f"du{g.tile}")
            ring[slot] = g.last; g.reg = dG + 4 * slot; S.load(g)
        for t in range(2, 8):
            if t not in pinfo and i >= endpos[t] - 3:
                while side:
                    rn, fn = side.pop(0); S.until(rn); fn()
                S.lds(PRD)
                pinfo[t] = S.lds(ptxt(t))
        if opt.thr:
            for t in range(opt.thr, 8):
                if t not in thr and i + 5 >= endpos[t - 1]:
                    thr[t] = S.lds(f"ds_read_b32 v{dTT}, v{dTH}")
        if op[0] == "end":
            t1 = op[1] + 1
            if opt.thr and opt.thr <= t1 < 8:
                S.wait(thr[t1])
                S.ins(f"v_cmp_gt_u32 vcc, {t1 - opt.thr + 1}, v{dTT}")
                S.ins(f"s_cbranch_vccnz L_th_{t1}")
                a.label(f"L_tk_{t1}")
                STUBS.append(f"""L_th_{t1}:
s_sleep 1
ds_read_b32 v{dTT}, v{dTH}
s_waitcnt lgkmcnt(0)
s_sub_u32 s34, s34, 1
s_cbranch_scc1 L_tk_{t1}
v_cmp_gt_u32 vcc, {t1 - opt.thr + 1}, v{dTT}
s_cbranch_vccnz L_th_{t1}
s_branch L_tk_{t1}""")
            queue_out(op[1])
            if op[1] < 7 and (dprio(opt, op[1] + 1) != dprio(opt, op[1]) or (opt.alow and op[1] == 1)): S.ins(f"s_setprio {dprio(opt, op[1] + 1)}")
            continue
        t, f, g, first = op
        S.wait(max(f.seq, g.seq))
        ac = dACC + 4 * (t % 3)
        S.ins(f"{MF} {R(ac,4)}, {R(f.reg,4)}, {R(g.reg,4)}, {'0' if first else R(ac,4)}")
        acc_last[t] = S.n
        isq0 = f.key < 272
        if opt.sidem == 0 or isq0 or opt.blk:
            if side and side[0][0] <= S.n: side.pop(0)[1]()
        if isq0 and t == 7 and side and side[0][0] <= S.n: side.pop(0)[1]()
        if opt.sidem == 0 and t == 7 and not isq0 and side and side[0][0] <= S.n: side.pop(0)[1]()
    while side:
        rn, fn = side.pop(0); S.until(rn); fn()

def level_frags():
    K = {}
    for d in (2, 3, 4):
        for h in (0, 1): K[("T2", d, h)] = Frag("T2", (d, h), lT2 + 4 * ((d - 2) * 2 + h))
    for d in (4, 5, 6): K[("T3", d)] = Frag("T3", d, lT3 + 4 * (d - 4))
    K[("T3", 7)] = Frag("T3", 7, lACC + 16)
    K["FX"] = Frag("FX", 0, lFX)
    K["F5"] = Frag("F", 528, lF5)
    return K
LORDER = ["FX", ("T2", 2, 0), ("T2", 3, 0), ("T2", 4, 0), ("T2", 2, 1), ("T2", 3, 1), ("T2", 4, 1), ("T3", 7), ("T3", 4), ("T3", 5), ("T3", 6)]

def emit_level(a, opt, S, K):
    acc = lambda t: lACC + 4 * (t - 2)
    inited = set(); acc_last = {}; vq = []; wr = {}; pubq = []
    def drain(k):
        while k > 0 and vq and vq[0][0] <= S.n:
            rn, txt, key = vq.pop(0); S.ins(txt); wr[key] = S.n + 2; k -= 1
    def force(key):
        while any(q[2] == key for q in vq):
            rn, txt, kk = vq.pop(0); S.until(rn); S.ins(txt); wr[kk] = S.n + 2
    def need(f):
        if not f.issued: S.load(f)
        S.wait(f.seq)
    def mf(d, A, B, c):
        S.ins(f"{MF} {R(d,4)}, {R(A,4)}, {R(B,4)}, {c}")
        n = S.n
        if pubq: pubflush()
        else: drain(1)
        return n
    def am(t, A, B):
        c = R(acc(t), 4) if t in inited else "0"
        inited.add(t)
        acc_last[t] = mf(acc(t), A, B, c)
    G0 = [Frag("G", 256 * b - 16, lG) for b in range(6)]
    GM = [Frag("G", 256 * b - 24, lG + 4) for b in range(6)]
    S.load(G0[0]); S.load(GM[0])
    lo = ["F5", "FX", ("T2", 2, 0), ("T2", 2, 1), ("T2", 3, 0), ("T2", 4, 0), ("T2", 3, 1), ("T2", 4, 1), ("T3", 7), ("T3", 4), ("T3", 5), ("T3", 6)] if opt.e2 else ["F5"] + LORDER
    lazy = [K[k] for k in lo if not K[k].issued]
    tsets = [[12, 16], [8, 56]]
    def publish(t):
        S.until(acc_last[t] + 8)
        S.lds(f"ds_write_b128 v{vPA}, {R(acc(t),4)} offset:{(t-2)*1024}")
        S.ins(f"v_mov_b32 v{vONE}, {t}")
        pubq.append(t)
    def pubflush():
        while pubq:
            t = pubq.pop(0)
            S.lds(f"ds_write_addtid_b32 v{vONE} offset:{OFLO + 256}")
            if opt.stamps == 2:
                stamp(a, opt, 10 + t, True); S.done = S.lds_n
    def uses(b, h, ds=None):
        if b < 0 or b > 5: return
        if h < 2: lst = [(b + d, K[("T2", d, h)]) for d in (ds or ((3, 4) if opt.e2 else (2, 3, 4))) if b + d <= 7]
        else: lst = [(b + d, K[("T3", d)]) for d in (7, 4, 5, 6) if b + d <= 7 and b <= 3]
        if lst: force((b, h))
        for t, f in lst:
            need(f); S.until(wr[(b, h)]); am(t, lW + 4 * h, f.reg)
    grp = 0; prevkey = None
    lp = lambda nb: min(dprio(opt, max(nb - opt.lead, 0)) + opt.lup, 3)
    for nb in range(7):
        b = nb - 1
        pairs = []
        if nb <= 5:
            g0, gm = G0[nb], GM[nb]
            pairs = [[(g0, 3), (g0, 5)], [(gm, 3), (gm, 5)]]
            if nb <= 3: pairs.append([(g0, 7), (gm, 9)])
        if nb > 0 and (lp(nb) != lp(nb - 1) or (opt.alow and nb == 2)): S.ins(f"s_setprio {lp(nb)}")
        for h in range(3):
            newv = []
            for _ in range(3):
                if lazy: S.load(lazy.pop(0))
            if h < len(pairs):
                tm = tsets[grp % 2]; grp += 1
                for q in list(vq):
                    if q[2] != prevkey: force(q[2])
                for j, (g, box) in enumerate(pairs[h]):
                    need(g)
                    n = mf(tm[j], g.reg, BOX[box], "0")
                    dst = lW + 4 * h + 2 * j
                    newv.append((n + 8, f"v_cvt_pk_bf16_f32 v{dst}, v{tm[j]}, v{tm[j]+1}", (nb, h)))
                    newv.append((n + 8, f"v_cvt_pk_bf16_f32 v{dst+1}, v{tm[j]+2}, v{tm[j]+3}", (nb, h)))
                if h == 0:
                    need(K["F5"]); am(nb + 2, K["F5"].reg, g0.reg)
                    if nb < 5: useq = S.lds(f"ds_read_b32 v{lUT}, v{vCF} offset:{16 + 4*(nb+1)}")
                if h == 1 and nb <= 3:
                    need(K["FX"]); am(nb + 4, K["FX"].reg, g0.reg)
                if h == len(pairs) - 1 and nb < 5:
                    flag_check(a, S, useq, lUT, 16 + 4 * (nb + 1), f"lu{nb+1}")
                    S.load(G0[nb + 1]); S.load(GM[nb + 1])
            if opt.e2:
                if h == 0 and b >= 0: uses(b, 1, (2,))
                uses(b, h)
                if h == 0 and b >= 0: publish(b + 2)
                if h == 2: uses(nb, 0, (2,))
            else:
                uses(b, h)
                if h == 2 and b >= 0: publish(b + 2)
            if newv:
                vq.extend(newv); prevkey = (nb, h)
    pubflush()

def kprio(a, opt, i):
    p = max(opt.ktop - i, opt.kmin)
    if opt.klead:
        a(f"s_setprio {max(p,0)}\ns_cbranch_scc0 L_kp{i}\ns_setprio {min(max(p,0)+1,3)}\nL_kp{i}:")
    else:
        a(f"s_setprio {max(p,0)}")

def pack64(vals, bits):
    c = 0
    for i, v in enumerate(vals): c |= v << (bits * i)
    return c & 0xffffffff, c >> 32

def generate(opt):
    a = Asm()
    hdr = open("cdna_kernels/" + NAME + ".s.ref").read().split("\n")
    top = [l for l in hdr if l.startswith(";") and "@launch" not in l and "Override launch" not in l and "grid=ceil" not in l]
    out = "\n".join(top) + "\n"
    out += f"; @launch grid=(200,1,1) block=(1024,1,1) lds={LDS_TOTAL}\n"
    out += f""".amdgcn_target "amdgcn-amd-amdhsa--gfx950"
.text
.globl {NAME}_kernel
.p2align 8
.type {NAME}_kernel,@function
{NAME}_kernel:
"""
    stamp(a, opt, 0)
    if opt.stamps: a("s_memrealtime s[100:101]")
    a(f"""
s_and_b32 s3, s2, 7
s_mul_i32 s3, s3, 25
s_lshr_b32 s4, s2, 3
s_add_u32 s3, s3, s4
s_cmp_ge_u32 s3, 99
s_cselect_b32 s6, 56, 0
s_load_dwordx16 s[16:31], s[0:1], s6
s_load_dwordx2 s[32:33], s[0:1], 112
""")
    if opt.codepf == 1:
        a(f"""
s_getpc_b64 s[52:53]
L_pc:
v_lshlrev_b32 v6, 7, v0
v_cmp_gt_u32 vcc, L_codeend-L_pc, v6
s_and_saveexec_b64 s[12:13], vcc
s_cbranch_execz L_nocpf
global_load_dword v102, v6, s[52:53]
L_nocpf:
s_mov_b64 exec, s[12:13]
s_cmp_ge_u32 s3, 99
""")
    a(f"""
v_lshrrev_b32 v2, 6, v0
s_cselect_b32 s7, 9, 0
s_cselect_b32 s48, 1152, 0
v_readfirstlane_b32 s44, v2
s_cmp_ge_u32 s2, 200
s_cbranch_scc1 L_end
s_cmp_ge_u32 s3, 198
s_cbranch_scc1 L_end
v_and_b32 v1, 63, v0
s_mul_i32 s4, s3, 5958
s_lshr_b32 s4, s4, 16
s_mul_i32 s5, s4, 11
s_sub_u32 s59, s3, s5
s_mul_i32 s5, s59, 6
s_min_u32 s5, s5, 58
s_sub_u32 s4, s4, s7
s_lshl_b32 s4, s4, 6
s_add_u32 s5, s5, s4
s_setprio 3
""")
    if opt.gate:
        a(f"""
v_mov_b32 v8, 0
v_mov_b32 v9, 0
v_mov_b32 v10, 0
v_mov_b32 v11, 0
v_lshlrev_b32 v7, 4, v1
ds_write_b128 v7, v[8:11] offset:{FL}
s_waitcnt lgkmcnt(0)
s_barrier
""")
    a(f"""
s_cmp_ge_u32 s44, 12
s_cbranch_scc1 L_mem0
s_sub_u32 s45, s44, 6
s_cmp_ge_u32 s44, 6
s_cselect_b32 s45, s45, s44
s_cselect_b32 s62, 1, 0
s_add_u32 s46, s5, s45
s_lshl_b32 s8, s46, 8
v_lshl_add_u32 v20, v1, 2, s8
s_lshl_b32 s8, s46, 1
s_and_b32 s8, s8, -4
s_waitcnt lgkmcnt(0)
global_load_dword v{vP}, v20, s[18:19]
global_load_dword v{vP+1}, v20, s[20:21]
global_load_dword v{vP+2}, v20, s[22:23]
global_load_dword v{vP+3}, v20, s[24:25]
s_load_dword s40, s[26:27], s8
s_load_dword s41, s[28:29], s8
""")
    if opt.codepf == 3:
        a("""
s_cmp_lt_u32 s44, 10
s_cbranch_scc1 L_nocpf
s_getpc_b64 s[52:53]
L_pc:
v_subrev_u32 v6, 640, v0
v_lshlrev_b32 v6, 7, v6
v_min_u32 v6, L_codeend-L_pc-4, v6
global_load_dword v87, v6, s[52:53]
L_nocpf:
""")
    if opt.gate:
        a(f"""
v_lshlrev_b32 v21, 2, v1
v_mov_b32 v{vONE}, 1
ds_add_u32 v21, v{vONE} offset:{FL + 768 - 65536 if False else 0}
""".replace("v21, v2 offset:0", "v21, v2 offset:%d" % (FL + 768)))
    if opt.stamps == 1: stamp(a, opt, 14)
    if not opt.lateb and not opt.gate: a("s_barrier")
    stamp(a, opt, 1)
    sl0 = pack64([0,1,2,3,4,5,6,7,8,8,10,11,11,11,14,15], 4)
    ta0 = pack64([2*(848-8), 2*(719-8), 2*(1008-8), 2*(927-8)], 16)
    ta1 = pack64([2*(655-8), 2*(783-8), 2*(976-8), 2*(895-8)], 16)
    a(f"""
s_mul_i32 s57, s45, {KCH}
s_add_u32 s57, s57, {KA}
s_lshl_b32 s8, s62, 12
s_add_u32 s8, s8, s57
v_mov_b32 v24, 0
v_mov_b32 v25, 0
v_mov_b32 v26, 0
v_mov_b32 v27, 0
v_lshl_add_u32 v23, v1, 4, s8
v_and_b32 v20, 15, v1
s_add_u32 s8, s57, 8192
v_lshl_add_u32 v22, v20, 4, s8
""")
    for k in range(4):
        a(f"ds_write_b128 v23, v[24:27] offset:{k*1024}")
    a(f"""
ds_write_b128 v22, v[24:27]
s_mov_b32 s34, 0x40000
s_mov_b32 s49, 0x01000c0c
s_cmp_lg_u32 s62, 0
s_cselect_b32 s49, 0x03020c0c, s49
v_mov_b32 v{vONE}, 1
s_mul_i32 s61, s45, {CHB}
s_mul_i32 s60, s62, {STGW}
s_add_u32 s60, s60, s61
s_mov_b32 m0, s60
s_mul_i32 s56, s45, {UCH}
s_add_u32 s56, s56, {UB}
s_mov_b32 s12, 0xbfb8aa3b
s_mov_b32 s13, 0x3e22f983
s_mov_b32 s14, 0x41000000
s_mov_b32 s15, 0x43800000
s_mov_b32 s63, 0x3fb8aa3b
s_mov_b32 s35, 0x7fff7fff
s_movk_i32 s9, {PITCH}
s_mov_b32 s10, {sl0[0]:#x}
s_mov_b32 s11, {sl0[1]:#x}
v_and_b32 v21, 48, v1
v_lshl_add_u32 v22, v20, 5, v21
v_add_u32 v{vU}, s56, v22
v_and_b32 v23, 3, v20
v_sub_u32 v23, 3, v23
v_mul_u32_u24 v23, {KCP}, v23
v_and_b32 v24, 12, v20
v_lshlrev_b32 v24, 1, v24
v_sub_u32 v23, v23, v24
v_add_u32 v23, s57, v23
v_add_u32 v{vKF}, v23, v21
v_lshrrev_b32 v24, 1, v21
v_add_u32 v{vKT}, v23, v24
v_add_u32 v24, s60, v21
v_mad_u32_u24 v{vSR}, v20, s9, v24
v_add_u32 v{vSL1}, {16*PITCH}, v24
v_lshlrev_b32 v25, 2, v20
v_lshrrev_b64 v[26:27], v25, s[10:11]
v_and_b32 v26, 15, v26
v_mad_u32_u24 v{vSL0}, v26, s9, v24
v_and_b32 v25, 32, v1
v_and_b32 v26, 16, v1
v_lshl_add_u32 v27, v25, 5, v26
v_lshl_add_u32 v27, v20, 5, v27
v_add_u32 v{vPW0}, s60, v27
v_lshl_add_u32 v{vPA}, v1, 4, s61
v_and_b32 v27, 1, v1
v_lshl_add_u32 v25, v27, 4, v25
v_and_b32 v27, 14, v1
v_lshl_add_u32 v27, v26, 1, v27
v_sub_u32 v27, s57, v27
s_mov_b32 s10, {ta1[0]:#x}
s_mov_b32 s11, {ta1[1]:#x}
s_cmp_lg_u32 s62, 0
s_cselect_b32 s10, {ta0[0]:#x}, s10
s_cselect_b32 s11, {ta0[1]:#x}, s11
v_lshrrev_b64 v[22:23], v25, s[10:11]
v_and_b32 v22, 0xffff, v22
v_add_u32 v{vAC}, v27, v22
s_cbranch_scc1 L_proL
s_add_u32 s8, s57, 1072
v_lshlrev_b32 v25, 4, v1
v_sub_u32 v{vKD}, s8, v25
v_lshl_add_u32 v{vRD}, v1, 5, s61
{"v_min_u32 v25, 5, v1" if opt.thr else ""}
{"v_mul_u32_u24 v25, %d, v25" % CHB if opt.thr else ""}
{"v_add_u32 v%d, %d, v25" % (dTH, OFLO) if opt.thr else ""}
s_branch L_prodone
L_proL:
s_add_u32 s8, s57, {2*DUMMY}
v_mov_b32 v{vAM}, s8
""")
    for lane, idx in ((0, ZD-511), (1, ZD-512), (2, ZD-513), (3, ZD-514), (16, Z3[1]-127), (32, ZX-1027), (33, ZX-1028), (34, Z2[3]-63), (48, ZD-509), (52, ZD-510)):
        a(f"s_add_u32 s8, s57, {2*idx}\nv_writelane_b32 v{vAM}, s8, {lane}")
    a(f"""
L_prodone:
{"s_barrier" if opt.lateb and not opt.gate else ""}
s_lshl_b32 s8, s45, 7
s_add_u32 s8, s8, {FL}
v_mov_b32 v{vCF}, s8
s_waitcnt lgkmcnt(0)
s_lshl_b32 s8, s40, 16
s_and_b32 s40, s40, 0xffff0000
s_lshl_b32 s9, s41, 16
s_and_b32 s41, s41, 0xffff0000
s_bitcmp0_b32 s46, 0
s_cselect_b32 s40, s8, s40
s_cselect_b32 s41, s9, s41
v_mov_b32 v{vDT}, s63
v_mov_b32 v{vDSK}, 0
v_mul_f32 v{vDT}, s40, v{vDT}
v_writelane_b32 v{vDSK}, s41, 0
v_exp_f32 v{vDT}, v{vDT}
s_cmp_lg_u32 s62, 0
""")
    stamp(a, opt, 2)
    if opt.codepf == 3:
        a("s_waitcnt vmcnt(1)\ns_cmp_ge_u32 s44, 10\ns_cbranch_scc1 L_pw\ns_waitcnt vmcnt(0)\nL_pw:\ns_cmp_lg_u32 s62, 0")
    else:
        a("s_waitcnt vmcnt(0)")
    stamp(a, opt, 3)
    if opt.chain: a(f"ds_write_b32 v{vCF}, v{vONE} offset:96")
    kprio(a, opt, 0)
    MH = "v_mfma_f32_16x16x32_f16"
    AB, CC, TA, TB, zf, wf, Zf, w2, w4, MX, MT = 52, 54, 56, 58, 60, 62, 64, 66, 68, 70, 71
    hz1, hz2, hz4, hZ1, hZ2, hZ4 = 88, 89, 90, 91, 92, 93
    RR = {j: 94 + j for j in range(1, 17)}
    LL = {}
    free = list(range(111, 128))
    def hmul(dst, x, m, conj=False):
        if not conj:
            a(f"v_pk_mul_f16 v{dst}, v{x}, v{m} op_sel:[0,0] op_sel_hi:[0,1]")
            a(f"v_pk_fma_f16 v{dst}, v{x}, v{m}, v{dst} op_sel:[1,1,0] op_sel_hi:[1,0,1] neg_lo:[0,1,0]")
        else:
            a(f"v_pk_mul_f16 v{dst}, v{x}, v{m} op_sel:[0,0] op_sel_hi:[0,1] neg_hi:[0,1]")
            a(f"v_pk_fma_f16 v{dst}, v{x}, v{m}, v{dst} op_sel:[1,1,0] op_sel_hi:[1,0,1]")
    dpp = lambda c, rm="0xf": f"v_max_u32_dpp v{MX}, v{MX}, v{MX} {c} row_mask:{rm} bank_mask:0xf"
    a(f"""
v_perm_b32 v{TA}, v{vP}, v{vP}, s49
v_and_b32 v{MX}, s35, v{vP+2}
v_mul_f32 v{TA}, s63, v{TA}
v_and_b32 v{MT}, s35, v{vP+3}
v_exp_f32 v{TA}, v{TA}
v_pk_max_u16 v{MX}, v{MX}, v{MT}
v_perm_b32 v{TA+1}, v{vP+1}, v{vP+1}, s49
v_lshlrev_b32 v{MT}, 16, v{MX}
v_cvt_pk_bf16_f32 v{vDT}, v{vDT}, v{TA}
v_max_u32 v{MX}, v{MX}, v{MT}
v_and_b32 v{TA}, 0xffff0000, v{vDT}
v_lshlrev_b32 v{vDT}, 16, v{vDT}
{dpp("row_shr:1")}
v_pk_mul_f32 {R(AB,2)}, {R(TA,2)}, {R(vDT,2)} op_sel_hi:[1,0]
v_pk_mul_f32 {R(AB,2)}, {R(AB,2)}, s[12:13]
{dpp("row_shr:2")}
v_pk_mul_f32 {R(TA,2)}, {R(AB,2)}, s[14:15] op_sel_hi:[1,0]
v_pk_mul_f32 {R(TB,2)}, {R(AB,2)}, s[14:15] op_sel:[0,1] op_sel_hi:[1,1]
{dpp("row_shr:4")}
v_fract_f32 v{AB+1}, v{AB+1}
v_exp_f32 v{AB}, v{AB}
{dpp("row_shr:8")}
v_cos_f32 v{zf}, v{AB+1}
v_sin_f32 v{zf+1}, v{AB+1}
{dpp("row_bcast:15", "0xa")}
v_fract_f32 v{TB+1}, v{TB+1}
v_pk_mul_f32 {R(zf,2)}, {R(zf,2)}, {R(AB,2)} op_sel_hi:[1,0]
{dpp("row_bcast:31", "0xc")}
v_exp_f32 v{TB}, v{TB}
v_cos_f32 v{Zf}, v{TB+1}
v_readlane_b32 s10, v{MX}, 63
v_sin_f32 v{Zf+1}, v{TB+1}
v_fract_f32 v{TA+1}, v{TA+1}
v_perm_b32 v{CC}, v{vP+2}, v{vP+2}, s49
s_and_b32 s10, s10, 0x7f800000
s_sub_u32 s8, 0x7f000000, s10
s_add_u32 s10, s10, 0x00800000
v_pk_mul_f32 {R(Zf,2)}, {R(Zf,2)}, {R(TB,2)} op_sel_hi:[1,0]
v_perm_b32 v{CC+1}, v{vP+3}, v{vP+3}, s49
v_exp_f32 v{TA}, v{TA}
v_cos_f32 v{wf}, v{TA+1}
v_sin_f32_e64 v{wf+1}, -v{TA+1}
v_pk_mul_f32 {R(CC,2)}, {R(CC,2)}, s[8:9] op_sel_hi:[1,0]
v_cvt_pk_f16_f32 v{hz1}, v{zf}, v{zf+1}
v_pk_mul_f32 {R(wf,2)}, {R(wf,2)}, {R(TA,2)} op_sel_hi:[1,0]
v_cvt_pk_f16_f32 v{hZ1}, v{Zf}, v{Zf+1}
v_mul_f32 v{vC2}, s10, v{vDT}
s_cmp_lg_u32 s62, 0
""")
    if opt.stamps == 1: stamp(a, opt, 10)
    pend = []
    def flush():
        for t, slot in pend: a(f"ds_write_addtid_b32 v{t} offset:{PITCH*slot}")
        pend.clear()
    def put(reg, slot):
        pend.append((reg, slot))
        if len(pend) == opt.batch: flush()
    rot = [0]
    def tmp():
        r = 120 + rot[0] % 8; rot[0] += 1; return r
    keep = {0: 111, 2: 112, 4: 113, 6: 114, 256: 115, 260: 116, 512: 117, 768: 118, 1024: 119}
    def L(b, src, m, slot, conj=False):
        dst = keep.get(b) or tmp()
        hmul(dst, src, m, conj); put(dst, slot)
    a(f"v_cvt_pk_f16_f32 v{keep[0]}, v{CC}, v{CC+1}"); put(keep[0], 0)
    hmul(hz2, hz1, hz1)
    a(f"v_cvt_pk_f16_f32 v{RR[1]}, v{wf}, v{wf+1}")
    L(1, keep[0], hz1, 1); L(2, keep[0], hz2, 2)
    hmul(hz4, hz2, hz2)
    L(3, keep[2], hz1, 3); L(4, keep[0], hz4, 4); L(5, keep[4], hz1, 5); L(6, keep[4], hz2, 6); L(7, keep[6], hz1, 7)
    L(256, keep[0], hZ1, 8); L(258, keep[2], hZ1, 10); L(260, keep[4], hZ1, 11); L(262, keep[6], hZ1, 14)
    L(264, keep[256], RR[1], 15, conj=True)
    flush()
    for k in range(4): a(f"ds_read_b128 {R(vLF+4*k,4)}, v{vSL0} offset:{64*k}")
    kprio(a, opt, 1)
    hmul(hZ2, hZ1, hZ1)
    cmul(a, w2, wf, wf)
    L(512, keep[0], hZ2, 0); L(516, keep[4], hZ2, 1); L(768, keep[256], hZ2, 4); L(772, keep[260], hZ2, 5)
    hmul(hZ4, hZ2, hZ2)
    cmul(a, w4, w2, w2)
    L(1024, keep[0], hZ4, 8); L(1280, keep[256], hZ4, 12); L(1536, keep[512], hZ4, 9); L(1792, keep[768], hZ4, 13); L(2048, keep[1024], hZ4, 6)
    flush()
    for k in range(4): a(f"ds_read_b128 {R(vLF+16+4*k,4)}, v{vSR} offset:{64*k}")
    if opt.stamps == 1: stamp(a, opt, 11)
    if opt.k4: kprio(a, opt, 2)
    t = tmp()
    a(f"v_mov_b32 v{t}, 0x3c00"); put(t, 0); put(RR[1], 1)
    a(f"v_cvt_pk_f16_f32 v{RR[2]}, v{w2}, v{w2+1}"); put(RR[2], 2)
    a(f"v_cvt_pk_f16_f32 v{RR[4]}, v{w4}, v{w4+1}"); put(RR[4], 4)
    hmul(RR[3], RR[1], RR[2]); put(RR[3], 3)
    hmul(RR[8], RR[4], RR[4]); put(RR[8], 8)
    for j in (5, 6, 7): hmul(RR[j], RR[j-4], RR[4]); put(RR[j], j)
    hmul(RR[16], RR[8], RR[8])
    if opt.rhi:
        a(f"ds_write_addtid_b32 v{RR[16]} offset:{PITCH*16}")
    for j in range(9, 16):
        hmul(RR[j], RR[j-8], RR[8]); put(RR[j], j)
        if j == 11 and not opt.k4: kprio(a, opt, 2)
    flush()
    if opt.rhi:
        WF = 104
        for k in range(4):
            a(f"ds_read_b128 {R(vRF+4*k,4)}, v{vSR} offset:{64*k}")
            a(f"ds_read_b128 {R(WF+4*k,4)}, v{vSL1} offset:{64*k}")
        if opt.stamps == 1: stamp(a, opt, 12, True)
        if opt.k4: kprio(a, opt, 3)
        else: a(f"s_setprio {opt.xprio}")
        def mm(n, k, m):
            dd = vD + 8 * m + 4 * n
            src = (vRF if n == 0 else WF) + 4 * k
            a(f"{MH} {R(dd,4)}, {R(vLF+16*m+4*k,4)}, {R(src,4)}, {'0' if k == 0 else R(dd,4)}")
        for k in range(4):
            a(f"s_waitcnt lgkmcnt({6-2*k})")
            for e in range(4):
                t = tmp(); x = vRF + 4 * k + e; m_ = WF + 4 * k + e
                a(f"v_pk_mul_f16 v{t}, v{x}, v{m_} op_sel:[0,0] op_sel_hi:[0,1]")
                a(f"v_pk_fma_f16 v{m_}, v{x}, v{m_}, v{t} op_sel:[1,1,0] op_sel_hi:[1,0,1] neg_lo:[0,1,0]")
                if e == 0: mm(0, k, 0)
                if e == 1 and k > 0: mm(1, k - 1, 0)
                if e == 2: mm(0, k, 1)
                if e == 3 and k > 0: mm(1, k - 1, 1)
        a("s_nop 1")
        mm(1, 3, 0); mm(1, 3, 1)
        a(f"s_setprio {opt.xprio}\ns_nop 0" if opt.k4 else "s_nop 1")
    else:
        for k in range(4): a(f"ds_read_b128 {R(vRF+4*k,4)}, v{vSR} offset:{64*k}")
        put(RR[16], 0)
        for j in range(17, 32):
            t = tmp()
            hmul(t, RR[j-16], RR[16]); put(t, j - 16)
            if j == 19:
                a(f"s_waitcnt lgkmcnt({4 - len(pend)})")
            if 19 <= j < 27:
                k, m = (j - 19) // 2, (j - 19) % 2
                dd = vD + 8 * m
                a(f"{MH} {R(dd,4)}, {R(vLF+16*m+4*k,4)}, {R(vRF+4*k,4)}, {'0' if k == 0 else R(dd,4)}")
        flush()
        if opt.stamps == 1: stamp(a, opt, 12, True)
        for k in range(4): a(f"ds_read_b128 {R(vRF+4*k,4)}, v{vSR} offset:{64*k}")
        a(f"s_setprio {opt.xprio}")
        for k in range(4):
            a(f"s_waitcnt lgkmcnt({3-k})")
            for m in range(2):
                dd = vD + 8 * m + 4
                a(f"{MH} {R(dd,4)}, {R(vLF+16*m+4*k,4)}, {R(vRF+4*k,4)}, {'0' if k == 0 else R(dd,4)}")
    a(f"""
ds_write_b128 v{vPW0}, {R(vD,4)}
s_cmp_lg_u32 s62, 0
s_cbranch_scc1 L_xL
ds_write_addtid_b32 v{vD+8} offset:2048
ds_write_addtid_b32 v{vD+10} offset:2560
s_nop 2
ds_write_b128 v{vPW0}, {R(vD+4,4)} offset:512
ds_write_addtid_b32 v{vD+12} offset:2304
ds_write_b32 v{vCF}, v{vONE}
""")
    if opt.stamps == 1: stamp(a, opt, 13)
    wait_flags(a, [(20, 4)], "pxd")
    stamp(a, opt, 4)
    A_, B_, Pv, E, O, E2, O2 = 88, 100, 96, 108, 112, 116, 120
    d = lambda k: A_ + k
    a(f"""
ds_read_b128 {R(A_+4,4)}, v{vRD} offset:16
ds_read_b128 {R(B_+4,4)}, v{vRD} offset:{STGW+16}
ds_read_b128 {R(A_,4)}, v{vRD}
ds_read_b128 {R(B_,4)}, v{vRD} offset:{STGW}
ds_read_addtid_b32 v20 offset:{STGW+2048}
ds_read_addtid_b32 v21 offset:{STGW+2304}
s_waitcnt lgkmcnt(4)
v_pk_add_f32 {R(A_+4,2)}, {R(A_+4,2)}, {R(B_+4,2)}
v_pk_add_f32 {R(A_+6,2)}, {R(A_+6,2)}, {R(B_+6,2)}
v_pk_mul_f32 {R(A_+4,2)}, {R(A_+4,2)}, {R(vC2,2)} op_sel_hi:[1,0]
v_pk_mul_f32 {R(A_+6,2)}, {R(A_+6,2)}, {R(vC2,2)} op_sel_hi:[1,0]
s_waitcnt lgkmcnt(2)
v_pk_add_f32 {R(A_,2)}, {R(A_,2)}, {R(B_,2)}
v_pk_add_f32 {R(A_+2,2)}, {R(A_+2,2)}, {R(B_+2,2)}
v_fma_f32 v{A_}, v{A_}, v{vC2}, v{vDSK}
v_mul_f32 v{A_+1}, v{A_+1}, v{vC2}
v_pk_mul_f32 {R(A_+2,2)}, {R(A_+2,2)}, {R(vC2,2)} op_sel_hi:[1,0]
v_mov_b32_dpp v{Pv}, v{d(5)} wave_shr:1 row_mask:0xf bank_mask:0xf bound_ctrl:0
v_mov_b32_dpp v{Pv+1}, v{d(6)} wave_shr:1 row_mask:0xf bank_mask:0xf bound_ctrl:0
v_mov_b32_dpp v{Pv+2}, v{d(7)} wave_shr:1 row_mask:0xf bank_mask:0xf bound_ctrl:0
v_cvt_pk_bf16_f32 v{E}, v{d(7)}, v{d(6)}
v_cvt_pk_bf16_f32 v{E+1}, v{d(5)}, v{d(4)}
v_cvt_pk_bf16_f32 v{E+2}, v{d(3)}, v{d(2)}
v_cvt_pk_bf16_f32 v{E+3}, v{d(1)}, v{d(0)}
ds_write_b128 v{vKD}, {R(E,4)}
v_cvt_pk_bf16_f32 v{O}, v{d(6)}, v{d(5)}
v_cvt_pk_bf16_f32 v{O+1}, v{d(4)}, v{d(3)}
v_cvt_pk_bf16_f32 v{O+2}, v{d(2)}, v{d(1)}
v_cvt_pk_bf16_f32 v{O+3}, v{d(0)}, v{Pv+2}
ds_write_b128 v{vKD}, {R(O,4)} offset:{KCP}
v_mov_b32 v{E2}, v{E+1}
v_mov_b32 v{E2+1}, v{E+2}
v_mov_b32 v{E2+2}, v{E+3}
v_cvt_pk_bf16_f32 v{E2+3}, v{Pv+2}, v{Pv+1}
ds_write_b128 v{vKD}, {R(E2,4)} offset:{2*KCP}
v_mov_b32 v{O2}, v{O+1}
v_mov_b32 v{O2+1}, v{O+2}
v_mov_b32 v{O2+2}, v{O+3}
v_cvt_pk_bf16_f32 v{O2+3}, v{Pv+1}, v{Pv}
ds_write_b128 v{vKD}, {R(O2,4)} offset:{3*KCP}
s_waitcnt lgkmcnt(4)
v_add_f32 v20, v20, v{vD+9}
v_add_f32 v21, v21, v{vD+13}
v_mul_f32 v20, v20, v{vC2}
v_mul_f32 v21, v21, v{vC2}
v_cvt_pk_bf16_f32 v20, v20, v21
""")
    for sg in range(4):
        a(f"ds_write_b16 v{vAC}, v20 offset:{sg*(KCP-2)+16}")
        a(f"ds_write_b16_d16_hi v{vAC}, v20 offset:{sg*(KCP-2)}")
    a(f"ds_write_b32 v{vCF}, v{vONE} offset:8")
    stamp(a, opt, 5)
    SD = Stream(a)
    F = {16 + 32 * s: Frag("F", 16 + 32 * s, dF + 4 * s) for s in range(16)}
    for k in range(opt.pre):
        SD.load(F[16 + 32 * k] if opt.blk else F[16 + 32 * (k // 2) + 256 * (k % 2)])
    a(f"s_setprio {dprio(opt, 0)}")
    if opt.alow: a(f"s_cmp_ge_u32 s45, 2\ns_cbranch_scc1 L_dl\ns_setprio {dprio(opt, 0) - 1}\nL_dl:")
    wait_flags(a, [(18, 16)] if opt.defer else [(18, 16), (19, 12)], "d")
    SD.done = SD.lds_n
    stamp(a, opt, 7, True)
    emit_dense(a, opt, SD, F)
    a("s_branch L_fin")
    a.label("L_xL")
    a(f"""
ds_write_addtid_b32 v{vD+9} offset:2048
v_mov_b32 v20, s61
s_nop 2
ds_write_b128 v{vPW0}, {R(vD+4,4)} offset:512
ds_write_addtid_b32 v{vD+13} offset:2304
ds_write_b32 v{vCF}, v{vONE} offset:4
s_mov_b32 m0, s61
""")
    if opt.stamps == 1: stamp(a, opt, 13)
    wait_flags(a, [(21, 0)], "pxl")
    stamp(a, opt, 4)
    n0, n1 = vD + 8, vD + 12
    a(f"""
ds_read_addtid_b32 v24 offset:2048
ds_read_addtid_b32 v25 offset:2304
ds_read_addtid_b32 v26 offset:2560
ds_read_b128 v[32:35], v20 offset:2032
ds_read_b128 v[36:39], v20 offset:{2032+STGW}
s_mov_b32 s8, -2
s_waitcnt lgkmcnt(2)
v_add_f32 v24, v24, v{n0}
v_add_f32 v25, v25, v{n1}
v_add_f32 v26, v26, v{n0+2}
v_mul_f32 v24, v24, v{vC2}
v_mul_f32 v25, v25, v{vC2}
v_mul_f32 v26, v26, v{vC2}
v_cvt_pk_bf16_f32 v40, v24, v25
v_mov_b32_dpp v42, v24 quad_perm:[0,0,0,0] row_mask:0x4 bank_mask:0xf
""")
    for sg in range(4):
        a(f"ds_write_b16_d16_hi v{vAC}, v40 offset:{sg*(KCP-2)}")
    a(f"""
s_waitcnt lgkmcnt(4)
v_mov_b32_dpp v42, v26 quad_perm:[0,1,2,3] row_mask:0x2 bank_mask:0xf
v_add_f32 v33, v33, v37
v_pk_add_f32 v[34:35], v[34:35], v[38:39]
v_mul_f32 v33, v33, v{vC2}
v_pk_mul_f32 v[34:35], v[34:35], {R(vC2,2)} op_sel_hi:[1,0]
s_mov_b32 exec_lo, s8
s_mov_b32 exec_hi, s8
""")
    for sg in range(4):
        a(f"ds_write_b16 v{vAC}, v40 offset:{sg*(KCP-2)+16}")
    a(f"""
s_mov_b64 exec, -1
v_mov_b32_dpp v42, v33 quad_perm:[0,1,2,3] row_mask:0x8 bank_mask:0x1
v_mov_b32_dpp v42, v34 quad_perm:[0,1,2,3] row_mask:0x8 bank_mask:0x2
v_mov_b32_dpp v42, v35 quad_perm:[0,1,2,3] row_mask:0x1 bank_mask:0xf
v_subrev_u32 v19, s61, v{vPA}
v_cvt_pk_bf16_f32 v42, v42, v42
v_add_u32 v19, {BOXL}, v19
""")
    for sg in range(4):
        a(f"ds_write_b16 v{vAM}, v42 offset:{sg*(KCP-2)}")
    a(f"ds_write_b32 v{vCF}, v{vONE} offset:12")
    stamp(a, opt, 5)
    SL = Stream(a)
    LK = level_frags()
    for k in LORDER[:opt.prel]:
        SL.load(LK[k])
    a(f"s_setprio {min(dprio(opt, 0) + opt.lup, 3)}")
    if opt.alow: a(f"s_cmp_ge_u32 s45, 2\ns_cbranch_scc1 L_ll\ns_setprio {dprio(opt, 0) - 1}\nL_ll:")
    wait_flags(a, [(16, 16), (17, 8)], "l")
    SL.done = SL.lds_n
    stamp(a, opt, 7, True)
    for j, wdt in enumerate((3, 5, 7, 9)):
        SL.lds(f"ds_read_b128 {R(BOX[wdt],4)}, v19 offset:{1024*j}")
    if not opt.nol: emit_level(a, opt, SL, LK)
    a("s_branch L_fin")
    a(f"""
L_mem0:
s_sub_u32 s45, s44, 12
v_mov_b32 v8, 0
v_mov_b32 v9, 0
v_mov_b32 v10, 0
v_mov_b32 v11, 0
v_lshlrev_b32 v7, 4, v1
{"" if opt.gate else "ds_write_b128 v7, v[8:11] offset:%d" % FL}
v_min_u32 v5, 5, v1
v_mul_u32_u24 v16, {CHB}, v5
ds_write_b32 v16, v8 offset:{OFLO}
ds_write_b32 v16, v8 offset:{OFLO + 256}
s_lshl_b32 s47, s5, 1
s_mul_i32 s9, s45, {512*1152}
s_add_u32 s9, s9, s47
s_add_u32 s10, s9, {256*1152}
v_mul_u32_u24 v19, {4*1152}, v1
""")
    if opt.mord:
        a("""
s_cmp_eq_u32 s45, 0
s_cbranch_scc1 L_mp
s_setprio 2
s_cmp_eq_u32 s45, 1
s_cbranch_scc1 L_mp
s_setprio 1
s_cmp_eq_u32 s45, 2
s_cbranch_scc1 L_mp
s_setprio 0
L_mp:
""")
    a(f"""
s_waitcnt lgkmcnt(0)
s_mov_b32 s18, {2048*1152}
s_mov_b32 s19, 0x00020000
""")
    if opt.stamps == 1: stamp(a, opt, 14)
    if opt.codepf == 2:
        a("""
s_getpc_b64 s[52:53]
L_pc:
v_lshlrev_b32 v6, 7, v1
v_add_u32 v7, 8192, v6
v_min_u32 v7, L_codeend-L_pc-4, v7
s_cmp_lg_u32 s45, 0
""")
    if opt.gate:
        a(f"""
s_mul_i32 s8, s59, 192
s_lshl_b32 s11, s45, 6
s_add_u32 s8, s8, s11
v_add_u32 v6, s8, v1
v_mul_u32_u24 v6, 1152, v6
v_mov_b32 v17, {FL + 768}
s_mov_b32 s36, 0x40000
L_gw:
ds_read_b32 v7, v17
s_waitcnt lgkmcnt(0)
s_sub_u32 s36, s36, 1
s_cbranch_scc1 L_gok
v_cmp_gt_u32 vcc, 12, v7
s_cbranch_vccz L_gok
s_sleep 1
s_branch L_gw
L_gok:
""")
        if opt.upf:
            a(f"""
s_cmp_eq_u32 s45, 3
s_cbranch_scc1 L_noupf
buffer_load_dword v13, v6, s[16:19], s47 offen
L_noupf:
""")
    else:
        a("s_barrier")
    if opt.codepf == 2:
        a("""
s_cbranch_scc1 L_nocpf
global_load_dword v12, v6, s[52:53]
global_load_dword v13, v7, s[52:53]
L_nocpf:
""")
    if opt.chain:
        a(f"""
s_cmp_lt_u32 s45, {opt.chain}
s_cbranch_scc1 L_chok
v_mov_b32 v6, {FL + 96 + 128*opt.trig}
s_mov_b32 s36, 0x40000
L_chw:
s_sleep 2
ds_read_b32 v7, v6
s_waitcnt lgkmcnt(0)
s_sub_u32 s36, s36, 1
s_cbranch_scc1 L_chok
v_cmp_eq_u32 vcc, 0, v7
s_cbranch_vccnz L_chw
L_chok:
""")
    stamp(a, opt, 1)
    for k in range(8):
        tile, e = k // 4, k % 4
        a(f"buffer_load_dwordx3 {R(mUD+4*k,3)}, v19, s[16:19], s{9+tile} offen offset:{e*1152}" + (" nt" if opt.nt else ""))
    stamp(a, opt, 2)
    a(f"""
s_setprio 3
""")
    a(f"""
v_and_b32 v4, 15, v1
v_lshrrev_b32 v15, 4, v1
s_cmp_lg_u32 s45, 0
s_cbranch_scc1 L_nobox
v_lshrrev_b32 v7, 5, v1
v_mul_u32_u24 v7, {UCH}, v7
v_and_b32 v6, 31, v1
v_lshl_add_u32 v6, v6, 4, v7
v_add_u32 v6, {UB}, v6
ds_write_b128 v6, v[8:11]
ds_write_b128 v6, v[8:11] offset:{2*UCH}
ds_write_b128 v6, v[8:11] offset:{4*UCH}
v_lshlrev_b32 v6, 3, v15
v_sub_u32 v6, v6, v4
v_add_u32 v6, 15, v6
v_min_u32 v6, 31, v6
s_mov_b32 s8, 0x8001
s_mov_b32 s12, 0x10001
s_mov_b32 s10, 0x3f80
v_lshlrev_b32 v17, 4, v1
v_add_u32 v17, {BOXL}, v17
""")
    for j, (wdt, lo) in enumerate(((3, 11), (5, 6), (7, 5), (9, 4))):
        a(f"s_mov_b32 s11, {((1<<wdt)-1) << (lo+15):#x}\nv_lshrrev_b32 v7, v6, s11")
        for w in range(4):
            d_ = 8 + w
            a(f"v_bfe_u32 v{d_}, v7, {2*w}, 2\nv_mul_u32_u24 v{d_}, s8, v{d_}\nv_and_b32 v{d_}, s12, v{d_}\nv_mul_u32_u24 v{d_}, s10, v{d_}")
        a(f"ds_write_b128 v17, v[8:11] offset:{1024*j}")
    a(f"""
L_nobox:
s_add_u32 s48, s48, s47
s_mov_b32 s34, {2048*2304}
s_mov_b32 s35, 0x00020000
s_mov_b32 s50, 0x05040100
s_mov_b32 s51, 0x07060302
s_mov_b32 s36, 0x40000
v_lshl_add_u32 v4, v4, 2, v15
v_mul_u32_u24 v18, {4*2304}, v4
s_lshl_b32 s8, s45, 10
s_add_u32 s8, s8, {UB + 512}
v_lshl_add_u32 v3, v1, 3, s8
v_add_u32 v18, s48, v18
s_lshl_b32 s8, s45, 3
s_add_u32 s8, s8, {FL + 16}
v_lshl_add_u32 v14, v5, 7, s8
v_mov_b32 v2, 1
""")
    stamp(a, opt, 4)
    for tile in range(2):
        a(f"s_waitcnt vmcnt({4 - 4*tile})")
        q = lambda e, m: mUD + 4 * (4 * tile + e) + m
        for m in range(3):
            for hi in range(2):
                t = mT + 2 * ((2 * m + hi) % 4)
                a(f"v_perm_b32 v{t}, v{q(1,m)}, v{q(0,m)}, s{50+hi}")
                a(f"v_perm_b32 v{t+1}, v{q(3,m)}, v{q(2,m)}, s{50+hi}")
                a(f"ds_write_b64 v3, {R(t,2)} offset:{(2*m+hi)*UCH + 512*tile}")
        a(f"ds_write_b32 v14, v2 offset:{4*tile}")
        stamp(a, opt, 6 if tile == 0 else 11)
    a(f"""
s_bitcmp1_b32 s45, 0
s_cselect_b32 s50, s51, s50
s_mul_i32 s57, s45, 2304
s_mov_b32 s56, 1
s_lshr_b32 s8, s45, 1
s_lshl_b32 s8, s8, 8
s_add_u32 s8, s8, {OUTO}
v_lshl_add_u32 v4, v1, 2, s8
L_mpoll:
ds_read_b32 v8, v16 offset:{OFLO}
s_waitcnt lgkmcnt(0)
v_cmp_gt_u32 vcc, s56, v8
s_cbranch_vccz L_mgo
s_sleep {opt.msleep}
s_sub_u32 s36, s36, 1
s_cbranch_scc0 L_mpoll
L_mgo:
""")
    for c in range(6):
        a(f"ds_read_b32 v{mIN+c}, v4 offset:{CHB*c}")
    a(f"v_add_u32 v4, 512, v4")
    for m in range(3):
        a(f"s_waitcnt lgkmcnt({4-2*m})")
        a(f"v_perm_b32 v{mSO+m}, v{mIN+2*m+1}, v{mIN+2*m}, s50")
    a(f"""
buffer_store_dwordx3 {R(mSO,3)}, v18, s[32:35], s57 offen
s_add_u32 s57, s57, {256*2304}
s_add_u32 s56, s56, 1
""")
    if opt.stamps:
        a(f"s_cmp_lg_u32 s56, 2\ns_cbranch_scc1 L_ms")
        stamp(a, opt, 10)
        a.label(f"L_ms")
    a(f"s_cmp_le_u32 s56, 8\ns_cbranch_scc1 L_mpoll")
    a.label("L_fin")
    if opt.amp: stamp(a, opt, 8)
    if opt.stamps and not opt.amp:
        stamp(a, opt, 8)
        a("s_waitcnt vmcnt(0)")
        stamp(a, opt, 9)
        a(f"""
s_load_dwordx2 s[8:9], s[0:1], 128
s_waitcnt lgkmcnt(0)
s_lshl_b32 s10, s2, 4
s_add_u32 s10, s10, s44
s_lshl_b32 s10, s10, 7
s_add_u32 s10, s10, {1<<20}
v_mov_b32 v20, s10
""")
        for k in range(1, NST):
            a(f"s_sub_u32 s11, s{64+2*k}, s64\nv_mov_b32 v21, s11\nglobal_store_dword v20, v21, s[8:9] offset:{4*k}")
        a("s_memrealtime s[10:11]\ns_waitcnt lgkmcnt(0)\nv_mov_b32 v21, s10\nglobal_store_dword v20, v21, s[8:9] offset:0")
        a("v_mov_b32 v21, s100\nglobal_store_dword v20, v21, s[8:9] offset:80")
        a("s_getreg_b32 s11, hwreg(HW_REG_HW_ID)\nv_mov_b32 v21, s11\nglobal_store_dword v20, v21, s[8:9] offset:84")
        a("s_getreg_b32 s11, hwreg(HW_REG_XCC_ID)\nv_mov_b32 v21, s11\nglobal_store_dword v20, v21, s[8:9] offset:88")
        a("v_mov_b32 v21, s64\nglobal_store_dword v20, v21, s[8:9] offset:92")
    if opt.amp:
        ampx = ("s_add_u32 s10, s82, %d" % opt.amp) if opt.amp > 100 else ("s_sub_u32 s10, s%d, s64\ns_lshl_b32 s10, s10, 2\ns_add_u32 s10, s10, s82" % (64 + 2 * opt.amp))
        a(f"""
s_waitcnt vmcnt(0)
s_memtime s[82:83]
s_waitcnt lgkmcnt(0)
s_cmp_lg_u32 s2, {opt.ampg}
s_cbranch_scc1 L_end
s_cmp_lg_u32 s44, {opt.ampw}
s_cbranch_scc1 L_end
{ampx}
L_amp:
s_memtime s[12:13]
s_waitcnt lgkmcnt(0)
s_sub_u32 s11, s12, s10
s_cmp_lt_i32 s11, 0
s_cbranch_scc1 L_amp
""")
    a.label("L_end")
    a("s_endpgm")
    for st in STUBS: a(st)
    a.label("L_codeend")
    out += a.text()
    out += f""".section .rodata,"a"
.p2align 6
.amdhsa_kernel {NAME}_kernel
  .amdhsa_next_free_vgpr 128
  .amdhsa_next_free_sgpr 102
  .amdhsa_accum_offset 128
  .amdhsa_group_segment_fixed_size 0
  .amdhsa_kernarg_size 136
  .amdhsa_user_sgpr_count 2
  .amdhsa_user_sgpr_kernarg_segment_ptr 1
  .amdhsa_system_sgpr_workgroup_id_x 1
.end_amdhsa_kernel
"""
    return out

if __name__ == "__main__":
    p = argparse.ArgumentParser()
    p.add_argument("-o", default="cdna_kernels/" + NAME + ".s")
    for k, v in dict(stamps=0, la=6, batch=8, pre=15, prel=1, codepf=3, chain=3, trig=0, rhi=1, sidem=1, blk=8, amp=0, ampg=0, ampw=15, k4=1, alow=1, e2=1, gate=0, nt=1, kmin=0, upf=0, nol=0, msleep=1, quarter=1,
                     ptop=2, pstep=3, lead=1, xprio=2, mord=1, lateb=1, defer=1, ktop=3, klead=0, thr=0, lup=0).items():
        p.add_argument("--" + k, type=int, default=v)
    opt = p.parse_args()
    open(opt.o, "w").write(generate(opt))
```

```python
import sys, argparse

NAME = "concat_heads__ssm_conv_s4d__ssm_conv_s4d__prompt"

PITCH = 288
STGW = 4896
CHB = 10752
OUTO, OFLO = 6144, 10240
FL = 6 * CHB
KA = FL + 1024
KCP = 2112
KCH = 4 * KCP
UB = KA + 6 * KCH
UCH = 4608
BOXL = UB + 6 * UCH
LDS_TOTAL = BOXL + 4096
ZD, ZX = 543, 1615
Z2 = [687 + 64 * m for m in range(4)]
Z3 = [991, 1071]
DUMMY = 1040

vPA, vCF, vONE, vOW = 0, 1, 2, 3
vU, vKF, vKT, vSR, vSL0, vSL1, vPW0 = 4, 5, 6, 7, 8, 9, 10
vKD, vRD = 11, 12
vAC, vAM = 14, 13
BOX = {3: 112, 5: 116, 7: 120, 9: 124}
vLF, vRF, vD = 20, 52, 68
vP = 36
vDT, vDSK, vC2 = 84, 85, 86
Z_, W_, ZZ, X_, Y_ = 88, 90, 92, 94, 96
T_ = [98, 99, 100, 101]
dF, dACC, dG, dPT, dOT, dFLG, dCN, dUT = 20, 84, 96, 12, 16, 18, 8, 10
dTH, dTT = 6, 19
lT2, lT3, lFX, lF5, lACC, lW, lG, lUT = 20, 44, 60, 64, 68, 92, 104, 7
mUD, mT, mIN, mSO = 20, 52, 60, 72
MF = "v_mfma_f32_16x16x32_bf16"

class Asm:
    def __init__(self): self.lines = []
    def __call__(self, s):
        for l in s.strip("\n").split("\n"):
            if not l.strip(): continue
            self.lines.append(l if l.rstrip().endswith(":") and not l.startswith(" ") else "    " + l.strip())
    def label(self, l): self.lines.append(l + ":")
    def text(self): return "\n".join(self.lines) + "\n"

def R(a, n=1): return f"v{a}" if n == 1 else f"v[{a}:{a+n-1}]"

def cmul(a, dst, x, m, conj=False):
    if not conj:
        a(f"v_pk_mul_f32 {R(dst,2)}, {R(x,2)}, {R(m,2)} op_sel:[0,0] op_sel_hi:[0,1]")
        a(f"v_pk_fma_f32 {R(dst,2)}, {R(x,2)}, {R(m,2)}, {R(dst,2)} op_sel:[1,1,0] op_sel_hi:[1,0,1] neg_lo:[0,1,0]")
    else:
        a(f"v_pk_mul_f32 {R(dst,2)}, {R(x,2)}, {R(m,2)} op_sel:[0,0] op_sel_hi:[0,1] neg_hi:[0,1]")
        a(f"v_pk_fma_f32 {R(dst,2)}, {R(x,2)}, {R(m,2)}, {R(dst,2)} op_sel:[1,1,0] op_sel_hi:[1,0,1]")

NST = 18
def stamp(a, opt, idx, wait=False):
    if opt.stamps and idx is not None:
        a(f"s_memtime s[{64+2*idx}:{65+2*idx}]")
        if wait: a("s_waitcnt lgkmcnt(0)")

class Frag:
    def __init__(self, kind, key, reg=None):
        self.kind, self.key, self.reg = kind, key, reg
        self.first = None; self.last = None; self.issued = False; self.seq = -1

def frag_reads(f):
    k = f.key
    if f.kind == "G": return [("ds_read_b128", f.reg, 4, vU, 512 + 2 * k)]
    if f.kind in ("F", "FX"):
        o = 2 * (ZD - 3 - k) if f.kind == "F" else 2 * (ZX - 3 - 1040)
        return [("ds_read_b64", f.reg, 2, vKF, o), ("ds_read_b64", f.reg + 2, 2, vKF, o + 8)]
    if f.kind == "T2":
        d, h = k
        return [("ds_read_b64", f.reg + 2 * j, 2, vKT, 2 * (Z2[2 * h + j] - 3 - 16 * d)) for j in range(2)]
    if f.kind == "T3":
        return [("ds_read_b64", f.reg + 2 * j, 2, vKT, 2 * (Z3[j] - 3 - 16 * k)) for j in range(2)]
    raise ValueError

class Stream:
    def __init__(self, a):
        self.a = a; self.n = 0; self.lds_n = 0; self.done = 0
    def ins(self, s, w=1): self.a(s); self.n += w
    def lds(self, s): self.ins(s); self.lds_n += 1; return self.lds_n
    def wait(self, seq):
        if seq > self.done:
            k = min(self.lds_n - seq, 15)
            self.ins(f"s_waitcnt lgkmcnt({k})"); self.done = self.lds_n - k
    def until(self, n):
        if self.n < n: self.ins(f"s_nop {n - self.n - 1}", n - self.n)
    def load(self, f):
        for (mn, d, n, ar, off) in frag_reads(f):
            f.seq = self.lds(f"{mn} {R(d,n)}, v{ar} offset:{off}")
        f.issued = True

STUBS = []
def wait_flags(a, reads, tag):
    rd = "\n".join(f"ds_read_b32 v{t}, v{vCF} offset:{o}" for t, o in reads)
    comb = "" if len(reads) == 1 else f"v_and_b32 v{reads[0][0]}, v{reads[0][0]}, v{reads[1][0]}\n"
    a.label(f"L_w_{tag}")
    a(f"{rd}\ns_waitcnt lgkmcnt(0)\n{comb}v_cmp_eq_u32 vcc, 0, v{reads[0][0]}\ns_cbranch_vccnz L_ws_{tag}")
    a.label(f"L_wd_{tag}")
    STUBS.append(f"L_ws_{tag}:\ns_sleep 1\ns_sub_u32 s34, s34, 1\ns_cbranch_scc0 L_w_{tag}\ns_branch L_wd_{tag}")

def flag_check(a, S, seq, tmp, off, tag, extra=""):
    S.wait(seq)
    S.ins(f"v_cmp_eq_u32 vcc, 0, v{tmp}")
    S.ins(f"s_cbranch_vccnz L_sp_{tag}")
    a.label(f"L_ok_{tag}")
    STUBS.append(f"""L_sp_{tag}:
s_sleep 1
ds_read_b32 v{tmp}, v{vCF} offset:{off}
{extra}s_waitcnt lgkmcnt(0)
s_sub_u32 s34, s34, 1
s_cbranch_scc1 L_ok_{tag}
v_cmp_eq_u32 vcc, 0, v{tmp}
s_cbranch_vccnz L_sp_{tag}
s_branch L_ok_{tag}""")

def cnt_check(a, S, seq, tmp, rd, val, tag, extra=""):
    S.wait(seq)
    S.ins(f"v_cmp_gt_u32 vcc, {val}, v{tmp}")
    S.ins(f"s_cbranch_vccnz L_sp_{tag}")
    a.label(f"L_ok_{tag}")
    STUBS.append(f"""L_sp_{tag}:
s_sleep 1
{rd}
{extra}s_waitcnt lgkmcnt(0)
s_sub_u32 s34, s34, 1
s_cbranch_scc1 L_ok_{tag}
v_cmp_gt_u32 vcc, {val}, v{tmp}
s_cbranch_vccnz L_sp_{tag}
s_branch L_ok_{tag}""")

def dprio(opt, t): return max(opt.ptop - t // opt.pstep, 0)

def emit_dense(a, opt, S, F):
    ops = []
    for tau in range(8):
        gs = [Frag("G", 256 * tau - 16 - 32 * s) for s in range(8)]
        for s in range(8): gs[s].tile = tau if s == 0 else None
        lag = opt.blk
        for s in range(8 + lag):
            if s < 8: ops.append((tau, F[16 + 32 * s], gs[s], tau == 0 and s == 0))
            if s == 7 and lag: ops.append(("end", tau))
            if tau < 7 and 0 <= s - lag < 8: ops.append((tau + 1, F[272 + 32 * (s - lag)], gs[s - lag], s == lag))
            if s == 7 and not lag: ops.append(("end", tau))
    gl = []
    for i, op in enumerate(ops):
        if op[0] == "end": continue
        for g in (op[1], op[2]):
            if g.first is None:
                g.first = i
                if not g.issued: gl.append(g)
            g.last = i
    endpos = {op[1]: i for i, op in enumerate(ops) if op[0] == "end"}
    tfirst = {g.tile: g.first for g in gl if g.kind == "G" and g.tile is not None}
    ring = [-1] * 8
    acc_last = {}
    side = []
    pinfo = {}
    PRD = f"ds_read_addtid_b32 v{dFLG} offset:{OFLO + 256}"
    def ptxt(t): return f"ds_read_b128 {R(dPT,4)}, v{vPA} offset:{(t-2)*1024}"
    def queue_out(t):
        ac = dACC + 4 * (t % 3)
        rn = acc_last[t] + 8
        if t >= 2:
            if not opt.nol:
                side.append((0, lambda: cnt_check(a, S, pinfo[t], dFLG, PRD, t, f"p{t}", ptxt(t) + "\n")))
            side.append((rn, lambda: (S.ins(f"v_add_f32 v{dPT}, v{dPT}, v{ac}"), S.ins(f"v_add_f32 v{dPT+1}, v{dPT+1}, v{ac+1}"))))
            side.append((rn, lambda: (S.ins(f"v_add_f32 v{dPT+2}, v{dPT+2}, v{ac+2}"), S.ins(f"v_add_f32 v{dPT+3}, v{dPT+3}, v{ac+3}"))))
            src = dPT
        else:
            src = ac
        side.append((rn, lambda: (S.ins(f"v_cvt_pk_bf16_f32 v{dOT}, v{src}, v{src+1}"), S.ins(f"v_cvt_pk_bf16_f32 v{dOT+1}, v{src+2}, v{src+3}"))))
        side.append((rn, lambda: (S.lds(f"ds_write_addtid_b32 v{dOT} offset:{OUTO + 512*t}"), S.ins(f"v_mov_b32 v{dCN}, {t+1}"))))
        side.append((rn, lambda: S.lds(f"ds_write_addtid_b32 v{dOT+1} offset:{OUTO + 512*t + 256}")))
        def fin():
            S.lds(f"ds_write_addtid_b32 v{dCN} offset:{OFLO}")
            if opt.stamps == 2:
                stamp(a, opt, 10 + t, True); S.done = S.lds_n
        side.append((rn, fin))
    pend = list(gl)
    useq = {}
    thr = {}
    for i, op in enumerate(ops):
        if opt.defer and i == 2:
            klseq = S.lds(f"ds_read_b32 v{dFLG}, v{vCF} offset:12")
        for t in range(1, 8):
            if t not in useq and i + opt.la + 3 >= tfirst[t]:
                useq[t] = S.lds(f"ds_read_b32 v{dUT}, v{vCF} offset:{16 + 4*t}")
        while pend and pend[0].first <= i + opt.la:
            if pend[0].kind == "F":
                if opt.defer and pend[0].key == 496: flag_check(a, S, klseq, dFLG, 12, "kl")
                S.load(pend.pop(0)); continue
            slot = next((s for s in range(8) if ring[s] < i), None)
            if slot is None:
                assert pend[0].first > i
                break
            g = pend.pop(0)
            if g.tile: flag_check(a, S, useq[g.tile], dUT, 16 + 4 * g.tile, f"du{g.tile}")
            ring[slot] = g.last; g.reg = dG + 4 * slot; S.load(g)
        for t in range(2, 8):
            if t not in pinfo and i >= endpos[t] - 3:
                while side:
                    rn, fn = side.pop(0); S.until(rn); fn()
                S.lds(PRD)
                pinfo[t] = S.lds(ptxt(t))
        if opt.thr:
            for t in range(opt.thr, 8):
                if t not in thr and i + 5 >= endpos[t - 1]:
                    thr[t] = S.lds(f"ds_read_b32 v{dTT}, v{dTH}")
        if op[0] == "end":
            t1 = op[1] + 1
            if opt.thr and opt.thr <= t1 < 8:
                S.wait(thr[t1])
                S.ins(f"v_cmp_gt_u32 vcc, {t1 - opt.thr + 1}, v{dTT}")
                S.ins(f"s_cbranch_vccnz L_th_{t1}")
                a.label(f"L_tk_{t1}")
                STUBS.append(f"""L_th_{t1}:
s_sleep 1
ds_read_b32 v{dTT}, v{dTH}
s_waitcnt lgkmcnt(0)
s_sub_u32 s34, s34, 1
s_cbranch_scc1 L_tk_{t1}
v_cmp_gt_u32 vcc, {t1 - opt.thr + 1}, v{dTT}
s_cbranch_vccnz L_th_{t1}
s_branch L_tk_{t1}""")
            queue_out(op[1])
            if op[1] < 7 and (dprio(opt, op[1] + 1) != dprio(opt, op[1]) or (opt.alow and op[1] == 1)): S.ins(f"s_setprio {dprio(opt, op[1] + 1)}")
            continue
        t, f, g, first = op
        S.wait(max(f.seq, g.seq))
        ac = dACC + 4 * (t % 3)
        S.ins(f"{MF} {R(ac,4)}, {R(f.reg,4)}, {R(g.reg,4)}, {'0' if first else R(ac,4)}")
        acc_last[t] = S.n
        isq0 = f.key < 272
        if opt.sidem == 0 or isq0 or opt.blk:
            if side and side[0][0] <= S.n: side.pop(0)[1]()
        if isq0 and t == 7 and side and side[0][0] <= S.n: side.pop(0)[1]()
        if opt.sidem == 0 and t == 7 and not isq0 and side and side[0][0] <= S.n: side.pop(0)[1]()
    while side:
        rn, fn = side.pop(0); S.until(rn); fn()

def level_frags():
    K = {}
    for d in (2, 3, 4):
        for h in (0, 1): K[("T2", d, h)] = Frag("T2", (d, h), lT2 + 4 * ((d - 2) * 2 + h))
    for d in (4, 5, 6): K[("T3", d)] = Frag("T3", d, lT3 + 4 * (d - 4))
    K[("T3", 7)] = Frag("T3", 7, lACC + 16)
    K["FX"] = Frag("FX", 0, lFX)
    K["F5"] = Frag("F", 528, lF5)
    return K
LORDER = ["FX", ("T2", 2, 0), ("T2", 3, 0), ("T2", 4, 0), ("T2", 2, 1), ("T2", 3, 1), ("T2", 4, 1), ("T3", 7), ("T3", 4), ("T3", 5), ("T3", 6)]

def emit_level(a, opt, S, K):
    acc = lambda t: lACC + 4 * (t - 2)
    inited = set(); acc_last = {}; vq = []; wr = {}; pubq = []
    def drain(k):
        while k > 0 and vq and vq[0][0] <= S.n:
            rn, txt, key = vq.pop(0); S.ins(txt); wr[key] = S.n + 2; k -= 1
    def force(key):
        while any(q[2] == key for q in vq):
            rn, txt, kk = vq.pop(0); S.until(rn); S.ins(txt); wr[kk] = S.n + 2
    def need(f):
        if not f.issued: S.load(f)
        S.wait(f.seq)
    def mf(d, A, B, c):
        S.ins(f"{MF} {R(d,4)}, {R(A,4)}, {R(B,4)}, {c}")
        n = S.n
        if pubq: pubflush()
        else: drain(1)
        return n
    def am(t, A, B):
        c = R(acc(t), 4) if t in inited else "0"
        inited.add(t)
        acc_last[t] = mf(acc(t), A, B, c)
    G0 = [Frag("G", 256 * b - 16, lG) for b in range(6)]
    GM = [Frag("G", 256 * b - 24, lG + 4) for b in range(6)]
    S.load(G0[0]); S.load(GM[0])
    lo = ["F5", "FX", ("T2", 2, 0), ("T2", 2, 1), ("T2", 3, 0), ("T2", 4, 0), ("T2", 3, 1), ("T2", 4, 1), ("T3", 7), ("T3", 4), ("T3", 5), ("T3", 6)] if opt.e2 else ["F5"] + LORDER
    lazy = [K[k] for k in lo if not K[k].issued]
    tsets = [[12, 16], [8, 56]]
    def publish(t):
        S.until(acc_last[t] + 8)
        S.lds(f"ds_write_b128 v{vPA}, {R(acc(t),4)} offset:{(t-2)*1024}")
        S.ins(f"v_mov_b32 v{vONE}, {t}")
        pubq.append(t)
    def pubflush():
        while pubq:
            t = pubq.pop(0)
            S.lds(f"ds_write_addtid_b32 v{vONE} offset:{OFLO + 256}")
            if opt.stamps == 2:
                stamp(a, opt, 10 + t, True); S.done = S.lds_n
    def uses(b, h, ds=None):
        if b < 0 or b > 5: return
        if h < 2: lst = [(b + d, K[("T2", d, h)]) for d in (ds or ((3, 4) if opt.e2 else (2, 3, 4))) if b + d <= 7]
        else: lst = [(b + d, K[("T3", d)]) for d in (7, 4, 5, 6) if b + d <= 7 and b <= 3]
        if lst: force((b, h))
        for t, f in lst:
            need(f); S.until(wr[(b, h)]); am(t, lW + 4 * h, f.reg)
    grp = 0; prevkey = None
    lp = lambda nb: min(dprio(opt, max(nb - opt.lead, 0)) + opt.lup, 3)
    for nb in range(7):
        b = nb - 1
        pairs = []
        if nb <= 5:
            g0, gm = G0[nb], GM[nb]
            pairs = [[(g0, 3), (g0, 5)], [(gm, 3), (gm, 5)]]
            if nb <= 3: pairs.append([(g0, 7), (gm, 9)])
        if nb > 0 and (lp(nb) != lp(nb - 1) or (opt.alow and nb == 2)): S.ins(f"s_setprio {lp(nb)}")
        for h in range(3):
            newv = []
            for _ in range(3):
                if lazy: S.load(lazy.pop(0))
            if h < len(pairs):
                tm = tsets[grp % 2]; grp += 1
                for q in list(vq):
                    if q[2] != prevkey: force(q[2])
                for j, (g, box) in enumerate(pairs[h]):
                    need(g)
                    n = mf(tm[j], g.reg, BOX[box], "0")
                    dst = lW + 4 * h + 2 * j
                    newv.append((n + 8, f"v_cvt_pk_bf16_f32 v{dst}, v{tm[j]}, v{tm[j]+1}", (nb, h)))
                    newv.append((n + 8, f"v_cvt_pk_bf16_f32 v{dst+1}, v{tm[j]+2}, v{tm[j]+3}", (nb, h)))
                if h == 0:
                    need(K["F5"]); am(nb + 2, K["F5"].reg, g0.reg)
                    if nb < 5: useq = S.lds(f"ds_read_b32 v{lUT}, v{vCF} offset:{16 + 4*(nb+1)}")
                if h == 1 and nb <= 3:
                    need(K["FX"]); am(nb + 4, K["FX"].reg, g0.reg)
                if h == len(pairs) - 1 and nb < 5:
                    flag_check(a, S, useq, lUT, 16 + 4 * (nb + 1), f"lu{nb+1}")
                    S.load(G0[nb + 1]); S.load(GM[nb + 1])
            if opt.e2:
                if h == 0 and b >= 0: uses(b, 1, (2,))
                uses(b, h)
                if h == 0 and b >= 0: publish(b + 2)
                if h == 2: uses(nb, 0, (2,))
            else:
                uses(b, h)
                if h == 2 and b >= 0: publish(b + 2)
            if newv:
                vq.extend(newv); prevkey = (nb, h)
    pubflush()

def kprio(a, opt, i):
    p = max(opt.ktop - i, opt.kmin)
    if opt.klead:
        a(f"s_setprio {max(p,0)}\ns_cbranch_scc0 L_kp{i}\ns_setprio {min(max(p,0)+1,3)}\nL_kp{i}:")
    else:
        a(f"s_setprio {max(p,0)}")

def pack64(vals, bits):
    c = 0
    for i, v in enumerate(vals): c |= v << (bits * i)
    return c & 0xffffffff, c >> 32

def generate(opt):
    a = Asm()
    hdr = open("cdna_kernels/" + NAME + ".s.ref").read().split("\n")
    top = [l for l in hdr if l.startswith(";") and "@launch" not in l and "Override launch" not in l and "grid=ceil" not in l]
    out = "\n".join(top) + "\n"
    out += f"; @launch grid=(200,1,1) block=(1024,1,1) lds={LDS_TOTAL}\n"
    out += f""".amdgcn_target "amdgcn-amd-amdhsa--gfx950"
.text
.globl {NAME}_kernel
.p2align 8
.type {NAME}_kernel,@function
{NAME}_kernel:
"""
    stamp(a, opt, 0)
    if opt.stamps: a("s_memrealtime s[100:101]")
    a(f"""
s_and_b32 s3, s2, 7
s_mul_i32 s3, s3, 25
s_lshr_b32 s4, s2, 3
s_add_u32 s3, s3, s4
s_cmp_ge_u32 s3, 99
s_cselect_b32 s6, 56, 0
s_load_dwordx16 s[16:31], s[0:1], s6
s_load_dwordx2 s[32:33], s[0:1], 112
""")
    if opt.codepf == 1:
        a(f"""
s_getpc_b64 s[52:53]
L_pc:
v_lshlrev_b32 v6, 7, v0
v_cmp_gt_u32 vcc, L_codeend-L_pc, v6
s_and_saveexec_b64 s[12:13], vcc
s_cbranch_execz L_nocpf
global_load_dword v102, v6, s[52:53]
L_nocpf:
s_mov_b64 exec, s[12:13]
s_cmp_ge_u32 s3, 99
""")
    a(f"""
v_lshrrev_b32 v2, 6, v0
s_cselect_b32 s7, 9, 0
s_cselect_b32 s48, 1152, 0
v_readfirstlane_b32 s44, v2
s_cmp_ge_u32 s2, 200
s_cbranch_scc1 L_end
s_cmp_ge_u32 s3, 198
s_cbranch_scc1 L_end
v_and_b32 v1, 63, v0
s_mul_i32 s4, s3, 5958
s_lshr_b32 s4, s4, 16
s_mul_i32 s5, s4, 11
s_sub_u32 s59, s3, s5
s_mul_i32 s5, s59, 6
s_min_u32 s5, s5, 58
s_sub_u32 s4, s4, s7
s_lshl_b32 s4, s4, 6
s_add_u32 s5, s5, s4
s_setprio 3
""")
    if opt.gate:
        a(f"""
v_mov_b32 v8, 0
v_mov_b32 v9, 0
v_mov_b32 v10, 0
v_mov_b32 v11, 0
v_lshlrev_b32 v7, 4, v1
ds_write_b128 v7, v[8:11] offset:{FL}
s_waitcnt lgkmcnt(0)
s_barrier
""")
    a(f"""
s_cmp_ge_u32 s44, 12
s_cbranch_scc1 L_mem0
s_sub_u32 s45, s44, 6
s_cmp_ge_u32 s44, 6
s_cselect_b32 s45, s45, s44
s_cselect_b32 s62, 1, 0
s_add_u32 s46, s5, s45
s_lshl_b32 s8, s46, 8
v_lshl_add_u32 v20, v1, 2, s8
s_lshl_b32 s8, s46, 1
s_and_b32 s8, s8, -4
s_waitcnt lgkmcnt(0)
global_load_dword v{vP}, v20, s[18:19]
global_load_dword v{vP+1}, v20, s[20:21]
global_load_dword v{vP+2}, v20, s[22:23]
global_load_dword v{vP+3}, v20, s[24:25]
s_load_dword s40, s[26:27], s8
s_load_dword s41, s[28:29], s8
""")
    if opt.codepf == 3:
        a("""
s_cmp_lt_u32 s44, 10
s_cbranch_scc1 L_nocpf
s_getpc_b64 s[52:53]
L_pc:
v_subrev_u32 v6, 640, v0
v_lshlrev_b32 v6, 7, v6
v_min_u32 v6, L_codeend-L_pc-4, v6
global_load_dword v87, v6, s[52:53]
L_nocpf:
""")
    if opt.gate:
        a(f"""
v_lshlrev_b32 v21, 2, v1
v_mov_b32 v{vONE}, 1
ds_add_u32 v21, v{vONE} offset:{FL + 768 - 65536 if False else 0}
""".replace("v21, v2 offset:0", "v21, v2 offset:%d" % (FL + 768)))
    if opt.stamps == 1: stamp(a, opt, 14)
    if not opt.lateb and not opt.gate: a("s_barrier")
    stamp(a, opt, 1)
    sl0 = pack64([0,1,2,3,4,5,6,7,8,8,10,11,11,11,14,15], 4)
    ta0 = pack64([2*(848-8), 2*(719-8), 2*(1008-8), 2*(927-8)], 16)
    ta1 = pack64([2*(655-8), 2*(783-8), 2*(976-8), 2*(895-8)], 16)
    a(f"""
s_mul_i32 s57, s45, {KCH}
s_add_u32 s57, s57, {KA}
s_lshl_b32 s8, s62, 12
s_add_u32 s8, s8, s57
v_mov_b32 v24, 0
v_mov_b32 v25, 0
v_mov_b32 v26, 0
v_mov_b32 v27, 0
v_lshl_add_u32 v23, v1, 4, s8
v_and_b32 v20, 15, v1
s_add_u32 s8, s57, 8192
v_lshl_add_u32 v22, v20, 4, s8
""")
    for k in range(4):
        a(f"ds_write_b128 v23, v[24:27] offset:{k*1024}")
    a(f"""
ds_write_b128 v22, v[24:27]
s_mov_b32 s34, 0x40000
s_mov_b32 s49, 0x01000c0c
s_cmp_lg_u32 s62, 0
s_cselect_b32 s49, 0x03020c0c, s49
v_mov_b32 v{vONE}, 1
s_mul_i32 s61, s45, {CHB}
s_mul_i32 s60, s62, {STGW}
s_add_u32 s60, s60, s61
s_mov_b32 m0, s60
s_mul_i32 s56, s45, {UCH}
s_add_u32 s56, s56, {UB}
s_mov_b32 s12, 0xbfb8aa3b
s_mov_b32 s13, 0x3e22f983
s_mov_b32 s14, 0x41000000
s_mov_b32 s15, 0x43800000
s_mov_b32 s63, 0x3fb8aa3b
s_mov_b32 s35, 0x7fff7fff
s_movk_i32 s9, {PITCH}
s_mov_b32 s10, {sl0[0]:#x}
s_mov_b32 s11, {sl0[1]:#x}
v_and_b32 v21, 48, v1
v_lshl_add_u32 v22, v20, 5, v21
v_add_u32 v{vU}, s56, v22
v_and_b32 v23, 3, v20
v_sub_u32 v23, 3, v23
v_mul_u32_u24 v23, {KCP}, v23
v_and_b32 v24, 12, v20
v_lshlrev_b32 v24, 1, v24
v_sub_u32 v23, v23, v24
v_add_u32 v23, s57, v23
v_add_u32 v{vKF}, v23, v21
v_lshrrev_b32 v24, 1, v21
v_add_u32 v{vKT}, v23, v24
v_add_u32 v24, s60, v21
v_mad_u32_u24 v{vSR}, v20, s9, v24
v_add_u32 v{vSL1}, {16*PITCH}, v24
v_lshlrev_b32 v25, 2, v20
v_lshrrev_b64 v[26:27], v25, s[10:11]
v_and_b32 v26, 15, v26
v_mad_u32_u24 v{vSL0}, v26, s9, v24
v_and_b32 v25, 32, v1
v_and_b32 v26, 16, v1
v_lshl_add_u32 v27, v25, 5, v26
v_lshl_add_u32 v27, v20, 5, v27
v_add_u32 v{vPW0}, s60, v27
v_lshl_add_u32 v{vPA}, v1, 4, s61
v_and_b32 v27, 1, v1
v_lshl_add_u32 v25, v27, 4, v25
v_and_b32 v27, 14, v1
v_lshl_add_u32 v27, v26, 1, v27
v_sub_u32 v27, s57, v27
s_mov_b32 s10, {ta1[0]:#x}
s_mov_b32 s11, {ta1[1]:#x}
s_cmp_lg_u32 s62, 0
s_cselect_b32 s10, {ta0[0]:#x}, s10
s_cselect_b32 s11, {ta0[1]:#x}, s11
v_lshrrev_b64 v[22:23], v25, s[10:11]
v_and_b32 v22, 0xffff, v22
v_add_u32 v{vAC}, v27, v22
s_cbranch_scc1 L_proL
s_add_u32 s8, s57, 1072
v_lshlrev_b32 v25, 4, v1
v_sub_u32 v{vKD}, s8, v25
v_lshl_add_u32 v{vRD}, v1, 5, s61
{"v_min_u32 v25, 5, v1" if opt.thr else ""}
{"v_mul_u32_u24 v25, %d, v25" % CHB if opt.thr else ""}
{"v_add_u32 v%d, %d, v25" % (dTH, OFLO) if opt.thr else ""}
s_branch L_prodone
L_proL:
s_add_u32 s8, s57, {2*DUMMY}
v_mov_b32 v{vAM}, s8
""")
    for lane, idx in ((0, ZD-511), (1, ZD-512), (2, ZD-513), (3, ZD-514), (16, Z3[1]-127), (32, ZX-1027), (33, ZX-1028), (34, Z2[3]-63), (48, ZD-509), (52, ZD-510)):
        a(f"s_add_u32 s8, s57, {2*idx}\nv_writelane_b32 v{vAM}, s8, {lane}")
    a(f"""
L_prodone:
{"s_barrier" if opt.lateb and not opt.gate else ""}
s_lshl_b32 s8, s45, 7
s_add_u32 s8, s8, {FL}
v_mov_b32 v{vCF}, s8
s_waitcnt lgkmcnt(0)
s_lshl_b32 s8, s40, 16
s_and_b32 s40, s40, 0xffff0000
s_lshl_b32 s9, s41, 16
s_and_b32 s41, s41, 0xffff0000
s_bitcmp0_b32 s46, 0
s_cselect_b32 s40, s8, s40
s_cselect_b32 s41, s9, s41
v_mov_b32 v{vDT}, s63
v_mov_b32 v{vDSK}, 0
v_mul_f32 v{vDT}, s40, v{vDT}
v_writelane_b32 v{vDSK}, s41, 0
v_exp_f32 v{vDT}, v{vDT}
s_cmp_lg_u32 s62, 0
""")
    stamp(a, opt, 2)
    if opt.codepf == 3:
        a("s_waitcnt vmcnt(1)\ns_cmp_ge_u32 s44, 10\ns_cbranch_scc1 L_pw\ns_waitcnt vmcnt(0)\nL_pw:\ns_cmp_lg_u32 s62, 0")
    else:
        a("s_waitcnt vmcnt(0)")
    stamp(a, opt, 3)
    if opt.chain: a(f"ds_write_b32 v{vCF}, v{vONE} offset:96")
    kprio(a, opt, 0)
    MH = "v_mfma_f32_16x16x32_f16"
    AB, CC, TA, TB, zf, wf, Zf, w2, w4, MX, MT = 52, 54, 56, 58, 60, 62, 64, 66, 68, 70, 71
    hz1, hz2, hz4, hZ1, hZ2, hZ4 = 88, 89, 90, 91, 92, 93
    RR = {j: 94 + j for j in range(1, 17)}
    LL = {}
    free = list(range(111, 128))
    def hmul(dst, x, m, conj=False):
        if not conj:
            a(f"v_pk_mul_f16 v{dst}, v{x}, v{m} op_sel:[0,0] op_sel_hi:[0,1]")
            a(f"v_pk_fma_f16 v{dst}, v{x}, v{m}, v{dst} op_sel:[1,1,0] op_sel_hi:[1,0,1] neg_lo:[0,1,0]")
        else:
            a(f"v_pk_mul_f16 v{dst}, v{x}, v{m} op_sel:[0,0] op_sel_hi:[0,1] neg_hi:[0,1]")
            a(f"v_pk_fma_f16 v{dst}, v{x}, v{m}, v{dst} op_sel:[1,1,0] op_sel_hi:[1,0,1]")
    dpp = lambda c, rm="0xf": f"v_max_u32_dpp v{MX}, v{MX}, v{MX} {c} row_mask:{rm} bank_mask:0xf"
    a(f"""
v_perm_b32 v{TA}, v{vP}, v{vP}, s49
v_and_b32 v{MX}, s35, v{vP+2}
v_mul_f32 v{TA}, s63, v{TA}
v_and_b32 v{MT}, s35, v{vP+3}
v_exp_f32 v{TA}, v{TA}
v_pk_max_u16 v{MX}, v{MX}, v{MT}
v_perm_b32 v{TA+1}, v{vP+1}, v{vP+1}, s49
v_lshlrev_b32 v{MT}, 16, v{MX}
v_cvt_pk_bf16_f32 v{vDT}, v{vDT}, v{TA}
v_max_u32 v{MX}, v{MX}, v{MT}
v_and_b32 v{TA}, 0xffff0000, v{vDT}
v_lshlrev_b32 v{vDT}, 16, v{vDT}
{dpp("row_shr:1")}
v_pk_mul_f32 {R(AB,2)}, {R(TA,2)}, {R(vDT,2)} op_sel_hi:[1,0]
v_pk_mul_f32 {R(AB,2)}, {R(AB,2)}, s[12:13]
{dpp("row_shr:2")}
v_pk_mul_f32 {R(TA,2)}, {R(AB,2)}, s[14:15] op_sel_hi:[1,0]
v_pk_mul_f32 {R(TB,2)}, {R(AB,2)}, s[14:15] op_sel:[0,1] op_sel_hi:[1,1]
{dpp("row_shr:4")}
v_fract_f32 v{AB+1}, v{AB+1}
v_exp_f32 v{AB}, v{AB}
{dpp("row_shr:8")}
v_cos_f32 v{zf}, v{AB+1}
v_sin_f32 v{zf+1}, v{AB+1}
{dpp("row_bcast:15", "0xa")}
v_fract_f32 v{TB+1}, v{TB+1}
v_pk_mul_f32 {R(zf,2)}, {R(zf,2)}, {R(AB,2)} op_sel_hi:[1,0]
{dpp("row_bcast:31", "0xc")}
v_exp_f32 v{TB}, v{TB}
v_cos_f32 v{Zf}, v{TB+1}
v_readlane_b32 s10, v{MX}, 63
v_sin_f32 v{Zf+1}, v{TB+1}
v_fract_f32 v{TA+1}, v{TA+1}
v_perm_b32 v{CC}, v{vP+2}, v{vP+2}, s49
s_and_b32 s10, s10, 0x7f800000
s_sub_u32 s8, 0x7f000000, s10
s_add_u32 s10, s10, 0x00800000
v_pk_mul_f32 {R(Zf,2)}, {R(Zf,2)}, {R(TB,2)} op_sel_hi:[1,0]
v_perm_b32 v{CC+1}, v{vP+3}, v{vP+3}, s49
v_exp_f32 v{TA}, v{TA}
v_cos_f32 v{wf}, v{TA+1}
v_sin_f32_e64 v{wf+1}, -v{TA+1}
v_pk_mul_f32 {R(CC,2)}, {R(CC,2)}, s[8:9] op_sel_hi:[1,0]
v_cvt_pk_f16_f32 v{hz1}, v{zf}, v{zf+1}
v_pk_mul_f32 {R(wf,2)}, {R(wf,2)}, {R(TA,2)} op_sel_hi:[1,0]
v_cvt_pk_f16_f32 v{hZ1}, v{Zf}, v{Zf+1}
v_mul_f32 v{vC2}, s10, v{vDT}
s_cmp_lg_u32 s62, 0
""")
    if opt.stamps == 1: stamp(a, opt, 10)
    pend = []
    def flush():
        for t, slot in pend: a(f"ds_write_addtid_b32 v{t} offset:{PITCH*slot}")
        pend.clear()
    def put(reg, slot):
        pend.append((reg, slot))
        if len(pend) == opt.batch: flush()
    rot = [0]
    def tmp():
        r = 120 + rot[0] % 8; rot[0] += 1; return r
    keep = {0: 111, 2: 112, 4: 113, 6: 114, 256: 115, 260: 116, 512: 117, 768: 118, 1024: 119}
    def L(b, src, m, slot, conj=False):
        dst = keep.get(b) or tmp()
        hmul(dst, src, m, conj); put(dst, slot)
    a(f"v_cvt_pk_f16_f32 v{keep[0]}, v{CC}, v{CC+1}"); put(keep[0], 0)
    hmul(hz2, hz1, hz1)
    a(f"v_cvt_pk_f16_f32 v{RR[1]}, v{wf}, v{wf+1}")
    L(1, keep[0], hz1, 1); L(2, keep[0], hz2, 2)
    hmul(hz4, hz2, hz2)
    L(3, keep[2], hz1, 3); L(4, keep[0], hz4, 4); L(5, keep[4], hz1, 5); L(6, keep[4], hz2, 6); L(7, keep[6], hz1, 7)
    L(256, keep[0], hZ1, 8); L(258, keep[2], hZ1, 10); L(260, keep[4], hZ1, 11); L(262, keep[6], hZ1, 14)
    L(264, keep[256], RR[1], 15, conj=True)
    flush()
    for k in range(4): a(f"ds_read_b128 {R(vLF+4*k,4)}, v{vSL0} offset:{64*k}")
    kprio(a, opt, 1)
    hmul(hZ2, hZ1, hZ1)
    cmul(a, w2, wf, wf)
    L(512, keep[0], hZ2, 0); L(516, keep[4], hZ2, 1); L(768, keep[256], hZ2, 4); L(772, keep[260], hZ2, 5)
    hmul(hZ4, hZ2, hZ2)
    cmul(a, w4, w2, w2)
    L(1024, keep[0], hZ4, 8); L(1280, keep[256], hZ4, 12); L(1536, keep[512], hZ4, 9); L(1792, keep[768], hZ4, 13); L(2048, keep[1024], hZ4, 6)
    flush()
    for k in range(4): a(f"ds_read_b128 {R(vLF+16+4*k,4)}, v{vSR} offset:{64*k}")
    if opt.stamps == 1: stamp(a, opt, 11)
    if opt.k4: kprio(a, opt, 2)
    t = tmp()
    a(f"v_mov_b32 v{t}, 0x3c00"); put(t, 0); put(RR[1], 1)
    a(f"v_cvt_pk_f16_f32 v{RR[2]}, v{w2}, v{w2+1}"); put(RR[2], 2)
    a(f"v_cvt_pk_f16_f32 v{RR[4]}, v{w4}, v{w4+1}"); put(RR[4], 4)
    hmul(RR[3], RR[1], RR[2]); put(RR[3], 3)
    hmul(RR[8], RR[4], RR[4]); put(RR[8], 8)
    for j in (5, 6, 7): hmul(RR[j], RR[j-4], RR[4]); put(RR[j], j)
    hmul(RR[16], RR[8], RR[8])
    if opt.rhi:
        a(f"ds_write_addtid_b32 v{RR[16]} offset:{PITCH*16}")
    for j in range(9, 16):
        hmul(RR[j], RR[j-8], RR[8]); put(RR[j], j)
        if j == 11 and not opt.k4: kprio(a, opt, 2)
    flush()
    if opt.rhi:
        WF = 104
        for k in range(4):
            a(f"ds_read_b128 {R(vRF+4*k,4)}, v{vSR} offset:{64*k}")
            a(f"ds_read_b128 {R(WF+4*k,4)}, v{vSL1} offset:{64*k}")
        if opt.stamps == 1: stamp(a, opt, 12, True)
        if opt.k4: kprio(a, opt, 3)
        else: a(f"s_setprio {opt.xprio}")
        def mm(n, k, m):
            dd = vD + 8 * m + 4 * n
            src = (vRF if n == 0 else WF) + 4 * k
            a(f"{MH} {R(dd,4)}, {R(vLF+16*m+4*k,4)}, {R(src,4)}, {'0' if k == 0 else R(dd,4)}")
        for k in range(4):
            a(f"s_waitcnt lgkmcnt({6-2*k})")
            for e in range(4):
                t = tmp(); x = vRF + 4 * k + e; m_ = WF + 4 * k + e
                a(f"v_pk_mul_f16 v{t}, v{x}, v{m_} op_sel:[0,0] op_sel_hi:[0,1]")
                a(f"v_pk_fma_f16 v{m_}, v{x}, v{m_}, v{t} op_sel:[1,1,0] op_sel_hi:[1,0,1] neg_lo:[0,1,0]")
                if e == 0: mm(0, k, 0)
                if e == 1 and k > 0: mm(1, k - 1, 0)
                if e == 2: mm(0, k, 1)
                if e == 3 and k > 0: mm(1, k - 1, 1)
        a("s_nop 1")
        mm(1, 3, 0); mm(1, 3, 1)
        a(f"s_setprio {opt.xprio}\ns_nop 0" if opt.k4 else "s_nop 1")
    else:
        for k in range(4): a(f"ds_read_b128 {R(vRF+4*k,4)}, v{vSR} offset:{64*k}")
        put(RR[16], 0)
        for j in range(17, 32):
            t = tmp()
            hmul(t, RR[j-16], RR[16]); put(t, j - 16)
            if j == 19:
                a(f"s_waitcnt lgkmcnt({4 - len(pend)})")
            if 19 <= j < 27:
                k, m = (j - 19) // 2, (j - 19) % 2
                dd = vD + 8 * m
                a(f"{MH} {R(dd,4)}, {R(vLF+16*m+4*k,4)}, {R(vRF+4*k,4)}, {'0' if k == 0 else R(dd,4)}")
        flush()
        if opt.stamps == 1: stamp(a, opt, 12, True)
        for k in range(4): a(f"ds_read_b128 {R(vRF+4*k,4)}, v{vSR} offset:{64*k}")
        a(f"s_setprio {opt.xprio}")
        for k in range(4):
            a(f"s_waitcnt lgkmcnt({3-k})")
            for m in range(2):
                dd = vD + 8 * m + 4
                a(f"{MH} {R(dd,4)}, {R(vLF+16*m+4*k,4)}, {R(vRF+4*k,4)}, {'0' if k == 0 else R(dd,4)}")
    a(f"""
ds_write_b128 v{vPW0}, {R(vD,4)}
s_cmp_lg_u32 s62, 0
s_cbranch_scc1 L_xL
ds_write_addtid_b32 v{vD+8} offset:2048
ds_write_addtid_b32 v{vD+10} offset:2560
s_nop 2
ds_write_b128 v{vPW0}, {R(vD+4,4)} offset:512
ds_write_addtid_b32 v{vD+12} offset:2304
ds_write_b32 v{vCF}, v{vONE}
""")
    if opt.stamps == 1: stamp(a, opt, 13)
    wait_flags(a, [(20, 4)], "pxd")
    stamp(a, opt, 4)
    A_, B_, Pv, E, O, E2, O2 = 88, 100, 96, 108, 112, 116, 120
    d = lambda k: A_ + k
    a(f"""
ds_read_b128 {R(A_+4,4)}, v{vRD} offset:16
ds_read_b128 {R(B_+4,4)}, v{vRD} offset:{STGW+16}
ds_read_b128 {R(A_,4)}, v{vRD}
ds_read_b128 {R(B_,4)}, v{vRD} offset:{STGW}
ds_read_addtid_b32 v20 offset:{STGW+2048}
ds_read_addtid_b32 v21 offset:{STGW+2304}
s_waitcnt lgkmcnt(4)
v_pk_add_f32 {R(A_+4,2)}, {R(A_+4,2)}, {R(B_+4,2)}
v_pk_add_f32 {R(A_+6,2)}, {R(A_+6,2)}, {R(B_+6,2)}
v_pk_mul_f32 {R(A_+4,2)}, {R(A_+4,2)}, {R(vC2,2)} op_sel_hi:[1,0]
v_pk_mul_f32 {R(A_+6,2)}, {R(A_+6,2)}, {R(vC2,2)} op_sel_hi:[1,0]
s_waitcnt lgkmcnt(2)
v_pk_add_f32 {R(A_,2)}, {R(A_,2)}, {R(B_,2)}
v_pk_add_f32 {R(A_+2,2)}, {R(A_+2,2)}, {R(B_+2,2)}
v_fma_f32 v{A_}, v{A_}, v{vC2}, v{vDSK}
v_mul_f32 v{A_+1}, v{A_+1}, v{vC2}
v_pk_mul_f32 {R(A_+2,2)}, {R(A_+2,2)}, {R(vC2,2)} op_sel_hi:[1,0]
v_mov_b32_dpp v{Pv}, v{d(5)} wave_shr:1 row_mask:0xf bank_mask:0xf bound_ctrl:0
v_mov_b32_dpp v{Pv+1}, v{d(6)} wave_shr:1 row_mask:0xf bank_mask:0xf bound_ctrl:0
v_mov_b32_dpp v{Pv+2}, v{d(7)} wave_shr:1 row_mask:0xf bank_mask:0xf bound_ctrl:0
v_cvt_pk_bf16_f32 v{E}, v{d(7)}, v{d(6)}
v_cvt_pk_bf16_f32 v{E+1}, v{d(5)}, v{d(4)}
v_cvt_pk_bf16_f32 v{E+2}, v{d(3)}, v{d(2)}
v_cvt_pk_bf16_f32 v{E+3}, v{d(1)}, v{d(0)}
ds_write_b128 v{vKD}, {R(E,4)}
v_cvt_pk_bf16_f32 v{O}, v{d(6)}, v{d(5)}
v_cvt_pk_bf16_f32 v{O+1}, v{d(4)}, v{d(3)}
v_cvt_pk_bf16_f32 v{O+2}, v{d(2)}, v{d(1)}
v_cvt_pk_bf16_f32 v{O+3}, v{d(0)}, v{Pv+2}
ds_write_b128 v{vKD}, {R(O,4)} offset:{KCP}
v_mov_b32 v{E2}, v{E+1}
v_mov_b32 v{E2+1}, v{E+2}
v_mov_b32 v{E2+2}, v{E+3}
v_cvt_pk_bf16_f32 v{E2+3}, v{Pv+2}, v{Pv+1}
ds_write_b128 v{vKD}, {R(E2,4)} offset:{2*KCP}
v_mov_b32 v{O2}, v{O+1}
v_mov_b32 v{O2+1}, v{O+2}
v_mov_b32 v{O2+2}, v{O+3}
v_cvt_pk_bf16_f32 v{O2+3}, v{Pv+1}, v{Pv}
ds_write_b128 v{vKD}, {R(O2,4)} offset:{3*KCP}
s_waitcnt lgkmcnt(4)
v_add_f32 v20, v20, v{vD+9}
v_add_f32 v21, v21, v{vD+13}
v_mul_f32 v20, v20, v{vC2}
v_mul_f32 v21, v21, v{vC2}
v_cvt_pk_bf16_f32 v20, v20, v21
""")
    for sg in range(4):
        a(f"ds_write_b16 v{vAC}, v20 offset:{sg*(KCP-2)+16}")
        a(f"ds_write_b16_d16_hi v{vAC}, v20 offset:{sg*(KCP-2)}")
    a(f"ds_write_b32 v{vCF}, v{vONE} offset:8")
    stamp(a, opt, 5)
    SD = Stream(a)
    F = {16 + 32 * s: Frag("F", 16 + 32 * s, dF + 4 * s) for s in range(16)}
    for k in range(opt.pre):
        SD.load(F[16 + 32 * k] if opt.blk else F[16 + 32 * (k // 2) + 256 * (k % 2)])
    a(f"s_setprio {dprio(opt, 0)}")
    if opt.alow: a(f"s_cmp_ge_u32 s45, 2\ns_cbranch_scc1 L_dl\ns_setprio {dprio(opt, 0) - 1}\nL_dl:")
    wait_flags(a, [(18, 16)] if opt.defer else [(18, 16), (19, 12)], "d")
    SD.done = SD.lds_n
    stamp(a, opt, 7, True)
    emit_dense(a, opt, SD, F)
    a("s_branch L_fin")
    a.label("L_xL")
    a(f"""
ds_write_addtid_b32 v{vD+9} offset:2048
v_mov_b32 v20, s61
s_nop 2
ds_write_b128 v{vPW0}, {R(vD+4,4)} offset:512
ds_write_addtid_b32 v{vD+13} offset:2304
ds_write_b32 v{vCF}, v{vONE} offset:4
s_mov_b32 m0, s61
""")
    if opt.stamps == 1: stamp(a, opt, 13)
    wait_flags(a, [(21, 0)], "pxl")
    stamp(a, opt, 4)
    n0, n1 = vD + 8, vD + 12
    a(f"""
ds_read_addtid_b32 v24 offset:2048
ds_read_addtid_b32 v25 offset:2304
ds_read_addtid_b32 v26 offset:2560
ds_read_b128 v[32:35], v20 offset:2032
ds_read_b128 v[36:39], v20 offset:{2032+STGW}
s_mov_b32 s8, -2
s_waitcnt lgkmcnt(2)
v_add_f32 v24, v24, v{n0}
v_add_f32 v25, v25, v{n1}
v_add_f32 v26, v26, v{n0+2}
v_mul_f32 v24, v24, v{vC2}
v_mul_f32 v25, v25, v{vC2}
v_mul_f32 v26, v26, v{vC2}
v_cvt_pk_bf16_f32 v40, v24, v25
v_mov_b32_dpp v42, v24 quad_perm:[0,0,0,0] row_mask:0x4 bank_mask:0xf
""")
    for sg in range(4):
        a(f"ds_write_b16_d16_hi v{vAC}, v40 offset:{sg*(KCP-2)}")
    a(f"""
s_waitcnt lgkmcnt(4)
v_mov_b32_dpp v42, v26 quad_perm:[0,1,2,3] row_mask:0x2 bank_mask:0xf
v_add_f32 v33, v33, v37
v_pk_add_f32 v[34:35], v[34:35], v[38:39]
v_mul_f32 v33, v33, v{vC2}
v_pk_mul_f32 v[34:35], v[34:35], {R(vC2,2)} op_sel_hi:[1,0]
s_mov_b32 exec_lo, s8
s_mov_b32 exec_hi, s8
""")
    for sg in range(4):
        a(f"ds_write_b16 v{vAC}, v40 offset:{sg*(KCP-2)+16}")
    a(f"""
s_mov_b64 exec, -1
v_mov_b32_dpp v42, v33 quad_perm:[0,1,2,3] row_mask:0x8 bank_mask:0x1
v_mov_b32_dpp v42, v34 quad_perm:[0,1,2,3] row_mask:0x8 bank_mask:0x2
v_mov_b32_dpp v42, v35 quad_perm:[0,1,2,3] row_mask:0x1 bank_mask:0xf
v_subrev_u32 v19, s61, v{vPA}
v_cvt_pk_bf16_f32 v42, v42, v42
v_add_u32 v19, {BOXL}, v19
""")
    for sg in range(4):
        a(f"ds_write_b16 v{vAM}, v42 offset:{sg*(KCP-2)}")
    a(f"ds_write_b32 v{vCF}, v{vONE} offset:12")
    stamp(a, opt, 5)
    SL = Stream(a)
    LK = level_frags()
    for k in LORDER[:opt.prel]:
        SL.load(LK[k])
    a(f"s_setprio {min(dprio(opt, 0) + opt.lup, 3)}")
    if opt.alow: a(f"s_cmp_ge_u32 s45, 2\ns_cbranch_scc1 L_ll\ns_setprio {dprio(opt, 0) - 1}\nL_ll:")
    wait_flags(a, [(16, 16), (17, 8)], "l")
    SL.done = SL.lds_n
    stamp(a, opt, 7, True)
    for j, wdt in enumerate((3, 5, 7, 9)):
        SL.lds(f"ds_read_b128 {R(BOX[wdt],4)}, v19 offset:{1024*j}")
    if not opt.nol: emit_level(a, opt, SL, LK)
    a("s_branch L_fin")
    a(f"""
L_mem0:
s_sub_u32 s45, s44, 12
v_mov_b32 v8, 0
v_mov_b32 v9, 0
v_mov_b32 v10, 0
v_mov_b32 v11, 0
v_lshlrev_b32 v7, 4, v1
{"" if opt.gate else "ds_write_b128 v7, v[8:11] offset:%d" % FL}
v_min_u32 v5, 5, v1
v_mul_u32_u24 v16, {CHB}, v5
ds_write_b32 v16, v8 offset:{OFLO}
ds_write_b32 v16, v8 offset:{OFLO + 256}
s_lshl_b32 s47, s5, 1
s_mul_i32 s9, s45, {512*1152}
s_add_u32 s9, s9, s47
s_add_u32 s10, s9, {256*1152}
v_mul_u32_u24 v19, {4*1152}, v1
""")
    if opt.mord:
        a("""
s_cmp_eq_u32 s45, 0
s_cbranch_scc1 L_mp
s_setprio 2
s_cmp_eq_u32 s45, 1
s_cbranch_scc1 L_mp
s_setprio 1
s_cmp_eq_u32 s45, 2
s_cbranch_scc1 L_mp
s_setprio 0
L_mp:
""")
    a(f"""
s_waitcnt lgkmcnt(0)
s_mov_b32 s18, {2048*1152}
s_mov_b32 s19, 0x00020000
""")
    if opt.stamps == 1: stamp(a, opt, 14)
    if opt.codepf == 2:
        a("""
s_getpc_b64 s[52:53]
L_pc:
v_lshlrev_b32 v6, 7, v1
v_add_u32 v7, 8192, v6
v_min_u32 v7, L_codeend-L_pc-4, v7
s_cmp_lg_u32 s45, 0
""")
    if opt.gate:
        a(f"""
s_mul_i32 s8, s59, 192
s_lshl_b32 s11, s45, 6
s_add_u32 s8, s8, s11
v_add_u32 v6, s8, v1
v_mul_u32_u24 v6, 1152, v6
v_mov_b32 v17, {FL + 768}
s_mov_b32 s36, 0x40000
L_gw:
ds_read_b32 v7, v17
s_waitcnt lgkmcnt(0)
s_sub_u32 s36, s36, 1
s_cbranch_scc1 L_gok
v_cmp_gt_u32 vcc, 12, v7
s_cbranch_vccz L_gok
s_sleep 1
s_branch L_gw
L_gok:
""")
        if opt.upf:
            a(f"""
s_cmp_eq_u32 s45, 3
s_cbranch_scc1 L_noupf
buffer_load_dword v13, v6, s[16:19], s47 offen
L_noupf:
""")
    else:
        a("s_barrier")
    if opt.codepf == 2:
        a("""
s_cbranch_scc1 L_nocpf
global_load_dword v12, v6, s[52:53]
global_load_dword v13, v7, s[52:53]
L_nocpf:
""")
    if opt.chain:
        a(f"""
s_cmp_lt_u32 s45, {opt.chain}
s_cbranch_scc1 L_chok
v_mov_b32 v6, {FL + 96 + 128*opt.trig}
s_mov_b32 s36, 0x40000
L_chw:
s_sleep 2
ds_read_b32 v7, v6
s_waitcnt lgkmcnt(0)
s_sub_u32 s36, s36, 1
s_cbranch_scc1 L_chok
v_cmp_eq_u32 vcc, 0, v7
s_cbranch_vccnz L_chw
L_chok:
""")
    stamp(a, opt, 1)
    for k in range(8):
        tile, e = k // 4, k % 4
        a(f"buffer_load_dwordx3 {R(mUD+4*k,3)}, v19, s[16:19], s{9+tile} offen offset:{e*1152}" + (" nt" if opt.nt else ""))
    stamp(a, opt, 2)
    a(f"""
s_setprio 3
""")
    a(f"""
v_and_b32 v4, 15, v1
v_lshrrev_b32 v15, 4, v1
s_cmp_lg_u32 s45, 0
s_cbranch_scc1 L_nobox
v_lshrrev_b32 v7, 5, v1
v_mul_u32_u24 v7, {UCH}, v7
v_and_b32 v6, 31, v1
v_lshl_add_u32 v6, v6, 4, v7
v_add_u32 v6, {UB}, v6
ds_write_b128 v6, v[8:11]
ds_write_b128 v6, v[8:11] offset:{2*UCH}
ds_write_b128 v6, v[8:11] offset:{4*UCH}
v_lshlrev_b32 v6, 3, v15
v_sub_u32 v6, v6, v4
v_add_u32 v6, 15, v6
v_min_u32 v6, 31, v6
s_mov_b32 s8, 0x8001
s_mov_b32 s12, 0x10001
s_mov_b32 s10, 0x3f80
v_lshlrev_b32 v17, 4, v1
v_add_u32 v17, {BOXL}, v17
""")
    for j, (wdt, lo) in enumerate(((3, 11), (5, 6), (7, 5), (9, 4))):
        a(f"s_mov_b32 s11, {((1<<wdt)-1) << (lo+15):#x}\nv_lshrrev_b32 v7, v6, s11")
        for w in range(4):
            d_ = 8 + w
            a(f"v_bfe_u32 v{d_}, v7, {2*w}, 2\nv_mul_u32_u24 v{d_}, s8, v{d_}\nv_and_b32 v{d_}, s12, v{d_}\nv_mul_u32_u24 v{d_}, s10, v{d_}")
        a(f"ds_write_b128 v17, v[8:11] offset:{1024*j}")
    a(f"""
L_nobox:
s_add_u32 s48, s48, s47
s_mov_b32 s34, {2048*2304}
s_mov_b32 s35, 0x00020000
s_mov_b32 s50, 0x05040100
s_mov_b32 s51, 0x07060302
s_mov_b32 s36, 0x40000
v_lshl_add_u32 v4, v4, 2, v15
v_mul_u32_u24 v18, {4*2304}, v4
s_lshl_b32 s8, s45, 10
s_add_u32 s8, s8, {UB + 512}
v_lshl_add_u32 v3, v1, 3, s8
v_add_u32 v18, s48, v18
s_lshl_b32 s8, s45, 3
s_add_u32 s8, s8, {FL + 16}
v_lshl_add_u32 v14, v5, 7, s8
v_mov_b32 v2, 1
""")
    stamp(a, opt, 4)
    for tile in range(2):
        a(f"s_waitcnt vmcnt({4 - 4*tile})")
        q = lambda e, m: mUD + 4 * (4 * tile + e) + m
        for m in range(3):
            for hi in range(2):
                t = mT + 2 * ((2 * m + hi) % 4)
                a(f"v_perm_b32 v{t}, v{q(1,m)}, v{q(0,m)}, s{50+hi}")
                a(f"v_perm_b32 v{t+1}, v{q(3,m)}, v{q(2,m)}, s{50+hi}")
                a(f"ds_write_b64 v3, {R(t,2)} offset:{(2*m+hi)*UCH + 512*tile}")
        a(f"ds_write_b32 v14, v2 offset:{4*tile}")
        stamp(a, opt, 6 if tile == 0 else 11)
    a(f"""
s_bitcmp1_b32 s45, 0
s_cselect_b32 s50, s51, s50
s_mul_i32 s57, s45, 2304
s_mov_b32 s56, 1
s_lshr_b32 s8, s45, 1
s_lshl_b32 s8, s8, 8
s_add_u32 s8, s8, {OUTO}
v_lshl_add_u32 v4, v1, 2, s8
L_mpoll:
ds_read_b32 v8, v16 offset:{OFLO}
s_waitcnt lgkmcnt(0)
v_cmp_gt_u32 vcc, s56, v8
s_cbranch_vccz L_mgo
s_sleep {opt.msleep}
s_sub_u32 s36, s36, 1
s_cbranch_scc0 L_mpoll
L_mgo:
""")
    for c in range(6):
        a(f"ds_read_b32 v{mIN+c}, v4 offset:{CHB*c}")
    a(f"v_add_u32 v4, 512, v4")
    for m in range(3):
        a(f"s_waitcnt lgkmcnt({4-2*m})")
        a(f"v_perm_b32 v{mSO+m}, v{mIN+2*m+1}, v{mIN+2*m}, s50")
    a(f"""
buffer_store_dwordx3 {R(mSO,3)}, v18, s[32:35], s57 offen
s_add_u32 s57, s57, {256*2304}
s_add_u32 s56, s56, 1
""")
    if opt.wb:
        a(f"""
s_cmp_ge_u32 s2, {opt.wbg}
s_cbranch_scc1 L_nowb
s_cmp_lg_u32 s45, 3
s_cbranch_scc1 L_nowb
s_mov_b32 s8, {opt.wb}
s_bitcmp1_b32 s8, s56
s_cbranch_scc0 L_nowb
buffer_wbl2 sc1
L_nowb:
""")
    if opt.stamps:
        a(f"s_cmp_lg_u32 s56, 2\ns_cbranch_scc1 L_ms")
        stamp(a, opt, 10)
        a.label(f"L_ms")
    a(f"s_cmp_le_u32 s56, 8\ns_cbranch_scc1 L_mpoll")
    a.label("L_fin")
    if opt.amp: stamp(a, opt, 8)
    if opt.stamps and not opt.amp:
        stamp(a, opt, 8)
        a("s_waitcnt vmcnt(0)")
        stamp(a, opt, 9)
        a(f"""
s_load_dwordx2 s[8:9], s[0:1], 128
s_waitcnt lgkmcnt(0)
s_lshl_b32 s10, s2, 4
s_add_u32 s10, s10, s44
s_lshl_b32 s10, s10, 7
s_add_u32 s10, s10, {1<<20}
v_mov_b32 v20, s10
""")
        for k in range(1, NST):
            a(f"s_sub_u32 s11, s{64+2*k}, s64\nv_mov_b32 v21, s11\nglobal_store_dword v20, v21, s[8:9] offset:{4*k}")
        a("s_memrealtime s[10:11]\ns_waitcnt lgkmcnt(0)\nv_mov_b32 v21, s10\nglobal_store_dword v20, v21, s[8:9] offset:0")
        a("v_mov_b32 v21, s100\nglobal_store_dword v20, v21, s[8:9] offset:80")
        a("s_getreg_b32 s11, hwreg(HW_REG_HW_ID)\nv_mov_b32 v21, s11\nglobal_store_dword v20, v21, s[8:9] offset:84")
        a("s_getreg_b32 s11, hwreg(HW_REG_XCC_ID)\nv_mov_b32 v21, s11\nglobal_store_dword v20, v21, s[8:9] offset:88")
        a("v_mov_b32 v21, s64\nglobal_store_dword v20, v21, s[8:9] offset:92")
    if opt.amp:
        ampx = ("s_add_u32 s10, s82, %d" % opt.amp) if opt.amp > 100 else ("s_sub_u32 s10, s%d, s64\ns_lshl_b32 s10, s10, 2\ns_add_u32 s10, s10, s82" % (64 + 2 * opt.amp))
        a(f"""
s_waitcnt vmcnt(0)
s_memtime s[82:83]
s_waitcnt lgkmcnt(0)
s_cmp_lg_u32 s2, {opt.ampg}
s_cbranch_scc1 L_end
s_cmp_lg_u32 s44, {opt.ampw}
s_cbranch_scc1 L_end
{ampx}
L_amp:
s_memtime s[12:13]
s_waitcnt lgkmcnt(0)
s_sub_u32 s11, s12, s10
s_cmp_lt_i32 s11, 0
s_cbranch_scc1 L_amp
""")
    a.label("L_end")
    a("s_endpgm")
    for st in STUBS: a(st)
    a.label("L_codeend")
    out += a.text()
    out += f""".section .rodata,"a"
.p2align 6
.amdhsa_kernel {NAME}_kernel
  .amdhsa_next_free_vgpr 128
  .amdhsa_next_free_sgpr 102
  .amdhsa_accum_offset 128
  .amdhsa_group_segment_fixed_size 0
  .amdhsa_kernarg_size 136
  .amdhsa_user_sgpr_count 2
  .amdhsa_user_sgpr_kernarg_segment_ptr 1
  .amdhsa_system_sgpr_workgroup_id_x 1
.end_amdhsa_kernel
"""
    return out

if __name__ == "__main__":
    p = argparse.ArgumentParser()
    p.add_argument("-o", default="cdna_kernels/" + NAME + ".s")
    for k, v in dict(stamps=0, la=6, batch=8, pre=15, prel=1, codepf=3, chain=3, trig=0, rhi=1, sidem=1, blk=8, wb=0, wbg=8, amp=0, ampg=0, ampw=15, k4=1, alow=1, e2=1, gate=0, nt=1, kmin=0, upf=0, nol=0, msleep=1, quarter=1,
                     ptop=2, pstep=3, lead=1, xprio=2, mord=1, lateb=1, defer=1, ktop=3, klead=0, thr=0, lup=0).items():
        p.add_argument("--" + k, type=int, default=v)
    opt = p.parse_args()
    open(opt.o, "w").write(generate(opt))
```

```python
import sys, argparse

NAME = "concat_heads__ssm_conv_s4d__ssm_conv_s4d__prompt"

PITCH = 288
STGW = 4896
CHB = 10752
OUTO, OFLO = 6144, 10240
FL = 6 * CHB
KA = FL + 1024
KCP = 2112
KCH = 4 * KCP
UB = KA + 6 * KCH
UCH = 4608
BOXL = UB + 6 * UCH
LDS_TOTAL = BOXL + 4096
ZD, ZX = 543, 1615
Z2 = [687 + 64 * m for m in range(4)]
Z3 = [991, 1071]
DUMMY = 1040

vPA, vCF, vONE, vOW = 0, 1, 2, 3
vU, vKF, vKT, vSR, vSL0, vSL1, vPW0 = 4, 5, 6, 7, 8, 9, 10
vKD, vRD = 11, 12
vAC, vAM = 14, 13
BOX = {3: 112, 5: 116, 7: 120, 9: 124}
vLF, vRF, vD = 20, 52, 68
vP = 36
vDT, vDSK, vC2 = 84, 85, 86
Z_, W_, ZZ, X_, Y_ = 88, 90, 92, 94, 96
T_ = [98, 99, 100, 101]
dF, dACC, dG, dPT, dOT, dFLG, dCN, dUT = 20, 84, 96, 12, 16, 18, 8, 10
dTH, dTT = 6, 19
lT2, lT3, lFX, lF5, lACC, lW, lG, lUT = 20, 44, 60, 64, 68, 92, 104, 7
mUD, mT, mIN, mSO = 20, 52, 60, 72
MF = "v_mfma_f32_16x16x32_bf16"

class Asm:
    def __init__(self): self.lines = []
    def __call__(self, s):
        for l in s.strip("\n").split("\n"):
            if not l.strip(): continue
            self.lines.append(l if l.rstrip().endswith(":") and not l.startswith(" ") else "    " + l.strip())
    def label(self, l): self.lines.append(l + ":")
    def text(self): return "\n".join(self.lines) + "\n"

def R(a, n=1): return f"v{a}" if n == 1 else f"v[{a}:{a+n-1}]"

def cmul(a, dst, x, m, conj=False):
    if not conj:
        a(f"v_pk_mul_f32 {R(dst,2)}, {R(x,2)}, {R(m,2)} op_sel:[0,0] op_sel_hi:[0,1]")
        a(f"v_pk_fma_f32 {R(dst,2)}, {R(x,2)}, {R(m,2)}, {R(dst,2)} op_sel:[1,1,0] op_sel_hi:[1,0,1] neg_lo:[0,1,0]")
    else:
        a(f"v_pk_mul_f32 {R(dst,2)}, {R(x,2)}, {R(m,2)} op_sel:[0,0] op_sel_hi:[0,1] neg_hi:[0,1]")
        a(f"v_pk_fma_f32 {R(dst,2)}, {R(x,2)}, {R(m,2)}, {R(dst,2)} op_sel:[1,1,0] op_sel_hi:[1,0,1]")

NST = 18
def stamp(a, opt, idx, wait=False):
    if opt.stamps and idx is not None:
        a(f"s_memtime s[{64+2*idx}:{65+2*idx}]")
        if wait: a("s_waitcnt lgkmcnt(0)")

class Frag:
    def __init__(self, kind, key, reg=None):
        self.kind, self.key, self.reg = kind, key, reg
        self.first = None; self.last = None; self.issued = False; self.seq = -1

def frag_reads(f):
    k = f.key
    if f.kind == "G": return [("ds_read_b128", f.reg, 4, vU, 512 + 2 * k)]
    if f.kind in ("F", "FX"):
        o = 2 * (ZD - 3 - k) if f.kind == "F" else 2 * (ZX - 3 - 1040)
        return [("ds_read_b64", f.reg, 2, vKF, o), ("ds_read_b64", f.reg + 2, 2, vKF, o + 8)]
    if f.kind == "T2":
        d, h = k
        return [("ds_read_b64", f.reg + 2 * j, 2, vKT, 2 * (Z2[2 * h + j] - 3 - 16 * d)) for j in range(2)]
    if f.kind == "T3":
        return [("ds_read_b64", f.reg + 2 * j, 2, vKT, 2 * (Z3[j] - 3 - 16 * k)) for j in range(2)]
    raise ValueError

class Stream:
    def __init__(self, a):
        self.a = a; self.n = 0; self.lds_n = 0; self.done = 0
    def ins(self, s, w=1): self.a(s); self.n += w
    def lds(self, s): self.ins(s); self.lds_n += 1; return self.lds_n
    def wait(self, seq):
        if seq > self.done:
            k = min(self.lds_n - seq, 15)
            self.ins(f"s_waitcnt lgkmcnt({k})"); self.done = self.lds_n - k
    def until(self, n):
        if self.n < n: self.ins(f"s_nop {n - self.n - 1}", n - self.n)
    def load(self, f):
        for (mn, d, n, ar, off) in frag_reads(f):
            f.seq = self.lds(f"{mn} {R(d,n)}, v{ar} offset:{off}")
        f.issued = True

STUBS = []
def wait_flags(a, reads, tag):
    rd = "\n".join(f"ds_read_b32 v{t}, v{vCF} offset:{o}" for t, o in reads)
    comb = "" if len(reads) == 1 else f"v_and_b32 v{reads[0][0]}, v{reads[0][0]}, v{reads[1][0]}\n"
    a.label(f"L_w_{tag}")
    a(f"{rd}\ns_waitcnt lgkmcnt(0)\n{comb}v_cmp_eq_u32 vcc, 0, v{reads[0][0]}\ns_cbranch_vccnz L_ws_{tag}")
    a.label(f"L_wd_{tag}")
    STUBS.append(f"L_ws_{tag}:\ns_sleep 1\ns_sub_u32 s34, s34, 1\ns_cbranch_scc0 L_w_{tag}\ns_branch L_wd_{tag}")

def flag_check(a, S, seq, tmp, off, tag, extra=""):
    S.wait(seq)
    S.ins(f"v_cmp_eq_u32 vcc, 0, v{tmp}")
    S.ins(f"s_cbranch_vccnz L_sp_{tag}")
    a.label(f"L_ok_{tag}")
    STUBS.append(f"""L_sp_{tag}:
s_sleep 1
ds_read_b32 v{tmp}, v{vCF} offset:{off}
{extra}s_waitcnt lgkmcnt(0)
s_sub_u32 s34, s34, 1
s_cbranch_scc1 L_ok_{tag}
v_cmp_eq_u32 vcc, 0, v{tmp}
s_cbranch_vccnz L_sp_{tag}
s_branch L_ok_{tag}""")

def cnt_check(a, S, seq, tmp, rd, val, tag, extra=""):
    S.wait(seq)
    S.ins(f"v_cmp_gt_u32 vcc, {val}, v{tmp}")
    S.ins(f"s_cbranch_vccnz L_sp_{tag}")
    a.label(f"L_ok_{tag}")
    STUBS.append(f"""L_sp_{tag}:
s_sleep 1
{rd}
{extra}s_waitcnt lgkmcnt(0)
s_sub_u32 s34, s34, 1
s_cbranch_scc1 L_ok_{tag}
v_cmp_gt_u32 vcc, {val}, v{tmp}
s_cbranch_vccnz L_sp_{tag}
s_branch L_ok_{tag}""")

def dprio(opt, t):
    if opt.plist: return int(str(opt.plist)[min(t, 7)])
    return max(opt.ptop - t // opt.pstep, 0)

def emit_dense(a, opt, S, F):
    ops = []
    for tau in range(8):
        gs = [Frag("G", 256 * tau - 16 - 32 * s) for s in range(8)]
        for s in range(8): gs[s].tile = tau if s == 0 else None
        lag = opt.blk
        for s in range(8 + lag):
            if s < 8: ops.append((tau, F[16 + 32 * s], gs[s], tau == 0 and s == 0))
            if s == 7 and lag: ops.append(("end", tau))
            if tau < 7 and 0 <= s - lag < 8: ops.append((tau + 1, F[272 + 32 * (s - lag)], gs[s - lag], s == lag))
            if s == 7 and not lag: ops.append(("end", tau))
    gl = []
    for i, op in enumerate(ops):
        if op[0] == "end": continue
        for g in (op[1], op[2]):
            if g.first is None:
                g.first = i
                if not g.issued: gl.append(g)
            g.last = i
    endpos = {op[1]: i for i, op in enumerate(ops) if op[0] == "end"}
    tfirst = {g.tile: g.first for g in gl if g.kind == "G" and g.tile is not None}
    ring = [-1] * 8
    acc_last = {}
    side = []
    pinfo = {}
    PRD = f"ds_read_addtid_b32 v{dFLG} offset:{OFLO + 256}"
    def ptxt(t): return f"ds_read_b128 {R(dPT,4)}, v{vPA} offset:{(t-2)*1024}"
    def queue_out(t):
        ac = dACC + 4 * (t % 3)
        rn = acc_last[t] + 8
        if t >= 2:
            if not opt.nol:
                side.append((0, lambda: cnt_check(a, S, pinfo[t], dFLG, PRD, t, f"p{t}", ptxt(t) + "\n")))
            side.append((rn, lambda: (S.ins(f"v_add_f32 v{dPT}, v{dPT}, v{ac}"), S.ins(f"v_add_f32 v{dPT+1}, v{dPT+1}, v{ac+1}"))))
            side.append((rn, lambda: (S.ins(f"v_add_f32 v{dPT+2}, v{dPT+2}, v{ac+2}"), S.ins(f"v_add_f32 v{dPT+3}, v{dPT+3}, v{ac+3}"))))
            src = dPT
        else:
            src = ac
        side.append((rn, lambda: (S.ins(f"v_cvt_pk_bf16_f32 v{dOT}, v{src}, v{src+1}"), S.ins(f"v_cvt_pk_bf16_f32 v{dOT+1}, v{src+2}, v{src+3}"))))
        side.append((rn, lambda: (S.lds(f"ds_write_addtid_b32 v{dOT} offset:{OUTO + 512*t}"), S.ins(f"v_mov_b32 v{dCN}, {t+1}"))))
        side.append((rn, lambda: S.lds(f"ds_write_addtid_b32 v{dOT+1} offset:{OUTO + 512*t + 256}")))
        def fin():
            S.lds(f"ds_write_addtid_b32 v{dCN} offset:{OFLO}")
            if opt.stamps == 2:
                stamp(a, opt, 10 + t, True); S.done = S.lds_n
        side.append((rn, fin))
    pend = list(gl)
    useq = {}
    thr = {}
    for i, op in enumerate(ops):
        if opt.defer and i == 2:
            klseq = S.lds(f"ds_read_b32 v{dFLG}, v{vCF} offset:12")
        for t in range(1, 8):
            if t not in useq and i + opt.la + 3 >= tfirst[t]:
                useq[t] = S.lds(f"ds_read_b32 v{dUT}, v{vCF} offset:{16 + 4*t}")
        while pend and pend[0].first <= i + opt.la:
            if pend[0].kind == "F":
                if opt.defer and pend[0].key == 496: flag_check(a, S, klseq, dFLG, 12, "kl")
                S.load(pend.pop(0)); continue
            slot = next((s for s in range(8) if ring[s] < i), None)
            if slot is None:
                assert pend[0].first > i
                break
            g = pend.pop(0)
            if g.tile: flag_check(a, S, useq[g.tile], dUT, 16 + 4 * g.tile, f"du{g.tile}")
            ring[slot] = g.last; g.reg = dG + 4 * slot; S.load(g)
        for t in range(2, 8):
            if t not in pinfo and i >= endpos[t] - 3:
                while side:
                    rn, fn = side.pop(0); S.until(rn); fn()
                S.lds(PRD)
                pinfo[t] = S.lds(ptxt(t))
        if opt.thr:
            for t in range(opt.thr, 8):
                if t not in thr and i + 5 >= endpos[t - 1]:
                    thr[t] = S.lds(f"ds_read_b32 v{dTT}, v{dTH}")
        if op[0] == "end":
            t1 = op[1] + 1
            if opt.thr and opt.thr <= t1 < 8:
                S.wait(thr[t1])
                S.ins(f"v_cmp_gt_u32 vcc, {t1 - opt.thr + 1}, v{dTT}")
                S.ins(f"s_cbranch_vccnz L_th_{t1}")
                a.label(f"L_tk_{t1}")
                STUBS.append(f"""L_th_{t1}:
s_sleep 1
ds_read_b32 v{dTT}, v{dTH}
s_waitcnt lgkmcnt(0)
s_sub_u32 s34, s34, 1
s_cbranch_scc1 L_tk_{t1}
v_cmp_gt_u32 vcc, {t1 - opt.thr + 1}, v{dTT}
s_cbranch_vccnz L_th_{t1}
s_branch L_tk_{t1}""")
            queue_out(op[1])
            if op[1] < 7 and (dprio(opt, op[1] + 1) != dprio(opt, op[1]) or (opt.alow and op[1] == 1)): S.ins(f"s_setprio {dprio(opt, op[1] + 1)}")
            continue
        t, f, g, first = op
        S.wait(max(f.seq, g.seq))
        ac = dACC + 4 * (t % 3)
        S.ins(f"{MF} {R(ac,4)}, {R(f.reg,4)}, {R(g.reg,4)}, {'0' if first else R(ac,4)}")
        acc_last[t] = S.n
        isq0 = f.key < 272
        if opt.sidem == 0 or isq0 or opt.blk:
            if side and side[0][0] <= S.n: side.pop(0)[1]()
        if isq0 and t == 7 and side and side[0][0] <= S.n: side.pop(0)[1]()
        if opt.sidem == 0 and t == 7 and not isq0 and side and side[0][0] <= S.n: side.pop(0)[1]()
    while side:
        rn, fn = side.pop(0); S.until(rn); fn()

def level_frags():
    K = {}
    for d in (2, 3, 4):
        for h in (0, 1): K[("T2", d, h)] = Frag("T2", (d, h), lT2 + 4 * ((d - 2) * 2 + h))
    for d in (4, 5, 6): K[("T3", d)] = Frag("T3", d, lT3 + 4 * (d - 4))
    K[("T3", 7)] = Frag("T3", 7, lACC + 16)
    K["FX"] = Frag("FX", 0, lFX)
    K["F5"] = Frag("F", 528, lF5)
    return K
LORDER = ["FX", ("T2", 2, 0), ("T2", 3, 0), ("T2", 4, 0), ("T2", 2, 1), ("T2", 3, 1), ("T2", 4, 1), ("T3", 7), ("T3", 4), ("T3", 5), ("T3", 6)]

def emit_level(a, opt, S, K):
    acc = lambda t: lACC + 4 * (t - 2)
    inited = set(); acc_last = {}; vq = []; wr = {}; pubq = []
    def drain(k):
        while k > 0 and vq and vq[0][0] <= S.n:
            rn, txt, key = vq.pop(0); S.ins(txt); wr[key] = S.n + 2; k -= 1
    def force(key):
        while any(q[2] == key for q in vq):
            rn, txt, kk = vq.pop(0); S.until(rn); S.ins(txt); wr[kk] = S.n + 2
    def need(f):
        if not f.issued: S.load(f)
        S.wait(f.seq)
    def mf(d, A, B, c):
        S.ins(f"{MF} {R(d,4)}, {R(A,4)}, {R(B,4)}, {c}")
        n = S.n
        if pubq: pubflush()
        else: drain(1)
        return n
    def am(t, A, B):
        c = R(acc(t), 4) if t in inited else "0"
        inited.add(t)
        acc_last[t] = mf(acc(t), A, B, c)
    G0 = [Frag("G", 256 * b - 16, lG) for b in range(6)]
    GM = [Frag("G", 256 * b - 24, lG + 4) for b in range(6)]
    S.load(G0[0]); S.load(GM[0])
    lo = ["F5", "FX", ("T2", 2, 0), ("T2", 2, 1), ("T2", 3, 0), ("T2", 4, 0), ("T2", 3, 1), ("T2", 4, 1), ("T3", 7), ("T3", 4), ("T3", 5), ("T3", 6)] if opt.e2 else ["F5"] + LORDER
    lazy = [K[k] for k in lo if not K[k].issued]
    tsets = [[12, 16], [8, 56]]
    def publish(t):
        S.until(acc_last[t] + 8)
        S.lds(f"ds_write_b128 v{vPA}, {R(acc(t),4)} offset:{(t-2)*1024}")
        S.ins(f"v_mov_b32 v{vONE}, {t}")
        pubq.append(t)
    def pubflush():
        while pubq:
            t = pubq.pop(0)
            S.lds(f"ds_write_addtid_b32 v{vONE} offset:{OFLO + 256}")
            if opt.stamps == 2:
                stamp(a, opt, 10 + t, True); S.done = S.lds_n
    def uses(b, h, ds=None):
        if b < 0 or b > 5: return
        if h < 2: lst = [(b + d, K[("T2", d, h)]) for d in (ds or ((3, 4) if opt.e2 else (2, 3, 4))) if b + d <= 7]
        else: lst = [(b + d, K[("T3", d)]) for d in (7, 4, 5, 6) if b + d <= 7 and b <= 3]
        if lst: force((b, h))
        for t, f in lst:
            need(f); S.until(wr[(b, h)]); am(t, lW + 4 * h, f.reg)
    grp = 0; prevkey = None
    lp = lambda nb: int(str(opt.llist)[nb]) if opt.llist else min(dprio(opt, max(nb - opt.lead, 0)) + opt.lup, 3)
    for nb in range(7):
        b = nb - 1
        pairs = []
        if nb <= 5:
            g0, gm = G0[nb], GM[nb]
            pairs = [[(g0, 3), (g0, 5)], [(gm, 3), (gm, 5)]]
            if nb <= 3: pairs.append([(g0, 7), (gm, 9)])
        if nb > 0 and (lp(nb) != lp(nb - 1) or (opt.alow and nb == 2)): S.ins(f"s_setprio {lp(nb)}")
        for h in range(3):
            newv = []
            for _ in range(3):
                if lazy: S.load(lazy.pop(0))
            if h < len(pairs):
                tm = tsets[grp % 2]; grp += 1
                for q in list(vq):
                    if q[2] != prevkey: force(q[2])
                for j, (g, box) in enumerate(pairs[h]):
                    need(g)
                    n = mf(tm[j], g.reg, BOX[box], "0")
                    dst = lW + 4 * h + 2 * j
                    newv.append((n + 8, f"v_cvt_pk_bf16_f32 v{dst}, v{tm[j]}, v{tm[j]+1}", (nb, h)))
                    newv.append((n + 8, f"v_cvt_pk_bf16_f32 v{dst+1}, v{tm[j]+2}, v{tm[j]+3}", (nb, h)))
                if h == 0:
                    need(K["F5"]); am(nb + 2, K["F5"].reg, g0.reg)
                    if nb < 5: useq = S.lds(f"ds_read_b32 v{lUT}, v{vCF} offset:{16 + 4*(nb+1)}")
                if h == 1 and nb <= 3:
                    need(K["FX"]); am(nb + 4, K["FX"].reg, g0.reg)
                if h == len(pairs) - 1 and nb < 5:
                    flag_check(a, S, useq, lUT, 16 + 4 * (nb + 1), f"lu{nb+1}")
                    S.load(G0[nb + 1]); S.load(GM[nb + 1])
            if opt.e2:
                if h == 0 and b >= 0: uses(b, 1, (2,))
                uses(b, h)
                if h == 0 and b >= 0: publish(b + 2)
                if h == 2: uses(nb, 0, (2,))
            else:
                uses(b, h)
                if h == 2 and b >= 0: publish(b + 2)
            if newv:
                vq.extend(newv); prevkey = (nb, h)
    pubflush()

def kprio(a, opt, i):
    p = max(opt.ktop - i, opt.kmin)
    if opt.klead:
        a(f"s_setprio {max(p,0)}\ns_cbranch_scc0 L_kp{i}\ns_setprio {min(max(p,0)+1,3)}\nL_kp{i}:")
    else:
        a(f"s_setprio {max(p,0)}")

def pack64(vals, bits):
    c = 0
    for i, v in enumerate(vals): c |= v << (bits * i)
    return c & 0xffffffff, c >> 32

def generate(opt):
    a = Asm()
    hdr = open("cdna_kernels/" + NAME + ".s.ref").read().split("\n")
    top = [l for l in hdr if l.startswith(";") and "@launch" not in l and "Override launch" not in l and "grid=ceil" not in l]
    out = "\n".join(top) + "\n"
    out += f"; @launch grid=(200,1,1) block=({768 + 64 * opt.nm},1,1) lds={LDS_TOTAL}\n"
    out += f""".amdgcn_target "amdgcn-amd-amdhsa--gfx950"
.text
.globl {NAME}_kernel
.p2align 8
.type {NAME}_kernel,@function
{NAME}_kernel:
"""
    stamp(a, opt, 0)
    if opt.stamps: a("s_memrealtime s[100:101]")
    a(f"""
s_and_b32 s3, s2, 7
s_mul_i32 s3, s3, 25
s_lshr_b32 s4, s2, 3
s_add_u32 s3, s3, s4
s_cmp_ge_u32 s3, 99
s_cselect_b32 s6, 56, 0
s_load_dwordx16 s[16:31], s[0:1], s6
s_load_dwordx2 s[32:33], s[0:1], 112
""")
    if opt.codepf == 1:
        a(f"""
s_getpc_b64 s[52:53]
L_pc:
v_lshlrev_b32 v6, 7, v0
v_cmp_gt_u32 vcc, L_codeend-L_pc, v6
s_and_saveexec_b64 s[12:13], vcc
s_cbranch_execz L_nocpf
global_load_dword v102, v6, s[52:53]
L_nocpf:
s_mov_b64 exec, s[12:13]
s_cmp_ge_u32 s3, 99
""")
    a(f"""
v_lshrrev_b32 v2, 6, v0
s_cselect_b32 s7, 9, 0
s_cselect_b32 s48, 1152, 0
v_readfirstlane_b32 s44, v2
s_cmp_ge_u32 s2, 200
s_cbranch_scc1 L_end
s_cmp_ge_u32 s3, 198
s_cbranch_scc1 L_end
v_and_b32 v1, 63, v0
s_add_u32 s44, s44, {16 - opt.nm}
s_and_b32 s44, s44, 15
{"s_cmp_ge_u32 s44, 14" if opt.nm == 2 else ""}
{"s_cselect_b32 s8, 2, 0" if opt.nm == 2 else ""}
{"s_sub_u32 s44, s44, s8" if opt.nm == 2 else ""}
s_mul_i32 s4, s3, 5958
s_lshr_b32 s4, s4, 16
s_mul_i32 s5, s4, 11
s_sub_u32 s59, s3, s5
s_mul_i32 s5, s59, 6
s_min_u32 s5, s5, 58
s_sub_u32 s4, s4, s7
s_lshl_b32 s4, s4, 6
s_add_u32 s5, s5, s4
s_setprio 3
""")
    if opt.gate:
        a(f"""
v_mov_b32 v8, 0
v_mov_b32 v9, 0
v_mov_b32 v10, 0
v_mov_b32 v11, 0
v_lshlrev_b32 v7, 4, v1
ds_write_b128 v7, v[8:11] offset:{FL}
s_waitcnt lgkmcnt(0)
s_barrier
""")
    a(f"""
s_cmp_ge_u32 s44, 12
{"s_cbranch_scc0 L_comp" if opt.dry else "s_cbranch_scc1 L_mem0"}
""")
    if opt.dry:
        a("""
s_mov_b64 exec, 0
s_setprio 0
s_mov_b32 s62, 0
s_mov_b32 s45, 0
s_cmp_eq_u32 s44, 13
s_cbranch_scc1 L_proL
s_cmp_eq_u32 s44, 14
s_cbranch_scc1 L_dry2
s_cmp_eq_u32 s44, 15
s_cbranch_scc1 L_dry3
s_branch L_dry0
L_comp:
""")
    a(f"""
s_sub_u32 s45, s44, 6
s_cmp_ge_u32 s44, 6
s_cselect_b32 s45, s45, s44
s_cselect_b32 s62, 1, 0
s_add_u32 s46, s5, s45
s_lshl_b32 s8, s46, 8
v_lshl_add_u32 v20, v1, 2, s8
s_lshl_b32 s8, s46, 1
s_and_b32 s8, s8, -4
s_waitcnt lgkmcnt(0)
global_load_dword v{vP}, v20, s[18:19]
global_load_dword v{vP+1}, v20, s[20:21]
global_load_dword v{vP+2}, v20, s[22:23]
global_load_dword v{vP+3}, v20, s[24:25]
s_load_dword s40, s[26:27], s8
s_load_dword s41, s[28:29], s8
""")
    if opt.codepf == 3:
        a(("""
s_cmp_lt_u32 s44, 10
s_cbranch_scc1 L_nocpf
s_getpc_b64 s[52:53]
L_pc:
v_subrev_u32 v6, CPFBASE, v0
v_lshlrev_b32 v6, 7, v6
v_min_u32 v6, L_codeend-L_pc-4, v6
global_load_dword v87, v6, s[52:53]
L_nocpf:
""").replace("CPFBASE", str(640 + 64 * opt.nm)))
    if opt.gate:
        a(f"""
v_lshlrev_b32 v21, 2, v1
v_mov_b32 v{vONE}, 1
ds_add_u32 v21, v{vONE} offset:{FL + 768 - 65536 if False else 0}
""".replace("v21, v2 offset:0", "v21, v2 offset:%d" % (FL + 768)))
    if opt.stamps == 1: stamp(a, opt, 14)
    if not opt.lateb and not opt.gate: a("s_barrier")
    stamp(a, opt, 1)
    if opt.dry: a.label("L_dry0")
    sl0 = pack64([0,1,2,3,4,5,6,7,8,8,10,11,11,11,14,15], 4)
    ta0 = pack64([2*(848-8), 2*(719-8), 2*(1008-8), 2*(927-8)], 16)
    ta1 = pack64([2*(655-8), 2*(783-8), 2*(976-8), 2*(895-8)], 16)
    a(f"""
s_mul_i32 s57, s45, {KCH}
s_add_u32 s57, s57, {KA}
s_lshl_b32 s8, s62, 12
s_add_u32 s8, s8, s57
v_mov_b32 v24, 0
v_mov_b32 v25, 0
v_mov_b32 v26, 0
v_mov_b32 v27, 0
v_lshl_add_u32 v23, v1, 4, s8
v_and_b32 v20, 15, v1
s_add_u32 s8, s57, 8192
v_lshl_add_u32 v22, v20, 4, s8
""")
    for k in range(4):
        a(f"ds_write_b128 v23, v[24:27] offset:{k*1024}")
    a(f"""
ds_write_b128 v22, v[24:27]
s_mov_b32 s34, 0x40000
s_mov_b32 s49, 0x01000c0c
s_cmp_lg_u32 s62, 0
s_cselect_b32 s49, 0x03020c0c, s49
v_mov_b32 v{vONE}, 1
s_mul_i32 s61, s45, {CHB}
s_mul_i32 s60, s62, {STGW}
s_add_u32 s60, s60, s61
s_mov_b32 m0, s60
s_mul_i32 s56, s45, {UCH}
s_add_u32 s56, s56, {UB}
s_mov_b32 s12, 0xbfb8aa3b
s_mov_b32 s13, 0x3e22f983
s_mov_b32 s14, 0x41000000
s_mov_b32 s15, 0x43800000
s_mov_b32 s63, 0x3fb8aa3b
s_mov_b32 s35, 0x7fff7fff
s_movk_i32 s9, {PITCH}
s_mov_b32 s10, {sl0[0]:#x}
s_mov_b32 s11, {sl0[1]:#x}
v_and_b32 v21, 48, v1
v_lshl_add_u32 v22, v20, 5, v21
v_add_u32 v{vU}, s56, v22
v_and_b32 v23, 3, v20
v_sub_u32 v23, 3, v23
v_mul_u32_u24 v23, {KCP}, v23
v_and_b32 v24, 12, v20
v_lshlrev_b32 v24, 1, v24
v_sub_u32 v23, v23, v24
v_add_u32 v23, s57, v23
v_add_u32 v{vKF}, v23, v21
v_lshrrev_b32 v24, 1, v21
v_add_u32 v{vKT}, v23, v24
v_add_u32 v24, s60, v21
v_mad_u32_u24 v{vSR}, v20, s9, v24
v_add_u32 v{vSL1}, {16*PITCH}, v24
v_lshlrev_b32 v25, 2, v20
v_lshrrev_b64 v[26:27], v25, s[10:11]
v_and_b32 v26, 15, v26
v_mad_u32_u24 v{vSL0}, v26, s9, v24
v_and_b32 v25, 32, v1
v_and_b32 v26, 16, v1
v_lshl_add_u32 v27, v25, 5, v26
v_lshl_add_u32 v27, v20, 5, v27
v_add_u32 v{vPW0}, s60, v27
v_lshl_add_u32 v{vPA}, v1, 4, s61
v_and_b32 v27, 1, v1
v_lshl_add_u32 v25, v27, 4, v25
v_and_b32 v27, 14, v1
v_lshl_add_u32 v27, v26, 1, v27
v_sub_u32 v27, s57, v27
s_mov_b32 s10, {ta1[0]:#x}
s_mov_b32 s11, {ta1[1]:#x}
s_cmp_lg_u32 s62, 0
s_cselect_b32 s10, {ta0[0]:#x}, s10
s_cselect_b32 s11, {ta0[1]:#x}, s11
v_lshrrev_b64 v[22:23], v25, s[10:11]
v_and_b32 v22, 0xffff, v22
v_add_u32 v{vAC}, v27, v22
s_cbranch_scc1 L_proL
s_add_u32 s8, s57, 1072
v_lshlrev_b32 v25, 4, v1
v_sub_u32 v{vKD}, s8, v25
v_lshl_add_u32 v{vRD}, v1, 5, s61
v_mov_b32 v26, 0
v_mov_b32 v27, 0
v_lshl_add_u32 v22, v1, 3, s56
ds_write_b64 v22, v[26:27]
s_cmp_ge_u32 s45, 4
s_cbranch_scc1 L_prodone
v_lshrrev_b32 v22, 1, v21
v_sub_u32 v22, v22, v20
v_add_u32 v22, 15, v22
v_min_u32 v22, 31, v22
s_lshl_b32 s8, s45, 1
s_lshl_b32 s11, 8, s8
s_sub_u32 s11, s11, 1
s_movk_i32 s9, 0x456b
s_lshl_b32 s8, s45, 2
s_lshr_b32 s9, s9, s8
s_and_b32 s9, s9, 15
s_add_u32 s9, s9, 15
s_lshl_b32 s11, s11, s9
v_lshrrev_b32 v22, v22, s11
s_lshl_b32 s11, s45, 10
s_add_u32 s11, s11, {BOXL}
v_add_u32 v23, s11, v25
s_mov_b32 s8, 0x8001
s_mov_b32 s9, 0x10001
s_mov_b32 s10, 0x3f80
v_bfe_u32 v24, v22, 0, 2
v_mul_u32_u24 v24, s8, v24
v_and_b32 v24, s9, v24
v_mul_u32_u24 v24, s10, v24
v_bfe_u32 v25, v22, 2, 2
v_mul_u32_u24 v25, s8, v25
v_and_b32 v25, s9, v25
v_mul_u32_u24 v25, s10, v25
v_bfe_u32 v26, v22, 4, 2
v_mul_u32_u24 v26, s8, v26
v_and_b32 v26, s9, v26
v_mul_u32_u24 v26, s10, v26
v_bfe_u32 v27, v22, 6, 2
v_mul_u32_u24 v27, s8, v27
v_and_b32 v27, s9, v27
v_mul_u32_u24 v27, s10, v27
ds_write_b128 v23, v[24:27]
{"v_min_u32 v25, 5, v1" if opt.thr else ""}
{"v_mul_u32_u24 v25, %d, v25" % CHB if opt.thr else ""}
{"v_add_u32 v%d, %d, v25" % (dTH, OFLO) if opt.thr else ""}
{"s_cbranch_execz L_dret" if opt.dry else ""}
s_branch L_prodone
L_proL:
s_add_u32 s8, s57, {2*DUMMY}
v_mov_b32 v{vAM}, s8
""")
    for lane, idx in ((0, ZD-511), (1, ZD-512), (2, ZD-513), (3, ZD-514), (16, Z3[1]-127), (32, ZX-1027), (33, ZX-1028), (34, Z2[3]-63), (48, ZD-509), (52, ZD-510)):
        a(f"s_add_u32 s8, s57, {2*idx}\nv_writelane_b32 v{vAM}, s8, {lane}")
    a(f"""
L_prodone:
{"s_cbranch_execz L_nob" if opt.dry and opt.lateb else ""}
s_waitcnt lgkmcnt(0)
{"s_barrier" if opt.lateb and not opt.gate else ""}
{"L_nob:" if opt.dry and opt.lateb else ""}
s_lshl_b32 s8, s45, 7
s_add_u32 s8, s8, {FL}
v_mov_b32 v{vCF}, s8
s_waitcnt lgkmcnt(0)
s_lshl_b32 s8, s40, 16
s_and_b32 s40, s40, 0xffff0000
s_lshl_b32 s9, s41, 16
s_and_b32 s41, s41, 0xffff0000
s_bitcmp0_b32 s46, 0
s_cselect_b32 s40, s8, s40
s_cselect_b32 s41, s9, s41
v_mov_b32 v{vDT}, s63
v_mov_b32 v{vDSK}, 0
v_mul_f32 v{vDT}, s40, v{vDT}
v_writelane_b32 v{vDSK}, s41, 0
v_exp_f32 v{vDT}, v{vDT}
s_cmp_lg_u32 s62, 0
""")
    if opt.dry: a("s_cbranch_execz L_dret")
    stamp(a, opt, 2)
    if opt.codepf == 3:
        a("s_waitcnt vmcnt(1)\ns_cmp_ge_u32 s44, 10\ns_cbranch_scc1 L_pw\ns_waitcnt vmcnt(0)\nL_pw:\ns_cmp_lg_u32 s62, 0")
    else:
        a("s_waitcnt vmcnt(0)")
    stamp(a, opt, 3)
    if opt.chain: a(f"ds_write_b32 v{vCF}, v{vONE} offset:96")
    kprio(a, opt, 0)
    if opt.dry: a.label("L_dry2")
    MH = "v_mfma_f32_16x16x32_f16"
    AB, CC, TA, TB, zf, wf, Zf, w2, w4, MX, MT = 52, 54, 56, 58, 60, 62, 64, 66, 68, 70, 71
    hz1, hz2, hz4, hZ1, hZ2, hZ4 = 88, 89, 90, 91, 92, 93
    RR = {j: 94 + j for j in range(1, 17)}
    LL = {}
    free = list(range(111, 128))
    def hmul(dst, x, m, conj=False):
        if not conj:
            a(f"v_pk_mul_f16 v{dst}, v{x}, v{m} op_sel:[0,0] op_sel_hi:[0,1]")
            a(f"v_pk_fma_f16 v{dst}, v{x}, v{m}, v{dst} op_sel:[1,1,0] op_sel_hi:[1,0,1] neg_lo:[0,1,0]")
        else:
            a(f"v_pk_mul_f16 v{dst}, v{x}, v{m} op_sel:[0,0] op_sel_hi:[0,1] neg_hi:[0,1]")
            a(f"v_pk_fma_f16 v{dst}, v{x}, v{m}, v{dst} op_sel:[1,1,0] op_sel_hi:[1,0,1]")
    dpp = lambda c, rm="0xf": f"v_max_u32_dpp v{MX}, v{MX}, v{MX} {c} row_mask:{rm} bank_mask:0xf"
    a(f"""
v_perm_b32 v{TA}, v{vP}, v{vP}, s49
v_and_b32 v{MX}, s35, v{vP+2}
v_mul_f32 v{TA}, s63, v{TA}
v_and_b32 v{MT}, s35, v{vP+3}
v_exp_f32 v{TA}, v{TA}
v_pk_max_u16 v{MX}, v{MX}, v{MT}
v_perm_b32 v{TA+1}, v{vP+1}, v{vP+1}, s49
v_lshlrev_b32 v{MT}, 16, v{MX}
v_cvt_pk_bf16_f32 v{vDT}, v{vDT}, v{TA}
v_max_u32 v{MX}, v{MX}, v{MT}
v_and_b32 v{TA}, 0xffff0000, v{vDT}
v_lshlrev_b32 v{vDT}, 16, v{vDT}
{dpp("row_shr:1")}
v_pk_mul_f32 {R(AB,2)}, {R(TA,2)}, {R(vDT,2)} op_sel_hi:[1,0]
v_pk_mul_f32 {R(AB,2)}, {R(AB,2)}, s[12:13]
{dpp("row_shr:2")}
v_pk_mul_f32 {R(TA,2)}, {R(AB,2)}, s[14:15] op_sel_hi:[1,0]
v_pk_mul_f32 {R(TB,2)}, {R(AB,2)}, s[14:15] op_sel:[0,1] op_sel_hi:[1,1]
{dpp("row_shr:4")}
v_fract_f32 v{AB+1}, v{AB+1}
v_exp_f32 v{AB}, v{AB}
{dpp("row_shr:8")}
v_cos_f32 v{zf}, v{AB+1}
v_sin_f32 v{zf+1}, v{AB+1}
{dpp("row_bcast:15", "0xa")}
v_fract_f32 v{TB+1}, v{TB+1}
v_pk_mul_f32 {R(zf,2)}, {R(zf,2)}, {R(AB,2)} op_sel_hi:[1,0]
{dpp("row_bcast:31", "0xc")}
v_exp_f32 v{TB}, v{TB}
v_cos_f32 v{Zf}, v{TB+1}
v_readlane_b32 s10, v{MX}, 63
v_sin_f32 v{Zf+1}, v{TB+1}
v_fract_f32 v{TA+1}, v{TA+1}
v_perm_b32 v{CC}, v{vP+2}, v{vP+2}, s49
s_and_b32 s10, s10, 0x7f800000
s_sub_u32 s8, 0x7f000000, s10
s_add_u32 s10, s10, 0x00800000
v_pk_mul_f32 {R(Zf,2)}, {R(Zf,2)}, {R(TB,2)} op_sel_hi:[1,0]
v_perm_b32 v{CC+1}, v{vP+3}, v{vP+3}, s49
v_exp_f32 v{TA}, v{TA}
v_cos_f32 v{wf}, v{TA+1}
v_sin_f32_e64 v{wf+1}, -v{TA+1}
v_pk_mul_f32 {R(CC,2)}, {R(CC,2)}, s[8:9] op_sel_hi:[1,0]
v_cvt_pk_f16_f32 v{hz1}, v{zf}, v{zf+1}
v_pk_mul_f32 {R(wf,2)}, {R(wf,2)}, {R(TA,2)} op_sel_hi:[1,0]
v_cvt_pk_f16_f32 v{hZ1}, v{Zf}, v{Zf+1}
v_mul_f32 v{vC2}, s10, v{vDT}
s_cmp_lg_u32 s62, 0
""")
    if opt.stamps == 1: stamp(a, opt, 10)
    pend = []
    def flush():
        for t, slot in pend: a(f"ds_write_addtid_b32 v{t} offset:{PITCH*slot}")
        pend.clear()
    def put(reg, slot):
        pend.append((reg, slot))
        if len(pend) == opt.batch: flush()
    rot = [0]
    def tmp():
        r = 120 + rot[0] % 8; rot[0] += 1; return r
    keep = {0: 111, 2: 112, 4: 113, 6: 114, 256: 115, 260: 116, 512: 117, 768: 118, 1024: 119}
    def L(b, src, m, slot, conj=False):
        dst = keep.get(b) or tmp()
        hmul(dst, src, m, conj); put(dst, slot)
    a(f"v_cvt_pk_f16_f32 v{keep[0]}, v{CC}, v{CC+1}"); put(keep[0], 0)
    hmul(hz2, hz1, hz1)
    a(f"v_cvt_pk_f16_f32 v{RR[1]}, v{wf}, v{wf+1}")
    L(1, keep[0], hz1, 1); L(2, keep[0], hz2, 2)
    hmul(hz4, hz2, hz2)
    L(3, keep[2], hz1, 3); L(4, keep[0], hz4, 4); L(5, keep[4], hz1, 5); L(6, keep[4], hz2, 6); L(7, keep[6], hz1, 7)
    L(256, keep[0], hZ1, 8); L(258, keep[2], hZ1, 10); L(260, keep[4], hZ1, 11); L(262, keep[6], hZ1, 14)
    L(264, keep[256], RR[1], 15, conj=True)
    flush()
    for k in range(4): a(f"ds_read_b128 {R(vLF+4*k,4)}, v{vSL0} offset:{64*k}")
    if opt.k4 < 2: kprio(a, opt, 1)
    hmul(hZ2, hZ1, hZ1)
    cmul(a, w2, wf, wf)
    L(512, keep[0], hZ2, 0); L(516, keep[4], hZ2, 1); L(768, keep[256], hZ2, 4); L(772, keep[260], hZ2, 5)
    hmul(hZ4, hZ2, hZ2)
    cmul(a, w4, w2, w2)
    L(1024, keep[0], hZ4, 8); L(1280, keep[256], hZ4, 12); L(1536, keep[512], hZ4, 9); L(1792, keep[768], hZ4, 13); L(2048, keep[1024], hZ4, 6)
    flush()
    for k in range(4): a(f"ds_read_b128 {R(vLF+16+4*k,4)}, v{vSR} offset:{64*k}")
    if opt.stamps == 1: stamp(a, opt, 11)
    if opt.dry: a("s_cbranch_execz L_dret")
    if opt.k4: kprio(a, opt, 2 if opt.k4 == 1 else 1)
    if opt.dry: a.label("L_dry3")
    t = tmp()
    a(f"v_mov_b32 v{t}, 0x3c00"); put(t, 0); put(RR[1], 1)
    a(f"v_cvt_pk_f16_f32 v{RR[2]}, v{w2}, v{w2+1}"); put(RR[2], 2)
    a(f"v_cvt_pk_f16_f32 v{RR[4]}, v{w4}, v{w4+1}"); put(RR[4], 4)
    hmul(RR[3], RR[1], RR[2]); put(RR[3], 3)
    hmul(RR[8], RR[4], RR[4]); put(RR[8], 8)
    for j in (5, 6, 7): hmul(RR[j], RR[j-4], RR[4]); put(RR[j], j)
    hmul(RR[16], RR[8], RR[8])
    if opt.rhi:
        a(f"ds_write_addtid_b32 v{RR[16]} offset:{PITCH*16}")
    for j in range(9, 16):
        hmul(RR[j], RR[j-8], RR[8]); put(RR[j], j)
        if j == 11 and not opt.k4: kprio(a, opt, 2)
    flush()
    if opt.rhi:
        WF = 104
        for k in range(4):
            a(f"ds_read_b128 {R(vRF+4*k,4)}, v{vSR} offset:{64*k}")
            a(f"ds_read_b128 {R(WF+4*k,4)}, v{vSL1} offset:{64*k}")
        if opt.stamps == 1: stamp(a, opt, 12, True)
        if opt.k4: kprio(a, opt, 3 if opt.k4 == 1 else 2)
        else: a(f"s_setprio {opt.xprio}")
        def mm(n, k, m):
            dd = vD + 8 * m + 4 * n
            src = (vRF if n == 0 else WF) + 4 * k
            a(f"{MH} {R(dd,4)}, {R(vLF+16*m+4*k,4)}, {R(src,4)}, {'0' if k == 0 else R(dd,4)}")
        for k in range(4):
            if opt.k4 >= 2 and k == opt.k4: kprio(a, opt, 3)
            a(f"s_waitcnt lgkmcnt({6-2*k})")
            for e in range(4):
                t = tmp(); x = vRF + 4 * k + e; m_ = WF + 4 * k + e
                a(f"v_pk_mul_f16 v{t}, v{x}, v{m_} op_sel:[0,0] op_sel_hi:[0,1]")
                a(f"v_pk_fma_f16 v{m_}, v{x}, v{m_}, v{t} op_sel:[1,1,0] op_sel_hi:[1,0,1] neg_lo:[0,1,0]")
                if e == 0: mm(0, k, 0)
                if e == 1 and k > 0: mm(1, k - 1, 0)
                if e == 2: mm(0, k, 1)
                if e == 3 and k > 0: mm(1, k - 1, 1)
        a("s_nop 1")
        mm(1, 3, 0); mm(1, 3, 1)
        a(f"s_setprio {opt.xprio}\ns_nop 0" if opt.k4 else "s_nop 1")
    else:
        for k in range(4): a(f"ds_read_b128 {R(vRF+4*k,4)}, v{vSR} offset:{64*k}")
        put(RR[16], 0)
        for j in range(17, 32):
            t = tmp()
            hmul(t, RR[j-16], RR[16]); put(t, j - 16)
            if j == 19:
                a(f"s_waitcnt lgkmcnt({4 - len(pend)})")
            if 19 <= j < 27:
                k, m = (j - 19) // 2, (j - 19) % 2
                dd = vD + 8 * m
                a(f"{MH} {R(dd,4)}, {R(vLF+16*m+4*k,4)}, {R(vRF+4*k,4)}, {'0' if k == 0 else R(dd,4)}")
        flush()
        if opt.stamps == 1: stamp(a, opt, 12, True)
        for k in range(4): a(f"ds_read_b128 {R(vRF+4*k,4)}, v{vSR} offset:{64*k}")
        a(f"s_setprio {opt.xprio}")
        for k in range(4):
            a(f"s_waitcnt lgkmcnt({3-k})")
            for m in range(2):
                dd = vD + 8 * m + 4
                a(f"{MH} {R(dd,4)}, {R(vLF+16*m+4*k,4)}, {R(vRF+4*k,4)}, {'0' if k == 0 else R(dd,4)}")
    if opt.dry: a("s_cbranch_execz L_dret")
    a(f"""
ds_write_b128 v{vPW0}, {R(vD,4)}
s_cmp_lg_u32 s62, 0
s_cbranch_scc1 L_xL
ds_write_addtid_b32 v{vD+8} offset:2048
ds_write_addtid_b32 v{vD+10} offset:2560
s_nop 2
ds_write_b128 v{vPW0}, {R(vD+4,4)} offset:512
ds_write_addtid_b32 v{vD+12} offset:2304
ds_write_b32 v{vCF}, v{vONE}
""")
    if opt.stamps == 1: stamp(a, opt, 13)
    wait_flags(a, [(20, 4)], "pxd")
    stamp(a, opt, 4)
    A_, B_, Pv, E, O, E2, O2 = 88, 100, 96, 108, 112, 116, 120
    d = lambda k: A_ + k
    a(f"""
ds_read_b128 {R(A_+4,4)}, v{vRD} offset:16
ds_read_b128 {R(B_+4,4)}, v{vRD} offset:{STGW+16}
ds_read_b128 {R(A_,4)}, v{vRD}
ds_read_b128 {R(B_,4)}, v{vRD} offset:{STGW}
ds_read_addtid_b32 v20 offset:{STGW+2048}
ds_read_addtid_b32 v21 offset:{STGW+2304}
s_waitcnt lgkmcnt(4)
v_pk_add_f32 {R(A_+4,2)}, {R(A_+4,2)}, {R(B_+4,2)}
v_pk_add_f32 {R(A_+6,2)}, {R(A_+6,2)}, {R(B_+6,2)}
v_pk_mul_f32 {R(A_+4,2)}, {R(A_+4,2)}, {R(vC2,2)} op_sel_hi:[1,0]
v_pk_mul_f32 {R(A_+6,2)}, {R(A_+6,2)}, {R(vC2,2)} op_sel_hi:[1,0]
s_waitcnt lgkmcnt(2)
v_pk_add_f32 {R(A_,2)}, {R(A_,2)}, {R(B_,2)}
v_pk_add_f32 {R(A_+2,2)}, {R(A_+2,2)}, {R(B_+2,2)}
v_fma_f32 v{A_}, v{A_}, v{vC2}, v{vDSK}
v_mul_f32 v{A_+1}, v{A_+1}, v{vC2}
v_pk_mul_f32 {R(A_+2,2)}, {R(A_+2,2)}, {R(vC2,2)} op_sel_hi:[1,0]
v_mov_b32_dpp v{Pv}, v{d(5)} wave_shr:1 row_mask:0xf bank_mask:0xf bound_ctrl:0
v_mov_b32_dpp v{Pv+1}, v{d(6)} wave_shr:1 row_mask:0xf bank_mask:0xf bound_ctrl:0
v_mov_b32_dpp v{Pv+2}, v{d(7)} wave_shr:1 row_mask:0xf bank_mask:0xf bound_ctrl:0
v_cvt_pk_bf16_f32 v{E}, v{d(7)}, v{d(6)}
v_cvt_pk_bf16_f32 v{E+1}, v{d(5)}, v{d(4)}
v_cvt_pk_bf16_f32 v{E+2}, v{d(3)}, v{d(2)}
v_cvt_pk_bf16_f32 v{E+3}, v{d(1)}, v{d(0)}
ds_write_b128 v{vKD}, {R(E,4)}
v_cvt_pk_bf16_f32 v{O}, v{d(6)}, v{d(5)}
v_cvt_pk_bf16_f32 v{O+1}, v{d(4)}, v{d(3)}
v_cvt_pk_bf16_f32 v{O+2}, v{d(2)}, v{d(1)}
v_cvt_pk_bf16_f32 v{O+3}, v{d(0)}, v{Pv+2}
ds_write_b128 v{vKD}, {R(O,4)} offset:{KCP}
v_mov_b32 v{E2}, v{E+1}
v_mov_b32 v{E2+1}, v{E+2}
v_mov_b32 v{E2+2}, v{E+3}
v_cvt_pk_bf16_f32 v{E2+3}, v{Pv+2}, v{Pv+1}
ds_write_b128 v{vKD}, {R(E2,4)} offset:{2*KCP}
v_mov_b32 v{O2}, v{O+1}
v_mov_b32 v{O2+1}, v{O+2}
v_mov_b32 v{O2+2}, v{O+3}
v_cvt_pk_bf16_f32 v{O2+3}, v{Pv+1}, v{Pv}
ds_write_b128 v{vKD}, {R(O2,4)} offset:{3*KCP}
s_waitcnt lgkmcnt(4)
v_add_f32 v20, v20, v{vD+9}
v_add_f32 v21, v21, v{vD+13}
v_mul_f32 v20, v20, v{vC2}
v_mul_f32 v21, v21, v{vC2}
v_cvt_pk_bf16_f32 v20, v20, v21
""")
    for sg in range(4):
        a(f"ds_write_b16 v{vAC}, v20 offset:{sg*(KCP-2)+16}")
        a(f"ds_write_b16_d16_hi v{vAC}, v20 offset:{sg*(KCP-2)}")
    a(f"ds_write_b32 v{vCF}, v{vONE} offset:8")
    stamp(a, opt, 5)
    SD = Stream(a)
    F = {16 + 32 * s: Frag("F", 16 + 32 * s, dF + 4 * s) for s in range(16)}
    for k in range(opt.pre):
        SD.load(F[16 + 32 * k] if opt.blk else F[16 + 32 * (k // 2) + 256 * (k % 2)])
    a(f"s_setprio {dprio(opt, 0)}")
    if opt.alow: a(f"s_cmp_ge_u32 s45, 2\ns_cbranch_scc1 L_dl\ns_setprio {dprio(opt, 0) - 1}\nL_dl:")
    wait_flags(a, [(18, 16)] if opt.defer else [(18, 16), (19, 12)], "d")
    SD.done = SD.lds_n
    stamp(a, opt, 7, True)
    emit_dense(a, opt, SD, F)
    a("s_branch L_fin")
    a.label("L_xL")
    a(f"""
ds_write_addtid_b32 v{vD+9} offset:2048
v_mov_b32 v20, s61
s_nop 2
ds_write_b128 v{vPW0}, {R(vD+4,4)} offset:512
ds_write_addtid_b32 v{vD+13} offset:2304
ds_write_b32 v{vCF}, v{vONE} offset:4
s_mov_b32 m0, s61
""")
    if opt.stamps == 1: stamp(a, opt, 13)
    wait_flags(a, [(21, 0)], "pxl")
    stamp(a, opt, 4)
    n0, n1 = vD + 8, vD + 12
    a(f"""
ds_read_addtid_b32 v24 offset:2048
ds_read_addtid_b32 v25 offset:2304
ds_read_addtid_b32 v26 offset:2560
ds_read_b128 v[32:35], v20 offset:2032
ds_read_b128 v[36:39], v20 offset:{2032+STGW}
s_mov_b32 s8, -2
s_waitcnt lgkmcnt(2)
v_add_f32 v24, v24, v{n0}
v_add_f32 v25, v25, v{n1}
v_add_f32 v26, v26, v{n0+2}
v_mul_f32 v24, v24, v{vC2}
v_mul_f32 v25, v25, v{vC2}
v_mul_f32 v26, v26, v{vC2}
v_cvt_pk_bf16_f32 v40, v24, v25
v_mov_b32_dpp v42, v24 quad_perm:[0,0,0,0] row_mask:0x4 bank_mask:0xf
""")
    for sg in range(4):
        a(f"ds_write_b16_d16_hi v{vAC}, v40 offset:{sg*(KCP-2)}")
    a(f"""
s_waitcnt lgkmcnt(4)
v_mov_b32_dpp v42, v26 quad_perm:[0,1,2,3] row_mask:0x2 bank_mask:0xf
v_add_f32 v33, v33, v37
v_pk_add_f32 v[34:35], v[34:35], v[38:39]
v_mul_f32 v33, v33, v{vC2}
v_pk_mul_f32 v[34:35], v[34:35], {R(vC2,2)} op_sel_hi:[1,0]
s_mov_b32 exec_lo, s8
s_mov_b32 exec_hi, s8
""")
    for sg in range(4):
        a(f"ds_write_b16 v{vAC}, v40 offset:{sg*(KCP-2)+16}")
    a(f"""
s_mov_b64 exec, -1
v_mov_b32_dpp v42, v33 quad_perm:[0,1,2,3] row_mask:0x8 bank_mask:0x1
v_mov_b32_dpp v42, v34 quad_perm:[0,1,2,3] row_mask:0x8 bank_mask:0x2
v_mov_b32_dpp v42, v35 quad_perm:[0,1,2,3] row_mask:0x1 bank_mask:0xf
v_subrev_u32 v19, s61, v{vPA}
v_cvt_pk_bf16_f32 v42, v42, v42
v_add_u32 v19, {BOXL}, v19
""")
    for sg in range(4):
        a(f"ds_write_b16 v{vAM}, v42 offset:{sg*(KCP-2)}")
    a(f"ds_write_b32 v{vCF}, v{vONE} offset:12")
    stamp(a, opt, 5)
    SL = Stream(a)
    LK = level_frags()
    for k in LORDER[:opt.prel]:
        SL.load(LK[k])
    a(f"s_setprio {int(str(opt.llist)[0]) if opt.llist else min(dprio(opt, 0) + opt.lup, 3)}")
    if opt.alow: a(f"s_cmp_ge_u32 s45, 2\ns_cbranch_scc1 L_ll\ns_setprio {dprio(opt, 0) - 1}\nL_ll:")
    wait_flags(a, [(16, 16), (17, 8)], "l")
    SL.done = SL.lds_n
    stamp(a, opt, 7, True)
    for j, wdt in enumerate((3, 5, 7, 9)):
        SL.lds(f"ds_read_b128 {R(BOX[wdt],4)}, v19 offset:{1024*j}")
    if not opt.nol: emit_level(a, opt, SL, LK)
    a("s_branch L_fin")
    NM = opt.nm; TP = 8 // NM; S2 = NM == 2 or opt.st2
    mT, mIN, mSO = 88, 96, 104
    a(f"""
L_mem0:
s_sub_u32 s45, s44, 12
v_mov_b32 v8, 0
v_mov_b32 v9, 0
v_mov_b32 v10, 0
v_mov_b32 v11, 0
v_lshlrev_b32 v17, 4, v1
ds_write_b128 v17, v[8:11] offset:{FL}
v_min_u32 v5, 5, v1
v_mul_u32_u24 v16, {CHB}, v5
ds_write_b32 v16, v8 offset:{OFLO}
ds_write_b32 v16, v8 offset:{OFLO + 256}
v_and_b32 v4, 15, v1
v_lshrrev_b32 v15, 4, v1
""")
    ts = 1 if opt.tint else TP
    tj = NM if opt.tint else 1
    a(f"""
s_lshl_b32 s47, s5, 1
s_mul_i32 s9, s45, {ts*256*1152}
s_add_u32 s9, s9, s47
v_mul_u32_u24 v19, {4*1152}, v1
s_add_u32 s48, s48, s47
s_mov_b32 s34, {2048*2304}
s_mov_b32 s35, 0x00020000
s_mov_b32 s50, 0x05040100
s_mov_b32 s51, 0x07060302
s_mov_b32 s36, 0x40000
v_lshl_add_u32 v4, v4, 2, v15
v_mul_u32_u24 v18, {4*2304}, v4
s_mul_i32 s8, s45, {ts*512}
s_add_u32 s8, s8, {UB + 512}
v_lshl_add_u32 v3, v1, 3, s8
v_add_u32 v18, s48, v18
s_mul_i32 s8, s45, {ts*4}
s_add_u32 s8, s8, {FL + 16}
v_lshl_add_u32 v14, v5, 7, s8
v_mov_b32 v2, 1
s_and_b32 s8, s45, {1 if S2 else 3}
s_mul_i32 s57, s8, {4608 if S2 else 2304}
s_mov_b32 s56, 1
s_lshr_b32 s8, s8, {0 if S2 else 1}
s_lshl_b32 s8, s8, 8
s_add_u32 s8, s8, {OUTO}
v_lshl_add_u32 v4, v1, 2, s8
""")
    if opt.mord:
        for k in range(NM - 1):
            a(f"s_cmp_eq_u32 s45, {k}\ns_cbranch_scc1 L_mp\ns_setprio {2-k}")
        a.label("L_mp")
    a(f"""
s_waitcnt lgkmcnt(0)
s_mov_b32 s18, {2048*1152}
s_mov_b32 s19, 0x00020000
""")
    if opt.stamps == 1: stamp(a, opt, 14)
    a("s_barrier")
    def chainwait(tag):
        a(f"""
v_mov_b32 v6, {FL + 96 + 128*opt.trig}
L_chw{tag}:
ds_read_b32 v7, v6
s_waitcnt lgkmcnt(0)
s_sub_u32 s36, s36, 1
s_cbranch_scc1 L_chok{tag}
v_cmp_eq_u32 vcc, 0, v7
s_cbranch_vccz L_chok{tag}
s_sleep 2
s_branch L_chw{tag}
L_chok{tag}:
""")
    if opt.chain and NM == 4:
        a(f"s_cmp_lt_u32 s45, {opt.chain}\ns_cbranch_scc1 L_chok")
        chainwait("")
    stamp(a, opt, 1)
    for j in range(TP):
        if opt.chain and NM == 2 and j == opt.chain: chainwait("")
        for e in range(4):
            a(f"buffer_load_dwordx3 {R(mUD+16*j+4*e,3)}, v19, s[16:19], s9 offen offset:{e*1152}" + (" nt" if opt.nt else ""))
        if j < TP - 1: a(f"s_add_u32 s9, s9, {tj*256*1152}")
    stamp(a, opt, 2)
    a("s_setprio 3")
    for j in range(TP):
        a(f"s_waitcnt vmcnt({4*(TP-1-j)})")
        q = lambda e, m: mUD + 16 * j + 4 * e + m
        for m in range(3):
            for hi in range(2):
                t = mT + 2 * ((2 * m + hi) % 4)
                a(f"v_perm_b32 v{t}, v{q(1,m)}, v{q(0,m)}, s{50+hi}")
                a(f"v_perm_b32 v{t+1}, v{q(3,m)}, v{q(2,m)}, s{50+hi}")
                a(f"ds_write_b64 v3, {R(t,2)} offset:{(2*m+hi)*UCH + 512*tj*j}")
        a(f"ds_write_b32 v14, v2 offset:{4*tj*j}")
        stamp(a, opt, 6 if j == 0 else (11 if j == TP - 1 else (4 if j == 1 else 12)))
    if not S2: a("s_bitcmp1_b32 s45, 0\ns_cselect_b32 s50, s51, s50")
    if NM == 4 and S2: a("s_cmp_lt_u32 s45, 2\ns_cbranch_scc1 L_fin")
    a(f"""
L_mpoll:
ds_read_b32 v8, v16 offset:{OFLO}
s_waitcnt lgkmcnt(0)
v_cmp_gt_u32 vcc, s56, v8
s_cbranch_vccz L_mgo
s_sleep {opt.msleep}
s_sub_u32 s36, s36, 1
s_cbranch_scc0 L_mpoll
L_mgo:
""")
    for c in range(6):
        a(f"ds_read_b32 v{mIN+c}, v4 offset:{CHB*c}")
    a(f"v_add_u32 v4, 512, v4")
    for m in range(3):
        a(f"s_waitcnt lgkmcnt({4-2*m})")
        a(f"v_perm_b32 v{mSO+m}, v{mIN+2*m+1}, v{mIN+2*m}, s50")
    a(f"buffer_store_dwordx3 {R(mSO,3)}, v18, s[32:35], s57 offen")
    if S2:
        for m in range(3): a(f"v_perm_b32 v{mSO+4+m}, v{mIN+2*m+1}, v{mIN+2*m}, s51")
        a(f"buffer_store_dwordx3 {R(mSO+4,3)}, v18, s[32:35], s57 offen offset:2304")
    a(f"s_add_u32 s57, s57, {256*2304}\ns_add_u32 s56, s56, 1")
    if opt.stamps:
        a(f"s_cmp_lg_u32 s56, 2\ns_cbranch_scc1 L_ms")
        stamp(a, opt, 10)
        a.label(f"L_ms")
    a(f"s_cmp_le_u32 s56, 8\ns_cbranch_scc1 L_mpoll")
    a.label("L_fin")
    if opt.amp: stamp(a, opt, 8)
    if opt.stamps and not opt.amp:
        stamp(a, opt, 8)
        a("s_waitcnt vmcnt(0)")
        stamp(a, opt, 9)
        a(f"""
s_load_dwordx2 s[8:9], s[0:1], 128
s_waitcnt lgkmcnt(0)
s_lshl_b32 s10, s2, 4
s_add_u32 s10, s10, s44
s_lshl_b32 s10, s10, 7
s_add_u32 s10, s10, {1<<20}
v_mov_b32 v20, s10
""")
        for k in range(1, NST):
            a(f"s_sub_u32 s11, s{64+2*k}, s64\nv_mov_b32 v21, s11\nglobal_store_dword v20, v21, s[8:9] offset:{4*k}")
        a("s_memrealtime s[10:11]\ns_waitcnt lgkmcnt(0)\nv_mov_b32 v21, s10\nglobal_store_dword v20, v21, s[8:9] offset:0")
        a("v_mov_b32 v21, s100\nglobal_store_dword v20, v21, s[8:9] offset:80")
        a("s_getreg_b32 s11, hwreg(HW_REG_HW_ID)\nv_mov_b32 v21, s11\nglobal_store_dword v20, v21, s[8:9] offset:84")
        a("s_getreg_b32 s11, hwreg(HW_REG_XCC_ID)\nv_mov_b32 v21, s11\nglobal_store_dword v20, v21, s[8:9] offset:88")
        a("v_mov_b32 v21, s64\nglobal_store_dword v20, v21, s[8:9] offset:92")
    if opt.amp:
        ampx = ("s_add_u32 s10, s82, %d" % opt.amp) if opt.amp > 100 else ("s_sub_u32 s10, s%d, s64\ns_lshl_b32 s10, s10, 2\ns_add_u32 s10, s10, s82" % (64 + 2 * opt.amp))
        a(f"""
s_waitcnt vmcnt(0)
s_memtime s[82:83]
s_waitcnt lgkmcnt(0)
s_cmp_lg_u32 s2, {opt.ampg}
s_cbranch_scc1 L_end
s_cmp_lg_u32 s44, {opt.ampw}
s_cbranch_scc1 L_end
{ampx}
L_amp:
s_memtime s[12:13]
s_waitcnt lgkmcnt(0)
s_sub_u32 s11, s12, s10
s_cmp_lt_i32 s11, 0
s_cbranch_scc1 L_amp
""")
    a.label("L_end")
    a("s_endpgm")
    for st in STUBS: a(st)
    a.label("L_codeend")
    out += a.text()
    out += f""".section .rodata,"a"
.p2align 6
.amdhsa_kernel {NAME}_kernel
  .amdhsa_next_free_vgpr 128
  .amdhsa_next_free_sgpr 102
  .amdhsa_accum_offset 128
  .amdhsa_group_segment_fixed_size 0
  .amdhsa_kernarg_size 136
  .amdhsa_user_sgpr_count 2
  .amdhsa_user_sgpr_kernarg_segment_ptr 1
  .amdhsa_system_sgpr_workgroup_id_x 1
.end_amdhsa_kernel
"""
    return out

if __name__ == "__main__":
    p = argparse.ArgumentParser()
    p.add_argument("-o", default="cdna_kernels/" + NAME + ".s")
    for k, v in dict(stamps=0, la=6, batch=8, pre=15, prel=1, codepf=3, chain=0, trig=0, rhi=1, sidem=1, blk=8, dry=0, nm=4, tint=1, st2=1, plist=33221100, llist=3221100, mold=1, bprio=0, wb=0, wbg=8, amp=0, ampg=0, ampw=15, k4=3, alow=0, e2=1, gate=0, nt=1, kmin=0, upf=0, nol=0, msleep=1, quarter=1,
                     ptop=2, pstep=3, lead=-1, xprio=3, mord=0, lateb=1, defer=1, ktop=3, klead=0, thr=0, lup=0).items():
        p.add_argument("--" + k, type=int, default=v)
    opt = p.parse_args()
    open(opt.o, "w").write(generate(opt))
```

```python
import sys, argparse

NAME = "concat_heads__ssm_conv_s4d__ssm_conv_s4d__prompt"

PITCH = 288
STGW = 4896
CHB = 10752
OUTO, OFLO = 6144, 10240
FL = 6 * CHB
KA = FL + 1024
KCP = 2112
KCH = 4 * KCP
UB = KA + 6 * KCH
UCH = 4608
BOXL = UB + 6 * UCH
TABL = BOXL + 4096
LDS_TOTAL = TABL + 4096
ZD, ZX = 543, 1615
Z2 = [687 + 64 * m for m in range(4)]
Z3 = [991, 1071]
DUMMY = 1040

vPA, vCF, vONE, vOW = 0, 1, 2, 3
vU, vKF, vKT, vSR, vSL0, vSL1, vPW0 = 4, 5, 6, 7, 8, 9, 10
vTA = 15
vKD, vRD = 11, 12
vAC, vAM = 14, 11
BOX = {3: 112, 5: 116, 7: 120, 9: 124}
vLF, vRF, vD = 20, 52, 68
vP = 36
vDT, vDSK, vC2 = 84, 85, 86
Z_, W_, ZZ, X_, Y_ = 88, 90, 92, 94, 96
T_ = [98, 99, 100, 101]
dF, dACC, dG, dPT, dOT, dFLG, dCN, dUT = 20, 84, 96, 12, 16, 18, 8, 10
dTH, dTT = 6, 19
lT2, lT3, lFX, lF5, lACC, lW, lG, lUT = 20, 44, 60, 64, 68, 92, 104, 7
mUD, mT, mIN, mSO = 20, 52, 60, 72
MF = "v_mfma_f32_16x16x32_bf16"

class Asm:
    def __init__(self): self.lines = []
    def __call__(self, s):
        for l in s.strip("\n").split("\n"):
            if not l.strip(): continue
            self.lines.append(l if l.rstrip().endswith(":") and not l.startswith(" ") else "    " + l.strip())
    def label(self, l): self.lines.append(l + ":")
    def text(self): return "\n".join(self.lines) + "\n"

def R(a, n=1): return f"v{a}" if n == 1 else f"v[{a}:{a+n-1}]"

def cmul(a, dst, x, m, conj=False):
    if not conj:
        a(f"v_pk_mul_f32 {R(dst,2)}, {R(x,2)}, {R(m,2)} op_sel:[0,0] op_sel_hi:[0,1]")
        a(f"v_pk_fma_f32 {R(dst,2)}, {R(x,2)}, {R(m,2)}, {R(dst,2)} op_sel:[1,1,0] op_sel_hi:[1,0,1] neg_lo:[0,1,0]")
    else:
        a(f"v_pk_mul_f32 {R(dst,2)}, {R(x,2)}, {R(m,2)} op_sel:[0,0] op_sel_hi:[0,1] neg_hi:[0,1]")
        a(f"v_pk_fma_f32 {R(dst,2)}, {R(x,2)}, {R(m,2)}, {R(dst,2)} op_sel:[1,1,0] op_sel_hi:[1,0,1]")

NST = 18
def stamp(a, opt, idx, wait=False):
    if opt.stamps and idx is not None:
        a(f"s_memtime s[{64+2*idx}:{65+2*idx}]")
        if wait: a("s_waitcnt lgkmcnt(0)")

class Frag:
    def __init__(self, kind, key, reg=None):
        self.kind, self.key, self.reg = kind, key, reg
        self.first = None; self.last = None; self.issued = False; self.seq = -1

def frag_reads(f):
    k = f.key
    if f.kind == "G": return [("ds_read_b128", f.reg, 4, vU, 512 + 2 * k)]
    if f.kind in ("F", "FX"):
        o = 2 * (ZD - 3 - k) if f.kind == "F" else 2 * (ZX - 3 - 1040)
        return [("ds_read_b64", f.reg, 2, vKF, o), ("ds_read_b64", f.reg + 2, 2, vKF, o + 8)]
    if f.kind == "T2":
        d, h = k
        return [("ds_read_b64", f.reg + 2 * j, 2, vKT, 2 * (Z2[2 * h + j] - 3 - 16 * d)) for j in range(2)]
    if f.kind == "T3":
        return [("ds_read_b64", f.reg + 2 * j, 2, vKT, 2 * (Z3[j] - 3 - 16 * k)) for j in range(2)]
    raise ValueError

class Stream:
    def __init__(self, a):
        self.a = a; self.n = 0; self.lds_n = 0; self.done = 0
    def ins(self, s, w=1): self.a(s); self.n += w
    def lds(self, s): self.ins(s); self.lds_n += 1; return self.lds_n
    def wait(self, seq):
        if seq > self.done:
            k = min(self.lds_n - seq, 15)
            self.ins(f"s_waitcnt lgkmcnt({k})"); self.done = self.lds_n - k
    def until(self, n):
        if self.n < n: self.ins(f"s_nop {n - self.n - 1}", n - self.n)
    def load(self, f):
        for (mn, d, n, ar, off) in frag_reads(f):
            f.seq = self.lds(f"{mn} {R(d,n)}, v{ar} offset:{off}")
        f.issued = True

STUBS = []
def wait_flags(a, reads, tag):
    rd = "\n".join(f"ds_read_b32 v{t}, v{vCF} offset:{o}" for t, o in reads)
    comb = "" if len(reads) == 1 else f"v_and_b32 v{reads[0][0]}, v{reads[0][0]}, v{reads[1][0]}\n"
    a.label(f"L_w_{tag}")
    a(f"{rd}\ns_waitcnt lgkmcnt(0)\n{comb}v_cmp_eq_u32 vcc, 0, v{reads[0][0]}\ns_cbranch_vccnz L_ws_{tag}")
    a.label(f"L_wd_{tag}")
    STUBS.append(f"L_ws_{tag}:\ns_sleep 1\ns_sub_u32 s34, s34, 1\ns_cbranch_scc0 L_w_{tag}\ns_branch L_wd_{tag}")

def flag_check(a, S, seq, tmp, off, tag, extra=""):
    S.wait(seq)
    S.ins(f"v_cmp_eq_u32 vcc, 0, v{tmp}")
    S.ins(f"s_cbranch_vccnz L_sp_{tag}")
    a.label(f"L_ok_{tag}")
    STUBS.append(f"""L_sp_{tag}:
s_sleep 1
ds_read_b32 v{tmp}, v{vCF} offset:{off}
{extra}s_waitcnt lgkmcnt(0)
s_sub_u32 s34, s34, 1
s_cbranch_scc1 L_ok_{tag}
v_cmp_eq_u32 vcc, 0, v{tmp}
s_cbranch_vccnz L_sp_{tag}
s_branch L_ok_{tag}""")

def cnt_check(a, S, seq, tmp, rd, val, tag, extra=""):
    S.wait(seq)
    S.ins(f"v_cmp_gt_u32 vcc, {val}, v{tmp}")
    S.ins(f"s_cbranch_vccnz L_sp_{tag}")
    a.label(f"L_ok_{tag}")
    STUBS.append(f"""L_sp_{tag}:
s_sleep 1
{rd}
{extra}s_waitcnt lgkmcnt(0)
s_sub_u32 s34, s34, 1
s_cbranch_scc1 L_ok_{tag}
v_cmp_gt_u32 vcc, {val}, v{tmp}
s_cbranch_vccnz L_sp_{tag}
s_branch L_ok_{tag}""")

def dprio(opt, t):
    if opt.plist: return int(str(opt.plist)[min(t, 7)])
    return max(opt.ptop - t // opt.pstep, 0)

def emit_dense(a, opt, S, F):
    ops = []
    for tau in range(8):
        gs = [Frag("G", 256 * tau - 16 - 32 * s) for s in range(8)]
        for s in range(8): gs[s].tile = tau if s == 0 else None
        lag = opt.blk
        for s in range(8 + lag):
            if s < 8: ops.append((tau, F[16 + 32 * s], gs[s], tau == 0 and s == 0))
            if s == 7 and lag: ops.append(("end", tau))
            if tau < 7 and 0 <= s - lag < 8: ops.append((tau + 1, F[272 + 32 * (s - lag)], gs[s - lag], s == lag))
            if s == 7 and not lag: ops.append(("end", tau))
    gl = []
    for i, op in enumerate(ops):
        if op[0] == "end": continue
        for g in (op[1], op[2]):
            if g.first is None:
                g.first = i
                if not g.issued: gl.append(g)
            g.last = i
    endpos = {op[1]: i for i, op in enumerate(ops) if op[0] == "end"}
    tfirst = {g.tile: g.first for g in gl if g.kind == "G" and g.tile is not None}
    ring = [-1] * 8
    acc_last = {}
    side = []
    pinfo = {}
    PRD = f"ds_read_addtid_b32 v{dFLG} offset:{OFLO + 256}"
    def ptxt(t): return f"ds_read_b128 {R(dPT,4)}, v{vPA} offset:{(t-2)*1024}"
    def queue_out(t):
        ac = dACC + 4 * (t % 3)
        rn = acc_last[t] + 8
        if t >= 2:
            if not opt.nol:
                side.append((0, lambda: cnt_check(a, S, pinfo[t], dFLG, PRD, t, f"p{t}", ptxt(t) + "\n")))
            side.append((rn, lambda: (S.ins(f"v_add_f32 v{dPT}, v{dPT}, v{ac}"), S.ins(f"v_add_f32 v{dPT+1}, v{dPT+1}, v{ac+1}"))))
            side.append((rn, lambda: (S.ins(f"v_add_f32 v{dPT+2}, v{dPT+2}, v{ac+2}"), S.ins(f"v_add_f32 v{dPT+3}, v{dPT+3}, v{ac+3}"))))
            src = dPT
        else:
            src = ac
        side.append((rn, lambda: (S.ins(f"v_cvt_pk_bf16_f32 v{dOT}, v{src}, v{src+1}"), S.ins(f"v_cvt_pk_bf16_f32 v{dOT+1}, v{src+2}, v{src+3}"))))
        side.append((rn, lambda: (S.lds(f"ds_write_addtid_b32 v{dOT} offset:{OUTO + 512*t}"), S.ins(f"v_mov_b32 v{dCN}, {t+1}"))))
        side.append((rn, lambda: S.lds(f"ds_write_addtid_b32 v{dOT+1} offset:{OUTO + 512*t + 256}")))
        def fin():
            S.lds(f"ds_write_addtid_b32 v{dCN} offset:{OFLO}")
            if opt.stamps == 2:
                stamp(a, opt, 10 + t, True); S.done = S.lds_n
        side.append((rn, fin))
    pend = list(gl)
    useq = {}
    thr = {}
    for i, op in enumerate(ops):
        if opt.defer and i == 2:
            klseq = S.lds(f"ds_read_b32 v{dFLG}, v{vCF} offset:12")
        for t in range(1, 8):
            if t not in useq and i + opt.la + 3 >= tfirst[t]:
                useq[t] = S.lds(f"ds_read_b32 v{dUT}, v{vCF} offset:{16 + 4*t}")
        while pend and pend[0].first <= i + opt.la:
            if pend[0].kind == "F":
                if opt.defer and pend[0].key == 496: flag_check(a, S, klseq, dFLG, 12, "kl")
                S.load(pend.pop(0)); continue
            slot = next((s for s in range(8) if ring[s] < i), None)
            if slot is None:
                assert pend[0].first > i
                break
            g = pend.pop(0)
            if g.tile: flag_check(a, S, useq[g.tile], dUT, 16 + 4 * g.tile, f"du{g.tile}")
            ring[slot] = g.last; g.reg = dG + 4 * slot; S.load(g)
        for t in range(2, 8):
            if t not in pinfo and i >= endpos[t] - 3:
                while side:
                    rn, fn = side.pop(0); S.until(rn); fn()
                S.lds(PRD)
                pinfo[t] = S.lds(ptxt(t))
        if opt.thr:
            for t in range(opt.thr, 8):
                if t not in thr and i + 5 >= endpos[t - 1]:
                    thr[t] = S.lds(f"ds_read_b32 v{dTT}, v{dTH}")
        if op[0] == "end":
            t1 = op[1] + 1
            if opt.thr and opt.thr <= t1 < 8:
                S.wait(thr[t1])
                S.ins(f"v_cmp_gt_u32 vcc, {t1 - opt.thr + 1}, v{dTT}")
                S.ins(f"s_cbranch_vccnz L_th_{t1}")
                a.label(f"L_tk_{t1}")
                STUBS.append(f"""L_th_{t1}:
s_sleep 1
ds_read_b32 v{dTT}, v{dTH}
s_waitcnt lgkmcnt(0)
s_sub_u32 s34, s34, 1
s_cbranch_scc1 L_tk_{t1}
v_cmp_gt_u32 vcc, {t1 - opt.thr + 1}, v{dTT}
s_cbranch_vccnz L_th_{t1}
s_branch L_tk_{t1}""")
            queue_out(op[1])
            if op[1] < 7 and (dprio(opt, op[1] + 1) != dprio(opt, op[1]) or (opt.alow and op[1] == 1)): S.ins(f"s_setprio {dprio(opt, op[1] + 1)}")
            continue
        t, f, g, first = op
        S.wait(max(f.seq, g.seq))
        ac = dACC + 4 * (t % 3)
        S.ins(f"{MF} {R(ac,4)}, {R(f.reg,4)}, {R(g.reg,4)}, {'0' if first else R(ac,4)}")
        acc_last[t] = S.n
        isq0 = f.key < 272
        if opt.sidem == 0 or isq0 or opt.blk:
            if side and side[0][0] <= S.n: side.pop(0)[1]()
        if isq0 and t == 7 and side and side[0][0] <= S.n: side.pop(0)[1]()
        if opt.sidem == 0 and t == 7 and not isq0 and side and side[0][0] <= S.n: side.pop(0)[1]()
    while side:
        rn, fn = side.pop(0); S.until(rn); fn()

def level_frags():
    K = {}
    for d in (2, 3, 4):
        for h in (0, 1): K[("T2", d, h)] = Frag("T2", (d, h), lT2 + 4 * ((d - 2) * 2 + h))
    for d in (4, 5, 6): K[("T3", d)] = Frag("T3", d, lT3 + 4 * (d - 4))
    K[("T3", 7)] = Frag("T3", 7, lACC + 16)
    K["FX"] = Frag("FX", 0, lFX)
    K["F5"] = Frag("F", 528, lF5)
    return K
LORDER = ["FX", ("T2", 2, 0), ("T2", 3, 0), ("T2", 4, 0), ("T2", 2, 1), ("T2", 3, 1), ("T2", 4, 1), ("T3", 7), ("T3", 4), ("T3", 5), ("T3", 6)]

def emit_level(a, opt, S, K):
    acc = lambda t: lACC + 4 * (t - 2)
    inited = set(); acc_last = {}; vq = []; wr = {}; pubq = []
    def drain(k):
        while k > 0 and vq and vq[0][0] <= S.n:
            rn, txt, key = vq.pop(0); S.ins(txt); wr[key] = S.n + 2; k -= 1
    def force(key):
        while any(q[2] == key for q in vq):
            rn, txt, kk = vq.pop(0); S.until(rn); S.ins(txt); wr[kk] = S.n + 2
    def need(f):
        if not f.issued: S.load(f)
        S.wait(f.seq)
    def mf(d, A, B, c):
        S.ins(f"{MF} {R(d,4)}, {R(A,4)}, {R(B,4)}, {c}")
        n = S.n
        if pubq: pubflush()
        else: drain(1)
        return n
    def am(t, A, B):
        c = R(acc(t), 4) if t in inited else "0"
        inited.add(t)
        acc_last[t] = mf(acc(t), A, B, c)
    G0 = [Frag("G", 256 * b - 16, lG) for b in range(6)]
    GM = [Frag("G", 256 * b - 24, lG + 4) for b in range(6)]
    S.load(G0[0]); S.load(GM[0])
    lo = ["F5", "FX", ("T2", 2, 0), ("T2", 2, 1), ("T2", 3, 0), ("T2", 4, 0), ("T2", 3, 1), ("T2", 4, 1), ("T3", 7), ("T3", 4), ("T3", 5), ("T3", 6)] if opt.e2 else ["F5"] + LORDER
    lazy = [K[k] for k in lo if not K[k].issued]
    tsets = [[12, 16], [8, 56]]
    def publish(t):
        S.until(acc_last[t] + 8)
        S.lds(f"ds_write_b128 v{vPA}, {R(acc(t),4)} offset:{(t-2)*1024}")
        S.ins(f"v_mov_b32 v{vONE}, {t}")
        pubq.append(t)
    def pubflush():
        while pubq:
            t = pubq.pop(0)
            S.lds(f"ds_write_addtid_b32 v{vONE} offset:{OFLO + 256}")
            if opt.stamps == 2:
                stamp(a, opt, 10 + t, True); S.done = S.lds_n
    def uses(b, h, ds=None):
        if b < 0 or b > 5: return
        if h < 2: lst = [(b + d, K[("T2", d, h)]) for d in (ds or ((3, 4) if opt.e2 else (2, 3, 4))) if b + d <= 7]
        else: lst = [(b + d, K[("T3", d)]) for d in (7, 4, 5, 6) if b + d <= 7 and b <= 3]
        if lst: force((b, h))
        for t, f in lst:
            need(f); S.until(wr[(b, h)]); am(t, lW + 4 * h, f.reg)
    grp = 0; prevkey = None
    lp = lambda nb: int(str(opt.llist)[nb]) if opt.llist else min(dprio(opt, max(nb - opt.lead, 0)) + opt.lup, 3)
    for nb in range(7):
        b = nb - 1
        pairs = []
        if nb <= 5:
            g0, gm = G0[nb], GM[nb]
            pairs = [[(g0, 3), (g0, 5)], [(gm, 3), (gm, 5)]]
            if nb <= 3: pairs.append([(g0, 7), (gm, 9)])
        if nb > 0 and (lp(nb) != lp(nb - 1) or (opt.alow and nb == 2)): S.ins(f"s_setprio {lp(nb)}")
        for h in range(3):
            newv = []
            for _ in range(3):
                if lazy: S.load(lazy.pop(0))
            if h < len(pairs):
                tm = tsets[grp % 2]; grp += 1
                for q in list(vq):
                    if q[2] != prevkey: force(q[2])
                for j, (g, box) in enumerate(pairs[h]):
                    need(g)
                    n = mf(tm[j], g.reg, BOX[box], "0")
                    dst = lW + 4 * h + 2 * j
                    newv.append((n + 8, f"v_cvt_pk_bf16_f32 v{dst}, v{tm[j]}, v{tm[j]+1}", (nb, h)))
                    newv.append((n + 8, f"v_cvt_pk_bf16_f32 v{dst+1}, v{tm[j]+2}, v{tm[j]+3}", (nb, h)))
                if h == 0:
                    need(K["F5"]); am(nb + 2, K["F5"].reg, g0.reg)
                    if nb < 5: useq = S.lds(f"ds_read_b32 v{lUT}, v{vCF} offset:{16 + 4*(nb+1)}")
                if h == 1 and nb <= 3:
                    need(K["FX"]); am(nb + 4, K["FX"].reg, g0.reg)
                if h == len(pairs) - 1 and nb < 5:
                    flag_check(a, S, useq, lUT, 16 + 4 * (nb + 1), f"lu{nb+1}")
                    S.load(G0[nb + 1]); S.load(GM[nb + 1])
            if opt.e2:
                if h == 0 and b >= 0: uses(b, 1, (2,))
                uses(b, h)
                if h == 0 and b >= 0: publish(b + 2)
                if h == 2: uses(nb, 0, (2,))
            else:
                uses(b, h)
                if h == 2 and b >= 0: publish(b + 2)
            if newv:
                vq.extend(newv); prevkey = (nb, h)
    pubflush()

def kprio(a, opt, i):
    p = max(opt.ktop - i, opt.kmin)
    if opt.klead:
        a(f"s_setprio {max(p,0)}\ns_cbranch_scc0 L_kp{i}\ns_setprio {min(max(p,0)+1,3)}\nL_kp{i}:")
    else:
        a(f"s_setprio {max(p,0)}")

def lane_table():
    rows = []
    misc = {0: ZD-511, 1: ZD-512, 2: ZD-513, 3: ZD-514, 16: Z3[1]-127, 32: ZX-1027, 33: ZX-1028, 34: Z2[3]-63, 48: ZD-509, 52: ZD-510}
    for l in range(64):
        r, g = l & 15, l >> 4
        t = []
        for wdt, lo in ((3, 11), (5, 6), (7, 5), (9, 4)):
            for w in range(4):
                d = 0
                for hf in range(2):
                    if r + lo <= 8 * g + 2 * w + hf <= r + lo + wdt - 1: d |= 0x3F80 << (16 * hf)
                t.append(d)
        kb = (3 - (r & 3)) * KCP - 8 * (r >> 2)
        sel = (l & 1) + 2 * (g >> 1)
        cm = 32 * (g & 1) + (r & 14)
        t += [32 * r + 16 * g, kb + 16 * g, kb + 8 * g, 1024 * (g >> 1) + 32 * r + 16 * (g & 1)]
        t += [16 * l, 1072 - 16 * l, 32 * l, 2 * ([655, 783, 976, 895][sel] - 8) - cm]
        t += [16 * l, 2 * misc.get(l, DUMMY), 0, 2 * ([848, 719, 1008, 927][sel] - 8) - cm]
        t += [0, 0, 0, 0]
        rows.append([x & 0xFFFFFFFF for x in t])
    return [rows[l][4 * c:4 * c + 4] for c in range(8) for l in range(64)]

def pack64(vals, bits):
    c = 0
    for i, v in enumerate(vals): c |= v << (bits * i)
    return c & 0xffffffff, c >> 32

def generate(opt):
    a = Asm()
    hdr = open("cdna_kernels/" + NAME + ".s.ref").read().split("\n")
    top = [l for l in hdr if l.startswith(";") and "@launch" not in l and "Override launch" not in l and "grid=ceil" not in l]
    out = "\n".join(top) + "\n"
    out += f"; @launch grid=(200,1,1) block=({768 + 64 * opt.nm},1,1) lds={LDS_TOTAL}\n"
    out += f""".amdgcn_target "amdgcn-amd-amdhsa--gfx950"
.text
.globl {NAME}_kernel
.p2align 8
.type {NAME}_kernel,@function
{NAME}_kernel:
"""
    stamp(a, opt, 0)
    if opt.stamps: a("s_memrealtime s[100:101]")
    a(f"""
s_and_b32 s3, s2, 7
s_mul_i32 s3, s3, 25
s_lshr_b32 s4, s2, 3
s_add_u32 s3, s3, s4
s_cmp_ge_u32 s3, 99
s_cselect_b32 s6, 56, 0
s_load_dwordx16 s[16:31], s[0:1], s6
s_load_dwordx2 s[32:33], s[0:1], 112
""")
    if opt.codepf == 1:
        a(f"""
s_getpc_b64 s[52:53]
L_pc:
v_lshlrev_b32 v6, 7, v0
v_cmp_gt_u32 vcc, L_codeend-L_pc, v6
s_and_saveexec_b64 s[12:13], vcc
s_cbranch_execz L_nocpf
global_load_dword v102, v6, s[52:53]
L_nocpf:
s_mov_b64 exec, s[12:13]
s_cmp_ge_u32 s3, 99
""")
    a(f"""
v_lshrrev_b32 v2, 6, v0
s_cselect_b32 s7, 9, 0
s_cselect_b32 s48, 1152, 0
v_readfirstlane_b32 s44, v2
s_cmp_ge_u32 s2, 200
s_cbranch_scc1 L_end
s_cmp_ge_u32 s3, 198
s_cbranch_scc1 L_end
v_and_b32 v1, 63, v0
s_add_u32 s44, s44, {16 - opt.nm}
s_and_b32 s44, s44, 15
{"s_cmp_ge_u32 s44, 14" if opt.nm == 2 else ""}
{"s_cselect_b32 s8, 2, 0" if opt.nm == 2 else ""}
{"s_sub_u32 s44, s44, s8" if opt.nm == 2 else ""}
s_mul_i32 s4, s3, 5958
s_lshr_b32 s4, s4, 16
s_mul_i32 s5, s4, 11
s_sub_u32 s59, s3, s5
s_mul_i32 s5, s59, 6
s_min_u32 s5, s5, 58
s_sub_u32 s4, s4, s7
s_lshl_b32 s4, s4, 6
s_add_u32 s5, s5, s4
s_setprio 3
""")
    if opt.gate:
        a(f"""
v_mov_b32 v8, 0
v_mov_b32 v9, 0
v_mov_b32 v10, 0
v_mov_b32 v11, 0
v_lshlrev_b32 v7, 4, v1
ds_write_b128 v7, v[8:11] offset:{FL}
s_waitcnt lgkmcnt(0)
s_barrier
""")
    a(f"""
s_cmp_ge_u32 s44, 12
{"s_cbranch_scc0 L_comp" if opt.dry else "s_cbranch_scc1 L_mem0"}
""")
    if opt.dry:
        a("""
s_mov_b64 exec, 0
s_setprio 0
s_mov_b32 s62, 0
s_mov_b32 s45, 0
s_cmp_eq_u32 s44, 13
s_cbranch_scc1 L_proL
s_cmp_eq_u32 s44, 14
s_cbranch_scc1 L_dry2
s_cmp_eq_u32 s44, 15
s_cbranch_scc1 L_dry3
s_branch L_dry0
L_comp:
""")
    a(f"""
s_sub_u32 s45, s44, 6
s_cmp_ge_u32 s44, 6
s_cselect_b32 s45, s45, s44
s_cselect_b32 s62, 1, 0
s_add_u32 s46, s5, s45
s_lshl_b32 s8, s46, 8
v_lshl_add_u32 v20, v1, 2, s8
s_lshl_b32 s8, s46, 1
s_and_b32 s8, s8, -4
s_waitcnt lgkmcnt(0)
global_load_dword v{vP}, v20, s[18:19]
global_load_dword v{vP+1}, v20, s[20:21]
global_load_dword v{vP+2}, v20, s[22:23]
global_load_dword v{vP+3}, v20, s[24:25]
s_load_dword s40, s[26:27], s8
s_load_dword s41, s[28:29], s8
""")
    if opt.codepf == 3:
        a(("""
s_cmp_lt_u32 s44, 10
s_cbranch_scc1 L_nocpf
s_getpc_b64 s[52:53]
L_pc:
v_subrev_u32 v6, CPFBASE, v0
v_lshlrev_b32 v6, 7, v6
v_min_u32 v6, L_codeend-L_pc-4, v6
global_load_dword v87, v6, s[52:53]
L_nocpf:
""").replace("CPFBASE", str(640 + 64 * opt.nm)))
    if opt.gate:
        a(f"""
v_lshlrev_b32 v21, 2, v1
v_mov_b32 v{vONE}, 1
ds_add_u32 v21, v{vONE} offset:{FL + 768 - 65536 if False else 0}
""".replace("v21, v2 offset:0", "v21, v2 offset:%d" % (FL + 768)))
    if opt.stamps == 1: stamp(a, opt, 14)

    stamp(a, opt, 1)
    sl0 = pack64([0,1,2,3,4,5,6,7,8,8,10,11,11,11,14,15], 4)
    a(f"""
s_mul_i32 s61, s45, {CHB}
s_mul_i32 s60, s62, {STGW}
s_add_u32 s60, s60, s61
s_mov_b32 m0, s60
s_movk_i32 s9, {PITCH}
s_mov_b32 s10, {sl0[0]:#x}
s_mov_b32 s11, {sl0[1]:#x}
v_and_b32 v20, 15, v1
v_and_b32 v21, 48, v1
v_add_u32 v24, s60, v21
v_mad_u32_u24 v{vSR}, v20, s9, v24
v_add_u32 v{vSL1}, {16*PITCH}, v24
v_lshlrev_b32 v25, 2, v20
v_lshrrev_b64 v[26:27], v25, s[10:11]
v_and_b32 v26, 15, v26
v_mad_u32_u24 v{vSL0}, v26, s9, v24
v_lshlrev_b32 v{vTA}, 4, v1
v_add_u32 v{vTA}, {TABL}, v{vTA}
s_mov_b32 s49, 0x01000c0c
s_cmp_lg_u32 s62, 0
s_cselect_b32 s49, 0x03020c0c, s49
s_mov_b32 s12, 0xbfb8aa3b
s_mov_b32 s13, 0x3e22f983
s_mov_b32 s14, 0x41000000
s_mov_b32 s15, 0x43800000
s_mov_b32 s63, 0x3fb8aa3b
s_mov_b32 s35, 0x7fff7fff
s_mov_b32 s34, 0x40000
v_mov_b32 v{vONE}, 1
s_mul_i32 s57, s45, {KCH}
s_add_u32 s57, s57, {KA}
s_mul_i32 s56, s45, {UCH}
s_add_u32 s56, s56, {UB}
s_lshl_b32 s8, s45, 7
s_add_u32 s8, s8, {FL}
v_mov_b32 v{vCF}, s8
s_lshl_b32 s8, s62, 10
v_add_u32 v14, s8, v{vTA}
s_waitcnt lgkmcnt(0)
s_lshl_b32 s8, s40, 16
s_and_b32 s40, s40, 0xffff0000
s_lshl_b32 s9, s41, 16
s_and_b32 s41, s41, 0xffff0000
s_bitcmp0_b32 s46, 0
s_cselect_b32 s40, s8, s40
s_cselect_b32 s41, s9, s41
v_mov_b32 v{vDT}, s63
v_mov_b32 v{vDSK}, 0
v_mul_f32 v{vDT}, s40, v{vDT}
v_writelane_b32 v{vDSK}, s41, 0
v_exp_f32 v{vDT}, v{vDT}
s_cmp_lg_u32 s62, 0
""")
    stamp(a, opt, 2)
    if opt.codepf == 3:
        a("s_waitcnt vmcnt(1)\ns_cmp_ge_u32 s44, 10\ns_cbranch_scc1 L_pw\ns_waitcnt vmcnt(0)\nL_pw:\ns_cmp_lg_u32 s62, 0")
    else:
        a("s_waitcnt vmcnt(0)")
    stamp(a, opt, 3)
    if opt.chain: a(f"ds_write_b32 v{vCF}, v{vONE} offset:96")
    kprio(a, opt, 0)
    if opt.bpos == 0: a("s_barrier")
    MH = "v_mfma_f32_16x16x32_f16"
    AB, CC, TA, TB, zf, wf, Zf, w2, w4, MX, MT = 52, 54, 56, 58, 60, 62, 64, 66, 68, 70, 71
    hz1, hz2, hz4, hZ1, hZ2, hZ4 = 88, 89, 90, 91, 92, 93
    RR = {j: 94 + j for j in range(1, 17)}
    LL = {}
    free = list(range(111, 128))
    def hmul(dst, x, m, conj=False):
        if not conj:
            a(f"v_pk_mul_f16 v{dst}, v{x}, v{m} op_sel:[0,0] op_sel_hi:[0,1]")
            a(f"v_pk_fma_f16 v{dst}, v{x}, v{m}, v{dst} op_sel:[1,1,0] op_sel_hi:[1,0,1] neg_lo:[0,1,0]")
        else:
            a(f"v_pk_mul_f16 v{dst}, v{x}, v{m} op_sel:[0,0] op_sel_hi:[0,1] neg_hi:[0,1]")
            a(f"v_pk_fma_f16 v{dst}, v{x}, v{m}, v{dst} op_sel:[1,1,0] op_sel_hi:[1,0,1]")
    dpp = lambda c, rm="0xf": f"v_max_u32_dpp v{MX}, v{MX}, v{MX} {c} row_mask:{rm} bank_mask:0xf"
    a(f"""
v_perm_b32 v{TA}, v{vP}, v{vP}, s49
v_and_b32 v{MX}, s35, v{vP+2}
v_mul_f32 v{TA}, s63, v{TA}
v_and_b32 v{MT}, s35, v{vP+3}
v_exp_f32 v{TA}, v{TA}
v_pk_max_u16 v{MX}, v{MX}, v{MT}
v_perm_b32 v{TA+1}, v{vP+1}, v{vP+1}, s49
v_lshlrev_b32 v{MT}, 16, v{MX}
v_cvt_pk_bf16_f32 v{vDT}, v{vDT}, v{TA}
v_max_u32 v{MX}, v{MX}, v{MT}
v_and_b32 v{TA}, 0xffff0000, v{vDT}
v_lshlrev_b32 v{vDT}, 16, v{vDT}
{dpp("row_shr:1")}
v_pk_mul_f32 {R(AB,2)}, {R(TA,2)}, {R(vDT,2)} op_sel_hi:[1,0]
v_pk_mul_f32 {R(AB,2)}, {R(AB,2)}, s[12:13]
{dpp("row_shr:2")}
v_pk_mul_f32 {R(TA,2)}, {R(AB,2)}, s[14:15] op_sel_hi:[1,0]
v_pk_mul_f32 {R(TB,2)}, {R(AB,2)}, s[14:15] op_sel:[0,1] op_sel_hi:[1,1]
{dpp("row_shr:4")}
v_fract_f32 v{AB+1}, v{AB+1}
v_exp_f32 v{AB}, v{AB}
{dpp("row_shr:8")}
v_cos_f32 v{zf}, v{AB+1}
v_sin_f32 v{zf+1}, v{AB+1}
{dpp("row_bcast:15", "0xa")}
v_fract_f32 v{TB+1}, v{TB+1}
v_pk_mul_f32 {R(zf,2)}, {R(zf,2)}, {R(AB,2)} op_sel_hi:[1,0]
{dpp("row_bcast:31", "0xc")}
v_exp_f32 v{TB}, v{TB}
v_cos_f32 v{Zf}, v{TB+1}
v_readlane_b32 s10, v{MX}, 63
v_sin_f32 v{Zf+1}, v{TB+1}
v_fract_f32 v{TA+1}, v{TA+1}
v_perm_b32 v{CC}, v{vP+2}, v{vP+2}, s49
s_and_b32 s10, s10, 0x7f800000
s_sub_u32 s8, 0x7f000000, s10
s_add_u32 s10, s10, 0x00800000
v_pk_mul_f32 {R(Zf,2)}, {R(Zf,2)}, {R(TB,2)} op_sel_hi:[1,0]
v_perm_b32 v{CC+1}, v{vP+3}, v{vP+3}, s49
v_exp_f32 v{TA}, v{TA}
v_cos_f32 v{wf}, v{TA+1}
v_sin_f32_e64 v{wf+1}, -v{TA+1}
v_pk_mul_f32 {R(CC,2)}, {R(CC,2)}, s[8:9] op_sel_hi:[1,0]
v_cvt_pk_f16_f32 v{hz1}, v{zf}, v{zf+1}
v_pk_mul_f32 {R(wf,2)}, {R(wf,2)}, {R(TA,2)} op_sel_hi:[1,0]
v_cvt_pk_f16_f32 v{hZ1}, v{Zf}, v{Zf+1}
v_mul_f32 v{vC2}, s10, v{vDT}
s_cmp_lg_u32 s62, 0
""")
    if opt.bpos == 1: a("s_barrier")
    if opt.go == 1: a(f"ds_write_b32 v{vCF}, v{vONE} offset:96")
    if opt.stamps == 1: stamp(a, opt, 10)
    pend = []
    def flush():
        for t, slot in pend: a(f"ds_write_addtid_b32 v{t} offset:{PITCH*slot}")
        pend.clear()
    def put(reg, slot):
        pend.append((reg, slot))
        if len(pend) == opt.batch: flush()
    rot = [0]
    def tmp():
        r = 120 + rot[0] % 8; rot[0] += 1; return r
    keep = {0: 111, 2: 112, 4: 113, 6: 114, 256: 115, 260: 116, 512: 117, 768: 118, 1024: 119}
    def L(b, src, m, slot, conj=False):
        dst = keep.get(b) or tmp()
        hmul(dst, src, m, conj); put(dst, slot)
    a(f"v_cvt_pk_f16_f32 v{keep[0]}, v{CC}, v{CC+1}"); put(keep[0], 0)
    hmul(hz2, hz1, hz1)
    a(f"v_cvt_pk_f16_f32 v{RR[1]}, v{wf}, v{wf+1}")
    L(1, keep[0], hz1, 1); L(2, keep[0], hz2, 2)
    hmul(hz4, hz2, hz2)
    L(3, keep[2], hz1, 3); L(4, keep[0], hz4, 4); L(5, keep[4], hz1, 5); L(6, keep[4], hz2, 6); L(7, keep[6], hz1, 7)
    L(256, keep[0], hZ1, 8); L(258, keep[2], hZ1, 10); L(260, keep[4], hZ1, 11); L(262, keep[6], hZ1, 14)
    L(264, keep[256], RR[1], 15, conj=True)
    flush()
    for k in range(4): a(f"ds_read_b128 {R(vLF+4*k,4)}, v{vSL0} offset:{64*k}")
    if opt.bpos == 2: a("s_barrier")
    if opt.k4 < 2: kprio(a, opt, 1)
    hmul(hZ2, hZ1, hZ1)
    cmul(a, w2, wf, wf)
    L(512, keep[0], hZ2, 0); L(516, keep[4], hZ2, 1); L(768, keep[256], hZ2, 4); L(772, keep[260], hZ2, 5)
    hmul(hZ4, hZ2, hZ2)
    cmul(a, w4, w2, w2)
    L(1024, keep[0], hZ4, 8); L(1280, keep[256], hZ4, 12); L(1536, keep[512], hZ4, 9); L(1792, keep[768], hZ4, 13); L(2048, keep[1024], hZ4, 6)
    flush()
    for k in range(4): a(f"ds_read_b128 {R(vLF+16+4*k,4)}, v{vSR} offset:{64*k}")
    if opt.stamps == 1: stamp(a, opt, 11)
    if opt.go == 2: a(f"ds_write_b32 v{vCF}, v{vONE} offset:96")
    if opt.k4: kprio(a, opt, 2 if opt.k4 == 1 else 1)
    t = tmp()
    a(f"v_mov_b32 v{t}, 0x3c00"); put(t, 0); put(RR[1], 1)
    a(f"v_cvt_pk_f16_f32 v{RR[2]}, v{w2}, v{w2+1}"); put(RR[2], 2)
    a(f"v_cvt_pk_f16_f32 v{RR[4]}, v{w4}, v{w4+1}"); put(RR[4], 4)
    hmul(RR[3], RR[1], RR[2]); put(RR[3], 3)
    hmul(RR[8], RR[4], RR[4]); put(RR[8], 8)
    for j in (5, 6, 7): hmul(RR[j], RR[j-4], RR[4]); put(RR[j], j)
    hmul(RR[16], RR[8], RR[8])
    if opt.rhi:
        a(f"ds_write_addtid_b32 v{RR[16]} offset:{PITCH*16}")
    for j in range(9, 16):
        hmul(RR[j], RR[j-8], RR[8]); put(RR[j], j)
        if j == 11 and not opt.k4: kprio(a, opt, 2)
    flush()
    if opt.rhi:
        WF = 104
        if opt.go == 3: a(f"ds_write_b32 v{vCF}, v{vONE} offset:96")
        a.label("L_tw")
        a(f"ds_read_b32 v13, v{vCF} offset:100")
        a(f"ds_read_b128 v[88:91], v{vTA}")
        a(f"ds_read_b128 v[92:95], v14 offset:1024")
        for k in range(4):
            a(f"ds_read_b128 {R(vRF+4*k,4)}, v{vSR} offset:{64*k}")
            a(f"ds_read_b128 {R(WF+4*k,4)}, v{vSL1} offset:{64*k}")
        if opt.stamps == 1: stamp(a, opt, 12, True)
        if opt.k4: kprio(a, opt, 3 if opt.k4 == 1 else 2)
        else: a(f"s_setprio {opt.xprio}")
        def mm(n, k, m):
            dd = vD + 8 * m + 4 * n
            src = (vRF if n == 0 else WF) + 4 * k
            a(f"{MH} {R(dd,4)}, {R(vLF+16*m+4*k,4)}, {R(src,4)}, {'0' if k == 0 else R(dd,4)}")
        for k in range(4):
            if opt.k4 >= 2 and k == opt.k4: kprio(a, opt, 3)
            a(f"s_waitcnt lgkmcnt({6-2*k})")
            if k == 0:
                a("v_cmp_gt_u32 vcc, 4, v13\ns_cbranch_vccnz L_tws\nL_twd:")
                STUBS.append("L_tws:\ns_sleep 1\ns_waitcnt lgkmcnt(0)\ns_sub_u32 s34, s34, 1\ns_cbranch_scc0 L_tw\ns_branch L_twd")
            adds = [[(vU, 88, 56), (vKF, 89, 57)], [(vKT, 90, 57), (vPW0, 91, 60)], [(vPA, 92, 61), (vAC, 95, 57)], [(vKD, 93, 57), (vRD, 94, 61)]][k]
            for dd_, ss_, sg_ in adds: a(f"v_add_u32 v{dd_}, s{sg_}, v{ss_}")
            for e in range(4):
                t = tmp(); x = vRF + 4 * k + e; m_ = WF + 4 * k + e
                a(f"v_pk_mul_f16 v{t}, v{x}, v{m_} op_sel:[0,0] op_sel_hi:[0,1]")
                a(f"v_pk_fma_f16 v{m_}, v{x}, v{m_}, v{t} op_sel:[1,1,0] op_sel_hi:[1,0,1] neg_lo:[0,1,0]")
                if e == 0: mm(0, k, 0)
                if e == 1 and k > 0: mm(1, k - 1, 0)
                if e == 2: mm(0, k, 1)
                if e == 3 and k > 0: mm(1, k - 1, 1)
        a("s_nop 1")
        mm(1, 3, 0); mm(1, 3, 1)
        a(f"s_setprio {opt.xprio}\ns_nop 0" if opt.k4 else "s_nop 1")
    else:
        for k in range(4): a(f"ds_read_b128 {R(vRF+4*k,4)}, v{vSR} offset:{64*k}")
        put(RR[16], 0)
        for j in range(17, 32):
            t = tmp()
            hmul(t, RR[j-16], RR[16]); put(t, j - 16)
            if j == 19:
                a(f"s_waitcnt lgkmcnt({4 - len(pend)})")
            if 19 <= j < 27:
                k, m = (j - 19) // 2, (j - 19) % 2
                dd = vD + 8 * m
                a(f"{MH} {R(dd,4)}, {R(vLF+16*m+4*k,4)}, {R(vRF+4*k,4)}, {'0' if k == 0 else R(dd,4)}")
        flush()
        if opt.stamps == 1: stamp(a, opt, 12, True)
        for k in range(4): a(f"ds_read_b128 {R(vRF+4*k,4)}, v{vSR} offset:{64*k}")
        a(f"s_setprio {opt.xprio}")
        for k in range(4):
            a(f"s_waitcnt lgkmcnt({3-k})")
            for m in range(2):
                dd = vD + 8 * m + 4
                a(f"{MH} {R(dd,4)}, {R(vLF+16*m+4*k,4)}, {R(vRF+4*k,4)}, {'0' if k == 0 else R(dd,4)}")
    a(f"""
ds_write_b128 v{vPW0}, {R(vD,4)}
s_cmp_lg_u32 s62, 0
s_cbranch_scc1 L_xL
ds_write_addtid_b32 v{vD+8} offset:2048
ds_write_addtid_b32 v{vD+10} offset:2560
s_nop 2
ds_write_b128 v{vPW0}, {R(vD+4,4)} offset:512
ds_write_addtid_b32 v{vD+12} offset:2304
ds_write_b32 v{vCF}, v{vONE}
""")
    if opt.stamps == 1: stamp(a, opt, 13)
    wait_flags(a, [(20, 4)], "pxd")
    stamp(a, opt, 4)
    A_, B_, Pv, E, O, E2, O2 = 88, 100, 96, 108, 112, 116, 120
    d = lambda k: A_ + k
    a(f"""
ds_read_b128 {R(A_+4,4)}, v{vRD} offset:16
ds_read_b128 {R(B_+4,4)}, v{vRD} offset:{STGW+16}
ds_read_b128 {R(A_,4)}, v{vRD}
ds_read_b128 {R(B_,4)}, v{vRD} offset:{STGW}
ds_read_addtid_b32 v20 offset:{STGW+2048}
ds_read_addtid_b32 v21 offset:{STGW+2304}
s_waitcnt lgkmcnt(4)
v_pk_add_f32 {R(A_+4,2)}, {R(A_+4,2)}, {R(B_+4,2)}
v_pk_add_f32 {R(A_+6,2)}, {R(A_+6,2)}, {R(B_+6,2)}
v_pk_mul_f32 {R(A_+4,2)}, {R(A_+4,2)}, {R(vC2,2)} op_sel_hi:[1,0]
v_pk_mul_f32 {R(A_+6,2)}, {R(A_+6,2)}, {R(vC2,2)} op_sel_hi:[1,0]
s_waitcnt lgkmcnt(2)
v_pk_add_f32 {R(A_,2)}, {R(A_,2)}, {R(B_,2)}
v_pk_add_f32 {R(A_+2,2)}, {R(A_+2,2)}, {R(B_+2,2)}
v_fma_f32 v{A_}, v{A_}, v{vC2}, v{vDSK}
v_mul_f32 v{A_+1}, v{A_+1}, v{vC2}
v_pk_mul_f32 {R(A_+2,2)}, {R(A_+2,2)}, {R(vC2,2)} op_sel_hi:[1,0]
v_mov_b32_dpp v{Pv}, v{d(5)} wave_shr:1 row_mask:0xf bank_mask:0xf bound_ctrl:0
v_mov_b32_dpp v{Pv+1}, v{d(6)} wave_shr:1 row_mask:0xf bank_mask:0xf bound_ctrl:0
v_mov_b32_dpp v{Pv+2}, v{d(7)} wave_shr:1 row_mask:0xf bank_mask:0xf bound_ctrl:0
v_cvt_pk_bf16_f32 v{E}, v{d(7)}, v{d(6)}
v_cvt_pk_bf16_f32 v{E+1}, v{d(5)}, v{d(4)}
v_cvt_pk_bf16_f32 v{E+2}, v{d(3)}, v{d(2)}
v_cvt_pk_bf16_f32 v{E+3}, v{d(1)}, v{d(0)}
ds_write_b128 v{vKD}, {R(E,4)}
v_cvt_pk_bf16_f32 v{O}, v{d(6)}, v{d(5)}
v_cvt_pk_bf16_f32 v{O+1}, v{d(4)}, v{d(3)}
v_cvt_pk_bf16_f32 v{O+2}, v{d(2)}, v{d(1)}
v_cvt_pk_bf16_f32 v{O+3}, v{d(0)}, v{Pv+2}
ds_write_b128 v{vKD}, {R(O,4)} offset:{KCP}
v_mov_b32 v{E2}, v{E+1}
v_mov_b32 v{E2+1}, v{E+2}
v_mov_b32 v{E2+2}, v{E+3}
v_cvt_pk_bf16_f32 v{E2+3}, v{Pv+2}, v{Pv+1}
ds_write_b128 v{vKD}, {R(E2,4)} offset:{2*KCP}
v_mov_b32 v{O2}, v{O+1}
v_mov_b32 v{O2+1}, v{O+2}
v_mov_b32 v{O2+2}, v{O+3}
v_cvt_pk_bf16_f32 v{O2+3}, v{Pv+1}, v{Pv}
ds_write_b128 v{vKD}, {R(O2,4)} offset:{3*KCP}
s_waitcnt lgkmcnt(4)
v_add_f32 v20, v20, v{vD+9}
v_add_f32 v21, v21, v{vD+13}
v_mul_f32 v20, v20, v{vC2}
v_mul_f32 v21, v21, v{vC2}
v_cvt_pk_bf16_f32 v20, v20, v21
""")
    for sg in range(4):
        a(f"ds_write_b16 v{vAC}, v20 offset:{sg*(KCP-2)+16}")
        a(f"ds_write_b16_d16_hi v{vAC}, v20 offset:{sg*(KCP-2)}")
    a(f"ds_write_b32 v{vCF}, v{vONE} offset:8")
    stamp(a, opt, 5)
    SD = Stream(a)
    F = {16 + 32 * s: Frag("F", 16 + 32 * s, dF + 4 * s) for s in range(16)}
    for k in range(opt.pre):
        SD.load(F[16 + 32 * k] if opt.blk else F[16 + 32 * (k // 2) + 256 * (k % 2)])
    a(f"s_setprio {dprio(opt, 0)}")
    if opt.alow: a(f"s_cmp_ge_u32 s45, 2\ns_cbranch_scc1 L_dl\ns_setprio {dprio(opt, 0) - 1}\nL_dl:")
    wait_flags(a, [(18, 16)] if opt.defer else [(18, 16), (19, 12)], "d")
    SD.done = SD.lds_n
    stamp(a, opt, 7, True)
    emit_dense(a, opt, SD, F)
    a("s_branch L_fin")
    a.label("L_xL")
    a(f"""
ds_write_addtid_b32 v{vD+9} offset:2048
v_mov_b32 v20, s61
s_nop 2
ds_write_b128 v{vPW0}, {R(vD+4,4)} offset:512
ds_write_addtid_b32 v{vD+13} offset:2304
ds_write_b32 v{vCF}, v{vONE} offset:4
s_mov_b32 m0, s61
""")
    if opt.stamps == 1: stamp(a, opt, 13)
    wait_flags(a, [(21, 0)], "pxl")
    stamp(a, opt, 4)
    n0, n1 = vD + 8, vD + 12
    a(f"""
ds_read_addtid_b32 v24 offset:2048
ds_read_addtid_b32 v25 offset:2304
ds_read_addtid_b32 v26 offset:2560
ds_read_b128 v[32:35], v20 offset:2032
ds_read_b128 v[36:39], v20 offset:{2032+STGW}
s_mov_b32 s8, -2
s_waitcnt lgkmcnt(2)
v_add_f32 v24, v24, v{n0}
v_add_f32 v25, v25, v{n1}
v_add_f32 v26, v26, v{n0+2}
v_mul_f32 v24, v24, v{vC2}
v_mul_f32 v25, v25, v{vC2}
v_mul_f32 v26, v26, v{vC2}
v_cvt_pk_bf16_f32 v40, v24, v25
v_mov_b32_dpp v42, v24 quad_perm:[0,0,0,0] row_mask:0x4 bank_mask:0xf
""")
    for sg in range(4):
        a(f"ds_write_b16_d16_hi v{vAC}, v40 offset:{sg*(KCP-2)}")
    a(f"""
s_waitcnt lgkmcnt(4)
v_mov_b32_dpp v42, v26 quad_perm:[0,1,2,3] row_mask:0x2 bank_mask:0xf
v_add_f32 v33, v33, v37
v_pk_add_f32 v[34:35], v[34:35], v[38:39]
v_mul_f32 v33, v33, v{vC2}
v_pk_mul_f32 v[34:35], v[34:35], {R(vC2,2)} op_sel_hi:[1,0]
s_mov_b32 exec_lo, s8
s_mov_b32 exec_hi, s8
""")
    for sg in range(4):
        a(f"ds_write_b16 v{vAC}, v40 offset:{sg*(KCP-2)+16}")
    a(f"""
s_mov_b64 exec, -1
v_mov_b32_dpp v42, v33 quad_perm:[0,1,2,3] row_mask:0x8 bank_mask:0x1
v_mov_b32_dpp v42, v34 quad_perm:[0,1,2,3] row_mask:0x8 bank_mask:0x2
v_mov_b32_dpp v42, v35 quad_perm:[0,1,2,3] row_mask:0x1 bank_mask:0xf
v_subrev_u32 v19, 4096, v{vTA}
v_cvt_pk_bf16_f32 v42, v42, v42
""")
    for sg in range(4):
        a(f"ds_write_b16 v{vAM}, v42 offset:{sg*(KCP-2)}")
    a(f"ds_write_b32 v{vCF}, v{vONE} offset:12")
    stamp(a, opt, 5)
    SL = Stream(a)
    LK = level_frags()
    for k in LORDER[:opt.prel]:
        SL.load(LK[k])
    a(f"s_setprio {int(str(opt.llist)[0]) if opt.llist else min(dprio(opt, 0) + opt.lup, 3)}")
    if opt.alow: a(f"s_cmp_ge_u32 s45, 2\ns_cbranch_scc1 L_ll\ns_setprio {dprio(opt, 0) - 1}\nL_ll:")
    wait_flags(a, [(16, 16), (17, 8)], "l")
    SL.done = SL.lds_n
    stamp(a, opt, 7, True)
    for j, wdt in enumerate((3, 5, 7, 9)):
        SL.lds(f"ds_read_b128 {R(BOX[wdt],4)}, v19 offset:{1024*j}")
    if not opt.nol: emit_level(a, opt, SL, LK)
    a("s_branch L_fin")
    NM = opt.nm; TP = 8 // NM; S2 = NM == 2 or opt.st2
    mT, mIN, mSO = 88, 96, 104
    a(f"""
L_mem0:
s_sub_u32 s45, s44, 12
v_mov_b32 v8, 0
v_mov_b32 v9, 0
v_mov_b32 v10, 0
v_mov_b32 v11, 0
v_lshlrev_b32 v17, 4, v1
ds_write_b128 v17, v[8:11] offset:{FL}
v_min_u32 v5, 5, v1
v_mul_u32_u24 v16, {CHB}, v5
ds_write_b32 v16, v8 offset:{OFLO}
ds_write_b32 v16, v8 offset:{OFLO + 256}
s_mul_i32 s8, s45, {6*KCP}
s_add_u32 s8, s8, {KA}
v_add_u32 v7, s8, v17
""")
    for k in range(6): a(f"ds_write_b128 v7, v[8:11] offset:{KCP*k + 1024}")
    a(f"""
v_lshrrev_b32 v7, 2, v1
v_min_u32 v7, 5, v7
v_mul_u32_u24 v7, {KCP}, v7
v_and_b32 v6, 48, v17
v_add3_u32 v7, v7, v6, s8
ds_write_b128 v7, v[8:11]
v_lshrrev_b32 v7, 5, v1
s_lshl_b32 s8, s45, 1
v_add_u32 v7, s8, v7
v_min_u32 v7, 5, v7
v_mul_u32_u24 v7, {UCH}, v7
v_and_b32 v6, 31, v1
v_lshl_add_u32 v6, v6, 4, v7
v_add_u32 v6, {UB}, v6
ds_write_b128 v6, v[8:11]
s_getpc_b64 s[52:53]
L_pc2:
s_add_u32 s52, s52, L_table-L_pc2
s_addc_u32 s53, s53, 0
s_lshl_b32 s8, s45, 11
v_add_u32 v17, s8, v17
s_add_u32 s8, s8, {BOXL}
s_mov_b32 m0, s8
v_lshlrev_b32 v6, 7, v5
{"global_load_lds_dwordx4 v17, s[52:53]" if opt.tearly else ""}
{"global_load_lds_dwordx4 v17, s[52:53] offset:1024" if opt.tearly else ""}
v_and_b32 v4, 15, v1
v_lshrrev_b32 v15, 4, v1
""")
    ts = 1 if opt.tint else TP
    tj = NM if opt.tint else 1
    a(f"""
s_lshl_b32 s47, s5, 1
s_mul_i32 s9, s45, {ts*256*1152}
s_add_u32 s9, s9, s47
v_mul_u32_u24 v19, {4*1152}, v1
s_add_u32 s48, s48, s47
s_mov_b32 s34, {2048*2304}
s_mov_b32 s35, 0x00020000
s_mov_b32 s50, 0x05040100
s_mov_b32 s51, 0x07060302
s_mov_b32 s36, 0x40000
v_lshl_add_u32 v4, v4, 2, v15
v_mul_u32_u24 v18, {4*2304}, v4
s_mul_i32 s8, s45, {ts*512}
s_add_u32 s8, s8, {UB + 512}
v_lshl_add_u32 v3, v1, 3, s8
v_add_u32 v18, s48, v18
s_mul_i32 s8, s45, {ts*4}
s_add_u32 s8, s8, {FL + 16}
v_lshl_add_u32 v14, v5, 7, s8
v_mov_b32 v2, 1
s_and_b32 s8, s45, {1 if S2 else 3}
s_mul_i32 s57, s8, {4608 if S2 else 2304}
s_mov_b32 s56, 1
s_lshr_b32 s8, s8, {0 if S2 else 1}
s_lshl_b32 s8, s8, 8
s_add_u32 s8, s8, {OUTO}
v_lshl_add_u32 v4, v1, 2, s8
""")
    if opt.mord:
        for k in range(NM - 1):
            a(f"s_cmp_eq_u32 s45, {k}\ns_cbranch_scc1 L_mp\ns_setprio {2-k}")
        a.label("L_mp")
    a(f"""
s_waitcnt lgkmcnt(0)
s_mov_b32 s18, {2048*1152}
s_mov_b32 s19, 0x00020000
""")
    if opt.stamps == 1: stamp(a, opt, 14)
    a("s_barrier")
    def chainwait(tag):
        a(f"""
v_mov_b32 v6, {FL + 96 + 128*opt.trig}
L_chw{tag}:
ds_read_b32 v7, v6
s_waitcnt lgkmcnt(0)
s_sub_u32 s36, s36, 1
s_cbranch_scc1 L_chok{tag}
v_cmp_eq_u32 vcc, 0, v7
s_cbranch_vccz L_chok{tag}
s_sleep 2
s_branch L_chw{tag}
L_chok{tag}:
""")
    if opt.chain and NM == 4:
        a(f"s_cmp_lt_u32 s45, {opt.chain}\ns_cbranch_scc1 L_chok")
        chainwait("")
    if opt.go:
        a(f"""
s_mov_b64 exec, 63
s_waitcnt vmcnt(0)
ds_add_u32 v6, v2 offset:{FL + 100}
s_mov_b64 exec, -1
""")
        chainwait("g")
    stamp(a, opt, 1)
    if not opt.tearly: a("global_load_lds_dwordx4 v17, s[52:53]\nglobal_load_lds_dwordx4 v17, s[52:53] offset:1024")
    for j in range(TP):
        if j == 1 and not opt.go:
            a(f"""
s_mov_b64 exec, 63
s_waitcnt vmcnt(4)
ds_add_u32 v6, v2 offset:{FL + 100}
s_mov_b64 exec, -1
""")
        if opt.chain and NM == 2 and j == opt.chain: chainwait("")
        for e in range(4):
            a(f"buffer_load_dwordx3 {R(mUD+16*j+4*e,3)}, v19, s[16:19], s9 offen offset:{e*1152}" + (" nt" if opt.nt else ""))
        if j < TP - 1: a(f"s_add_u32 s9, s9, {tj*256*1152}")
    stamp(a, opt, 2)
    a("s_setprio 3")
    for j in range(TP):
        a(f"s_waitcnt vmcnt({4*(TP-1-j)})")
        q = lambda e, m: mUD + 16 * j + 4 * e + m
        for m in range(3):
            for hi in range(2):
                t = mT + 2 * ((2 * m + hi) % 4)
                a(f"v_perm_b32 v{t}, v{q(1,m)}, v{q(0,m)}, s{50+hi}")
                a(f"v_perm_b32 v{t+1}, v{q(3,m)}, v{q(2,m)}, s{50+hi}")
                a(f"ds_write_b64 v3, {R(t,2)} offset:{(2*m+hi)*UCH + 512*tj*j}")
        a(f"ds_write_b32 v14, v2 offset:{4*tj*j}")
        stamp(a, opt, 6 if j == 0 else (11 if j == TP - 1 else (4 if j == 1 else 12)))
    if not S2: a("s_bitcmp1_b32 s45, 0\ns_cselect_b32 s50, s51, s50")
    if NM == 4 and S2: a("s_cmp_lt_u32 s45, 2\ns_cbranch_scc1 L_fin")
    a(f"""
L_mpoll:
ds_read_b32 v8, v16 offset:{OFLO}
s_waitcnt lgkmcnt(0)
v_cmp_gt_u32 vcc, s56, v8
s_cbranch_vccz L_mgo
s_sleep {opt.msleep}
s_sub_u32 s36, s36, 1
s_cbranch_scc0 L_mpoll
L_mgo:
""")
    for c in range(6):
        a(f"ds_read_b32 v{mIN+c}, v4 offset:{CHB*c}")
    a(f"v_add_u32 v4, 512, v4")
    for m in range(3):
        a(f"s_waitcnt lgkmcnt({4-2*m})")
        a(f"v_perm_b32 v{mSO+m}, v{mIN+2*m+1}, v{mIN+2*m}, s50")
    a(f"buffer_store_dwordx3 {R(mSO,3)}, v18, s[32:35], s57 offen")
    if S2:
        for m in range(3): a(f"v_perm_b32 v{mSO+4+m}, v{mIN+2*m+1}, v{mIN+2*m}, s51")
        a(f"buffer_store_dwordx3 {R(mSO+4,3)}, v18, s[32:35], s57 offen offset:2304")
    a(f"s_add_u32 s57, s57, {256*2304}\ns_add_u32 s56, s56, 1")
    if opt.stamps:
        a(f"s_cmp_lg_u32 s56, 2\ns_cbranch_scc1 L_ms")
        stamp(a, opt, 10)
        a.label(f"L_ms")
    a(f"s_cmp_le_u32 s56, 8\ns_cbranch_scc1 L_mpoll")
    a.label("L_fin")
    if opt.amp: stamp(a, opt, 8)
    if opt.stamps and not opt.amp:
        stamp(a, opt, 8)
        a("s_waitcnt vmcnt(0)")
        stamp(a, opt, 9)
        a(f"""
s_load_dwordx2 s[8:9], s[0:1], 128
s_waitcnt lgkmcnt(0)
s_lshl_b32 s10, s2, 4
s_add_u32 s10, s10, s44
s_lshl_b32 s10, s10, 7
s_add_u32 s10, s10, {1<<20}
v_mov_b32 v20, s10
""")
        for k in range(1, NST):
            a(f"s_sub_u32 s11, s{64+2*k}, s64\nv_mov_b32 v21, s11\nglobal_store_dword v20, v21, s[8:9] offset:{4*k}")
        a("s_memrealtime s[10:11]\ns_waitcnt lgkmcnt(0)\nv_mov_b32 v21, s10\nglobal_store_dword v20, v21, s[8:9] offset:0")
        a("v_mov_b32 v21, s100\nglobal_store_dword v20, v21, s[8:9] offset:80")
        a("s_getreg_b32 s11, hwreg(HW_REG_HW_ID)\nv_mov_b32 v21, s11\nglobal_store_dword v20, v21, s[8:9] offset:84")
        a("s_getreg_b32 s11, hwreg(HW_REG_XCC_ID)\nv_mov_b32 v21, s11\nglobal_store_dword v20, v21, s[8:9] offset:88")
        a("v_mov_b32 v21, s64\nglobal_store_dword v20, v21, s[8:9] offset:92")
    if opt.amp:
        ampx = ("s_add_u32 s10, s82, %d" % opt.amp) if opt.amp > 100 else ("s_sub_u32 s10, s%d, s64\ns_lshl_b32 s10, s10, 2\ns_add_u32 s10, s10, s82" % (64 + 2 * opt.amp))
        a(f"""
s_waitcnt vmcnt(0)
s_memtime s[82:83]
s_waitcnt lgkmcnt(0)
s_cmp_lg_u32 s2, {opt.ampg}
s_cbranch_scc1 L_end
s_cmp_lg_u32 s44, {opt.ampw}
s_cbranch_scc1 L_end
{ampx}
L_amp:
s_memtime s[12:13]
s_waitcnt lgkmcnt(0)
s_sub_u32 s11, s12, s10
s_cmp_lt_i32 s11, 0
s_cbranch_scc1 L_amp
""")
    a.label("L_end")
    a("s_endpgm")
    for st in STUBS: a(st)
    a.label("L_codeend")
    out += a.text()
    out += ".p2align 7\n.type L_table,@object\nL_table:\n"
    for row in lane_table():
        out += ".long " + ", ".join(f"{x:#x}" for x in row) + "\n"
    out += ".size L_table, 8192\n"
    out += f""".section .rodata,"a"
.p2align 6
.amdhsa_kernel {NAME}_kernel
  .amdhsa_next_free_vgpr 128
  .amdhsa_next_free_sgpr 102
  .amdhsa_accum_offset 128
  .amdhsa_group_segment_fixed_size 0
  .amdhsa_kernarg_size 136
  .amdhsa_user_sgpr_count 2
  .amdhsa_user_sgpr_kernarg_segment_ptr 1
  .amdhsa_system_sgpr_workgroup_id_x 1
.end_amdhsa_kernel
"""
    return out

if __name__ == "__main__":
    p = argparse.ArgumentParser()
    p.add_argument("-o", default="cdna_kernels/" + NAME + ".s")
    for k, v in dict(stamps=0, la=6, batch=8, pre=15, prel=1, codepf=0, chain=0, trig=0, rhi=1, sidem=1, blk=8, dry=0, bpos=0, tearly=1, go=0, nm=4, tint=1, st2=1, plist=33221100, llist=3221100, mold=1, bprio=0, wb=0, wbg=8, amp=0, ampg=0, ampw=15, k4=3, alow=0, e2=1, gate=0, nt=1, kmin=0, upf=0, nol=0, msleep=1, quarter=1,
                     ptop=2, pstep=3, lead=-1, xprio=3, mord=0, lateb=1, defer=1, ktop=3, klead=0, thr=0, lup=0).items():
        p.add_argument("--" + k, type=int, default=v)
    opt = p.parse_args()
    open(opt.o, "w").write(generate(opt))
```

```python
import sys, argparse

NAME = "concat_heads__ssm_conv_s4d__ssm_conv_s4d__prompt"

PITCH = 288
STGW = 4896
CHB = 10752
OUTO, OFLO = 6144, 10240
FL = 6 * CHB
KA = FL + 1024
KCP = 2112
KCH = 4 * KCP
UB = KA + 6 * KCH
UCH = 4608
BOXL = UB + 6 * UCH
TABL = BOXL + 4096
LDS_TOTAL = TABL + 4096
ZD, ZX = 543, 1615
Z2 = [687 + 64 * m for m in range(4)]
Z3 = [991, 1071]
DUMMY = 1040

vPA, vCF, vONE, vOW = 0, 1, 2, 3
vU, vKF, vKT, vSR, vSL0, vSL1, vPW0 = 4, 5, 6, 7, 8, 9, 10
vTA = 15
vKD, vRD = 11, 12
vAC, vAM = 14, 11
BOX = {3: 112, 5: 116, 7: 120, 9: 124}
vLF, vRF, vD = 20, 52, 68
vP = 36
vDT, vDSK, vC2 = 84, 85, 86
Z_, W_, ZZ, X_, Y_ = 88, 90, 92, 94, 96
T_ = [98, 99, 100, 101]
dF, dACC, dG, dPT, dOT, dFLG, dCN, dUT = 20, 84, 96, 12, 16, 18, 8, 10
dTH, dTT = 6, 19
lT2, lT3, lFX, lF5, lACC, lW, lG, lUT = 20, 44, 60, 64, 68, 92, 104, 7
mUD, mT, mIN, mSO = 20, 52, 60, 72
MF = "v_mfma_f32_16x16x32_bf16"

class Asm:
    def __init__(self): self.lines = []
    def __call__(self, s):
        for l in s.strip("\n").split("\n"):
            if not l.strip(): continue
            self.lines.append(l if l.rstrip().endswith(":") and not l.startswith(" ") else "    " + l.strip())
    def label(self, l): self.lines.append(l + ":")
    def text(self): return "\n".join(self.lines) + "\n"

def R(a, n=1): return f"v{a}" if n == 1 else f"v[{a}:{a+n-1}]"

def cmul(a, dst, x, m, conj=False):
    if not conj:
        a(f"v_pk_mul_f32 {R(dst,2)}, {R(x,2)}, {R(m,2)} op_sel:[0,0] op_sel_hi:[0,1]")
        a(f"v_pk_fma_f32 {R(dst,2)}, {R(x,2)}, {R(m,2)}, {R(dst,2)} op_sel:[1,1,0] op_sel_hi:[1,0,1] neg_lo:[0,1,0]")
    else:
        a(f"v_pk_mul_f32 {R(dst,2)}, {R(x,2)}, {R(m,2)} op_sel:[0,0] op_sel_hi:[0,1] neg_hi:[0,1]")
        a(f"v_pk_fma_f32 {R(dst,2)}, {R(x,2)}, {R(m,2)}, {R(dst,2)} op_sel:[1,1,0] op_sel_hi:[1,0,1]")

NST = 18
def stamp(a, opt, idx, wait=False):
    if opt.stamps and idx is not None:
        a(f"s_memtime s[{64+2*idx}:{65+2*idx}]")
        if wait: a("s_waitcnt lgkmcnt(0)")

class Frag:
    def __init__(self, kind, key, reg=None):
        self.kind, self.key, self.reg = kind, key, reg
        self.first = None; self.last = None; self.issued = False; self.seq = -1

def frag_reads(f):
    k = f.key
    if f.kind == "G": return [("ds_read_b128", f.reg, 4, vU, 512 + 2 * k)]
    if f.kind in ("F", "FX"):
        o = 2 * (ZD - 3 - k) if f.kind == "F" else 2 * (ZX - 3 - 1040)
        return [("ds_read_b64", f.reg, 2, vKF, o), ("ds_read_b64", f.reg + 2, 2, vKF, o + 8)]
    if f.kind == "T2":
        d, h = k
        return [("ds_read_b64", f.reg + 2 * j, 2, vKT, 2 * (Z2[2 * h + j] - 3 - 16 * d)) for j in range(2)]
    if f.kind == "T3":
        return [("ds_read_b64", f.reg + 2 * j, 2, vKT, 2 * (Z3[j] - 3 - 16 * k)) for j in range(2)]
    raise ValueError

class Stream:
    def __init__(self, a):
        self.a = a; self.n = 0; self.lds_n = 0; self.done = 0
    def ins(self, s, w=1): self.a(s); self.n += w
    def lds(self, s): self.ins(s); self.lds_n += 1; return self.lds_n
    def wait(self, seq):
        if seq > self.done:
            k = min(self.lds_n - seq, 15)
            self.ins(f"s_waitcnt lgkmcnt({k})"); self.done = self.lds_n - k
    def until(self, n):
        if self.n < n: self.ins(f"s_nop {n - self.n - 1}", n - self.n)
    def load(self, f):
        for (mn, d, n, ar, off) in frag_reads(f):
            f.seq = self.lds(f"{mn} {R(d,n)}, v{ar} offset:{off}")
        f.issued = True

STUBS = []
def wait_flags(a, reads, tag):
    rd = "\n".join(f"ds_read_b32 v{t}, v{vCF} offset:{o}" for t, o in reads)
    comb = "" if len(reads) == 1 else f"v_and_b32 v{reads[0][0]}, v{reads[0][0]}, v{reads[1][0]}\n"
    a.label(f"L_w_{tag}")
    a(f"{rd}\ns_waitcnt lgkmcnt(0)\n{comb}v_cmp_eq_u32 vcc, 0, v{reads[0][0]}\ns_cbranch_vccnz L_ws_{tag}")
    a.label(f"L_wd_{tag}")
    STUBS.append(f"L_ws_{tag}:\ns_sleep 1\ns_sub_u32 s34, s34, 1\ns_cbranch_scc0 L_w_{tag}\ns_branch L_wd_{tag}")

def flag_check(a, S, seq, tmp, off, tag, extra=""):
    S.wait(seq)
    S.ins(f"v_cmp_eq_u32 vcc, 0, v{tmp}")
    S.ins(f"s_cbranch_vccnz L_sp_{tag}")
    a.label(f"L_ok_{tag}")
    STUBS.append(f"""L_sp_{tag}:
s_sleep 1
ds_read_b32 v{tmp}, v{vCF} offset:{off}
{extra}s_waitcnt lgkmcnt(0)
s_sub_u32 s34, s34, 1
s_cbranch_scc1 L_ok_{tag}
v_cmp_eq_u32 vcc, 0, v{tmp}
s_cbranch_vccnz L_sp_{tag}
s_branch L_ok_{tag}""")

def cnt_check(a, S, seq, tmp, rd, val, tag, extra=""):
    S.wait(seq)
    S.ins(f"v_cmp_gt_u32 vcc, {val}, v{tmp}")
    S.ins(f"s_cbranch_vccnz L_sp_{tag}")
    a.label(f"L_ok_{tag}")
    STUBS.append(f"""L_sp_{tag}:
s_sleep 1
{rd}
{extra}s_waitcnt lgkmcnt(0)
s_sub_u32 s34, s34, 1
s_cbranch_scc1 L_ok_{tag}
v_cmp_gt_u32 vcc, {val}, v{tmp}
s_cbranch_vccnz L_sp_{tag}
s_branch L_ok_{tag}""")

def early_switch(a, S, opt, tag, prio, t1, t2):
    S.ins("s_cmp_ge_u32 s45, 2")
    S.ins(f"s_cbranch_scc1 L_es_{tag}")
    a(f"""ds_read_b32 v{t1}, v{vCF} offset:{2*128+12}
ds_read_b32 v{t2}, v{vCF} offset:{4*128+12}
s_waitcnt lgkmcnt(0)
v_and_b32 v{t1}, v{t1}, v{t2}
v_cmp_eq_u32 vcc, 0, v{t1}
s_setprio {prio}
s_cbranch_vccz L_es_{tag}
s_setprio 0""")
    a.label(f"L_es_{tag}")

def dprio(opt, t):
    if opt.plist: return int(str(opt.plist)[min(t, 7)])
    return max(opt.ptop - t // opt.pstep, 0)

def emit_dense(a, opt, S, F):
    ops = []
    for tau in range(8):
        gs = [Frag("G", 256 * tau - 16 - 32 * s) for s in range(8)]
        for s in range(8): gs[s].tile = tau if s == 0 else None
        lag = opt.blk
        for s in range(8 + lag):
            if s < 8: ops.append((tau, F[16 + 32 * s], gs[s], tau == 0 and s == 0))
            if s == 7 and lag: ops.append(("end", tau))
            if tau < 7 and 0 <= s - lag < 8: ops.append((tau + 1, F[272 + 32 * (s - lag)], gs[s - lag], s == lag))
            if s == 7 and not lag: ops.append(("end", tau))
    gl = []
    for i, op in enumerate(ops):
        if op[0] == "end": continue
        for g in (op[1], op[2]):
            if g.first is None:
                g.first = i
                if not g.issued: gl.append(g)
            g.last = i
    endpos = {op[1]: i for i, op in enumerate(ops) if op[0] == "end"}
    tfirst = {g.tile: g.first for g in gl if g.kind == "G" and g.tile is not None}
    ring = [-1] * 8
    acc_last = {}
    side = []
    pinfo = {}
    PRD = f"ds_read_addtid_b32 v{dFLG} offset:{OFLO + 256}"
    def ptxt(t): return f"ds_read_b128 {R(dPT,4)}, v{vPA} offset:{(t-2)*1024}"
    def queue_out(t):
        ac = dACC + 4 * (t % 3)
        rn = acc_last[t] + 8
        if t >= 2:
            if not opt.nol:
                side.append((0, lambda: cnt_check(a, S, pinfo[t], dFLG, PRD, t, f"p{t}", ptxt(t) + "\n")))
            side.append((rn, lambda: (S.ins(f"v_add_f32 v{dPT}, v{dPT}, v{ac}"), S.ins(f"v_add_f32 v{dPT+1}, v{dPT+1}, v{ac+1}"))))
            side.append((rn, lambda: (S.ins(f"v_add_f32 v{dPT+2}, v{dPT+2}, v{ac+2}"), S.ins(f"v_add_f32 v{dPT+3}, v{dPT+3}, v{ac+3}"))))
            src = dPT
        else:
            src = ac
        side.append((rn, lambda: (S.ins(f"v_cvt_pk_bf16_f32 v{dOT}, v{src}, v{src+1}"), S.ins(f"v_cvt_pk_bf16_f32 v{dOT+1}, v{src+2}, v{src+3}"))))
        side.append((rn, lambda: (S.lds(f"ds_write_addtid_b32 v{dOT} offset:{OUTO + 512*t}"), S.ins(f"v_mov_b32 v{dCN}, {t+1}"))))
        side.append((rn, lambda: S.lds(f"ds_write_addtid_b32 v{dOT+1} offset:{OUTO + 512*t + 256}")))
        def fin():
            S.lds(f"ds_write_addtid_b32 v{dCN} offset:{OFLO}")
            if opt.stamps == 2:
                stamp(a, opt, 10 + t, True); S.done = S.lds_n
        side.append((rn, fin))
    pend = list(gl)
    useq = {}
    thr = {}
    lateF = []
    for i, op in enumerate(ops):
        if lateF and i >= opt.kli:
            while side:
                rn, fn = side.pop(0); S.until(rn); fn()
            flag_check(a, S, klseq, dFLG, 12, "kl"); S.load(lateF.pop())
        if opt.defer and i == max(opt.kli - 4, 2):
            klseq = S.lds(f"ds_read_b32 v{dFLG}, v{vCF} offset:12")
        for t in range(1, 8):
            if t not in useq and i + opt.la + 3 >= tfirst[t]:
                useq[t] = S.lds(f"ds_read_b32 v{dUT}, v{vCF} offset:{16 + 4*t}")
        while pend and pend[0].first <= i + opt.la:
            if pend[0].kind == "F":
                if opt.defer and pend[0].key == 496:
                    if i < opt.kli:
                        lateF.append(pend.pop(0)); continue
                    flag_check(a, S, klseq, dFLG, 12, "kl")
                S.load(pend.pop(0)); continue
            slot = next((s for s in range(8) if ring[s] < i), None)
            if slot is None:
                assert pend[0].first > i
                break
            g = pend.pop(0)
            if g.tile: flag_check(a, S, useq[g.tile], dUT, 16 + 4 * g.tile, f"du{g.tile}")
            ring[slot] = g.last; g.reg = dG + 4 * slot; S.load(g)
        for t in range(2, 8):
            if t not in pinfo and i >= endpos[t] - 3:
                while side:
                    rn, fn = side.pop(0); S.until(rn); fn()
                S.lds(PRD)
                pinfo[t] = S.lds(ptxt(t))
        if opt.thr:
            for t in range(opt.thr, 8):
                if t not in thr and i + 5 >= endpos[t - 1]:
                    thr[t] = S.lds(f"ds_read_b32 v{dTT}, v{dTH}")
        if op[0] == "end":
            t1 = op[1] + 1
            if opt.thr and opt.thr <= t1 < 8:
                S.wait(thr[t1])
                S.ins(f"v_cmp_gt_u32 vcc, {t1 - opt.thr + 1}, v{dTT}")
                S.ins(f"s_cbranch_vccnz L_th_{t1}")
                a.label(f"L_tk_{t1}")
                STUBS.append(f"""L_th_{t1}:
s_sleep 1
ds_read_b32 v{dTT}, v{dTH}
s_waitcnt lgkmcnt(0)
s_sub_u32 s34, s34, 1
s_cbranch_scc1 L_tk_{t1}
v_cmp_gt_u32 vcc, {t1 - opt.thr + 1}, v{dTT}
s_cbranch_vccnz L_th_{t1}
s_branch L_tk_{t1}""")
            queue_out(op[1])
            if opt.stag and op[1] < 7 and dprio(opt, op[1] + 1) > 0:
                post = lambda t1=op[1] + 1: early_switch(a, S, opt, f"d{t1}", dprio(opt, t1), 19, 9)
            else: post = lambda: None
            if opt.clist and op[1] < 7:
                t1 = op[1] + 1
                pa, pc = dprio(opt, t1), int(str(opt.clist)[t1])
                ca, cc = pa != dprio(opt, t1 - 1), pc != int(str(opt.clist)[t1 - 1])
                if ca and cc and pa == pc: S.ins(f"s_setprio {pa}")
                elif ca or cc:
                    assert not (ca and cc)
                    S.ins("s_cmp_ge_u32 s45, 4")
                    S.ins(f"s_cbranch_scc{1 if ca else 0} L_cp{t1}")
                    S.ins(f"s_setprio {pa if ca else pc}", 0)
                    a.label(f"L_cp{t1}")
            elif op[1] < 7 and (dprio(opt, op[1] + 1) != dprio(opt, op[1]) or (opt.alow and op[1] == 1)): S.ins(f"s_setprio {dprio(opt, op[1] + 1)}")
            post()
            continue
        t, f, g, first = op
        S.wait(max(f.seq, g.seq))
        ac = dACC + 4 * (t % 3)
        S.ins(f"{MF} {R(ac,4)}, {R(f.reg,4)}, {R(g.reg,4)}, {'0' if first else R(ac,4)}")
        acc_last[t] = S.n
        isq0 = f.key < 272
        if opt.sidem == 0 or isq0 or opt.blk:
            if side and side[0][0] <= S.n: side.pop(0)[1]()
        if isq0 and t == 7 and side and side[0][0] <= S.n: side.pop(0)[1]()
        if opt.sidem == 0 and t == 7 and not isq0 and side and side[0][0] <= S.n: side.pop(0)[1]()
    while side:
        rn, fn = side.pop(0); S.until(rn); fn()

def level_frags():
    K = {}
    for d in (2, 3, 4):
        for h in (0, 1): K[("T2", d, h)] = Frag("T2", (d, h), lT2 + 4 * ((d - 2) * 2 + h))
    for d in (4, 5, 6): K[("T3", d)] = Frag("T3", d, lT3 + 4 * (d - 4))
    K[("T3", 7)] = Frag("T3", 7, lACC + 16)
    K["FX"] = Frag("FX", 0, lFX)
    K["F5"] = Frag("F", 528, lF5)
    return K
LORDER = ["FX", ("T2", 2, 0), ("T2", 3, 0), ("T2", 4, 0), ("T2", 2, 1), ("T2", 3, 1), ("T2", 4, 1), ("T3", 7), ("T3", 4), ("T3", 5), ("T3", 6)]

def emit_level(a, opt, S, K):
    acc = lambda t: lACC + 4 * (t - 2)
    inited = set(); acc_last = {}; vq = []; wr = {}; pubq = []
    def drain(k):
        while k > 0 and vq and vq[0][0] <= S.n:
            rn, txt, key = vq.pop(0); S.ins(txt); wr[key] = S.n + 2; k -= 1
    def force(key):
        while any(q[2] == key for q in vq):
            rn, txt, kk = vq.pop(0); S.until(rn); S.ins(txt); wr[kk] = S.n + 2
    def need(f):
        if not f.issued: S.load(f)
        S.wait(f.seq)
    def mf(d, A, B, c):
        S.ins(f"{MF} {R(d,4)}, {R(A,4)}, {R(B,4)}, {c}")
        n = S.n
        if pubq: pubflush()
        else: drain(1)
        return n
    def am(t, A, B):
        c = R(acc(t), 4) if t in inited else "0"
        inited.add(t)
        acc_last[t] = mf(acc(t), A, B, c)
    G0 = [Frag("G", 256 * b - 16, lG) for b in range(6)]
    GM = [Frag("G", 256 * b - 24, lG + 4) for b in range(6)]
    S.load(G0[0]); S.load(GM[0])
    lo = ["F5", "FX", ("T2", 2, 0), ("T2", 2, 1), ("T2", 3, 0), ("T2", 4, 0), ("T2", 3, 1), ("T2", 4, 1), ("T3", 7), ("T3", 4), ("T3", 5), ("T3", 6)] if opt.e2 else ["F5"] + LORDER
    lazy = [K[k] for k in lo if not K[k].issued]
    tsets = [[12, 16], [8, 56]]
    def publish(t):
        S.until(acc_last[t] + 8)
        S.lds(f"ds_write_b128 v{vPA}, {R(acc(t),4)} offset:{(t-2)*1024}")
        S.ins(f"v_mov_b32 v{vONE}, {t}")
        pubq.append(t)
    def pubflush():
        while pubq:
            t = pubq.pop(0)
            S.lds(f"ds_write_addtid_b32 v{vONE} offset:{OFLO + 256}")
            if opt.stamps == 2:
                stamp(a, opt, 10 + t, True); S.done = S.lds_n
    def uses(b, h, ds=None):
        if b < 0 or b > 5: return
        if h < 2: lst = [(b + d, K[("T2", d, h)]) for d in (ds or ((3, 4) if opt.e2 else (2, 3, 4))) if b + d <= 7]
        else: lst = [(b + d, K[("T3", d)]) for d in (7, 4, 5, 6) if b + d <= 7 and b <= 3]
        if lst: force((b, h))
        for t, f in lst:
            need(f); S.until(wr[(b, h)]); am(t, lW + 4 * h, f.reg)
    grp = 0; prevkey = None
    lp = lambda nb: int(str(opt.llist)[nb]) if opt.llist else min(dprio(opt, max(nb - opt.lead, 0)) + opt.lup, 3)
    for nb in range(7):
        b = nb - 1
        pairs = []
        if nb <= 5:
            g0, gm = G0[nb], GM[nb]
            pairs = [[(g0, 3), (g0, 5)], [(gm, 3), (gm, 5)]]
            if nb <= 3: pairs.append([(g0, 7), (gm, 9)])
        if nb > 0 and (lp(nb) != lp(nb - 1) or (opt.alow and nb == 2)): S.ins(f"s_setprio {lp(nb)}")
        if opt.stag and nb > 0 and lp(nb) > 0: early_switch(a, S, opt, f"l{nb}", lp(nb), 3, 6 if nb >= 2 else 7)
        for h in range(3):
            newv = []
            for _ in range(3):
                if lazy: S.load(lazy.pop(0))
            if h < len(pairs):
                tm = tsets[grp % 2]; grp += 1
                for q in list(vq):
                    if q[2] != prevkey: force(q[2])
                for j, (g, box) in enumerate(pairs[h]):
                    need(g)
                    n = mf(tm[j], g.reg, BOX[box], "0")
                    dst = lW + 4 * h + 2 * j
                    newv.append((n + 8, f"v_cvt_pk_bf16_f32 v{dst}, v{tm[j]}, v{tm[j]+1}", (nb, h)))
                    newv.append((n + 8, f"v_cvt_pk_bf16_f32 v{dst+1}, v{tm[j]+2}, v{tm[j]+3}", (nb, h)))
                if h == 0:
                    need(K["F5"]); am(nb + 2, K["F5"].reg, g0.reg)
                    if nb < 5: useq = S.lds(f"ds_read_b32 v{lUT}, v{vCF} offset:{16 + 4*(nb+1)}")
                if h == 1 and nb <= 3:
                    need(K["FX"]); am(nb + 4, K["FX"].reg, g0.reg)
                if h == len(pairs) - 1 and nb < 5:
                    flag_check(a, S, useq, lUT, 16 + 4 * (nb + 1), f"lu{nb+1}")
                    S.load(G0[nb + 1]); S.load(GM[nb + 1])
            if opt.e2:
                if h == 0 and b >= 0: uses(b, 1, (2,))
                uses(b, h)
                if h == 0 and b >= 0: publish(b + 2)
                if h == 2: uses(nb, 0, (2,))
            else:
                uses(b, h)
                if h == 2 and b >= 0: publish(b + 2)
            if newv:
                vq.extend(newv); prevkey = (nb, h)
    pubflush()

def kprio(a, opt, i):
    if opt.stag:
        p = int(str(opt.stag)[i])
        if i == 0 or p != int(str(opt.stag)[i - 1]):
            a(f"s_cmp_lt_u32 s45, 2\ns_cbranch_scc1 L_kp{i}\ns_setprio {p}\nL_kp{i}:")
        return
    p = max(opt.ktop - i, opt.kmin)
    if opt.klead:
        a(f"s_setprio {max(p,0)}\ns_cbranch_scc0 L_kp{i}\ns_setprio {min(max(p,0)+1,3)}\nL_kp{i}:")
    else:
        a(f"s_setprio {max(p,0)}")

def lane_table():
    rows = []
    misc = {0: ZD-511, 1: ZD-512, 2: ZD-513, 3: ZD-514, 16: Z3[1]-127, 32: ZX-1027, 33: ZX-1028, 34: Z2[3]-63, 48: ZD-509, 52: ZD-510}
    for l in range(64):
        r, g = l & 15, l >> 4
        t = []
        for wdt, lo in ((3, 11), (5, 6), (7, 5), (9, 4)):
            for w in range(4):
                d = 0
                for hf in range(2):
                    if r + lo <= 8 * g + 2 * w + hf <= r + lo + wdt - 1: d |= 0x3F80 << (16 * hf)
                t.append(d)
        kb = (3 - (r & 3)) * KCP - 8 * (r >> 2)
        sel = (l & 1) + 2 * (g >> 1)
        cm = 32 * (g & 1) + (r & 14)
        t += [32 * r + 16 * g, kb + 16 * g, kb + 8 * g, 1024 * (g >> 1) + 32 * r + 16 * (g & 1)]
        t += [16 * l, 1072 - 16 * l, 32 * l, 2 * ([655, 783, 976, 895][sel] - 8) - cm]
        t += [16 * l, 2 * misc.get(l, DUMMY), 2 * ([655, 783, 976, 895][sel] - 8) - cm, 2 * ([848, 719, 1008, 927][sel] - 8) - cm]
        t += [0, 0, 0, 0]
        rows.append([x & 0xFFFFFFFF for x in t])
    return [rows[l][4 * c:4 * c + 4] for c in range(8) for l in range(64)]

def pack64(vals, bits):
    c = 0
    for i, v in enumerate(vals): c |= v << (bits * i)
    return c & 0xffffffff, c >> 32

def generate(opt):
    a = Asm()
    hdr = open("cdna_kernels/" + NAME + ".s.ref").read().split("\n")
    top = [l for l in hdr if l.startswith(";") and "@launch" not in l and "Override launch" not in l and "grid=ceil" not in l]
    out = "\n".join(top) + "\n"
    out += f"; @launch grid=(200,1,1) block=({768 + 64 * opt.nm},1,1) lds={LDS_TOTAL}\n"
    out += f""".amdgcn_target "amdgcn-amd-amdhsa--gfx950"
.text
.globl {NAME}_kernel
.p2align 8
.type {NAME}_kernel,@function
{NAME}_kernel:
"""
    stamp(a, opt, 0)
    if opt.stamps: a("s_memrealtime s[100:101]")
    a(f"""
s_and_b32 s3, s2, 7
s_mul_i32 s3, s3, 25
s_lshr_b32 s4, s2, 3
s_add_u32 s3, s3, s4
s_cmp_ge_u32 s3, 99
s_cselect_b32 s6, 56, 0
s_load_dwordx16 s[16:31], s[0:1], s6
s_load_dwordx2 s[32:33], s[0:1], 112
""")
    if opt.codepf == 1:
        a(f"""
s_getpc_b64 s[52:53]
L_pc:
v_lshlrev_b32 v6, 7, v0
v_cmp_gt_u32 vcc, L_codeend-L_pc, v6
s_and_saveexec_b64 s[12:13], vcc
s_cbranch_execz L_nocpf
global_load_dword v102, v6, s[52:53]
L_nocpf:
s_mov_b64 exec, s[12:13]
s_cmp_ge_u32 s3, 99
""")
    a(f"""
v_lshrrev_b32 v2, 6, v0
s_cselect_b32 s7, 9, 0
s_cselect_b32 s48, 1152, 0
v_readfirstlane_b32 s44, v2
s_cmp_ge_u32 s2, 200
s_cbranch_scc1 L_end
s_cmp_ge_u32 s3, 198
s_cbranch_scc1 L_end
v_and_b32 v1, 63, v0
s_add_u32 s44, s44, {16 - opt.nm}
s_and_b32 s44, s44, 15
{"s_cmp_ge_u32 s44, 14" if opt.nm == 2 else ""}
{"s_cselect_b32 s8, 2, 0" if opt.nm == 2 else ""}
{"s_sub_u32 s44, s44, s8" if opt.nm == 2 else ""}
s_mul_i32 s4, s3, 5958
s_lshr_b32 s4, s4, 16
s_mul_i32 s5, s4, 11
s_sub_u32 s59, s3, s5
s_mul_i32 s5, s59, 6
s_min_u32 s5, s5, 58
s_sub_u32 s4, s4, s7
s_lshl_b32 s4, s4, 6
s_add_u32 s5, s5, s4
s_setprio 3
""")
    if opt.gate:
        a(f"""
v_mov_b32 v8, 0
v_mov_b32 v9, 0
v_mov_b32 v10, 0
v_mov_b32 v11, 0
v_lshlrev_b32 v7, 4, v1
ds_write_b128 v7, v[8:11] offset:{FL}
s_waitcnt lgkmcnt(0)
s_barrier
""")
    a(f"""
s_cmp_ge_u32 s44, 12
{"s_cbranch_scc0 L_comp" if opt.dry else "s_cbranch_scc1 L_mem0"}
""")
    if opt.dry:
        a("""
s_mov_b64 exec, 0
s_setprio 0
s_mov_b32 s62, 0
s_mov_b32 s45, 0
s_cmp_eq_u32 s44, 13
s_cbranch_scc1 L_proL
s_cmp_eq_u32 s44, 14
s_cbranch_scc1 L_dry2
s_cmp_eq_u32 s44, 15
s_cbranch_scc1 L_dry3
s_branch L_dry0
L_comp:
""")
    a(f"""
s_sub_u32 s45, s44, 6
s_cmp_ge_u32 s44, 6
s_cselect_b32 s45, s45, s44
s_cselect_b32 s62, 1, 0
s_add_u32 s46, s5, s45
s_lshl_b32 s8, s46, 8
v_lshl_add_u32 v20, v1, 2, s8
s_lshl_b32 s8, s46, 1
s_and_b32 s8, s8, -4
s_waitcnt lgkmcnt(0)
global_load_dword v{vP}, v20, s[18:19]
global_load_dword v{vP+1}, v20, s[20:21]
global_load_dword v{vP+2}, v20, s[22:23]
global_load_dword v{vP+3}, v20, s[24:25]
s_load_dword s40, s[26:27], s8
s_load_dword s41, s[28:29], s8
""")
    if opt.codepf == 3:
        a(("""
s_cmp_lt_u32 s44, 10
s_cbranch_scc1 L_nocpf
s_getpc_b64 s[52:53]
L_pc:
v_subrev_u32 v6, CPFBASE, v0
v_lshlrev_b32 v6, 7, v6
v_min_u32 v6, L_codeend-L_pc-4, v6
global_load_dword v87, v6, s[52:53]
L_nocpf:
""").replace("CPFBASE", str(640 + 64 * opt.nm)))
    if opt.gate:
        a(f"""
v_lshlrev_b32 v21, 2, v1
v_mov_b32 v{vONE}, 1
ds_add_u32 v21, v{vONE} offset:{FL + 768 - 65536 if False else 0}
""".replace("v21, v2 offset:0", "v21, v2 offset:%d" % (FL + 768)))
    if opt.stamps == 1: stamp(a, opt, 14)

    stamp(a, opt, 1)
    sl0 = pack64([0,1,2,3,4,5,6,7,8,8,10,11,11,11,14,15], 4)
    a(f"""
s_mul_i32 s61, s45, {CHB}
s_mul_i32 s60, s62, {STGW}
s_add_u32 s60, s60, s61
s_mov_b32 m0, s60
s_movk_i32 s9, {PITCH}
s_mov_b32 s10, {sl0[0]:#x}
s_mov_b32 s11, {sl0[1]:#x}
v_and_b32 v20, 15, v1
v_and_b32 v21, 48, v1
v_add_u32 v24, s60, v21
v_mad_u32_u24 v{vSR}, v20, s9, v24
v_add_u32 v{vSL1}, {16*PITCH}, v24
v_lshlrev_b32 v25, 2, v20
v_lshrrev_b64 v[26:27], v25, s[10:11]
v_and_b32 v26, 15, v26
v_mad_u32_u24 v{vSL0}, v26, s9, v24
v_lshlrev_b32 v{vTA}, 4, v1
v_add_u32 v{vTA}, {TABL}, v{vTA}
s_mov_b32 s49, 0x01000c0c
s_cmp_lg_u32 s62, 0
s_cselect_b32 s49, 0x03020c0c, s49
s_mov_b32 s12, 0xbfb8aa3b
s_mov_b32 s13, 0x3e22f983
s_mov_b32 s14, 0x41000000
s_mov_b32 s15, 0x43800000
s_mov_b32 s63, 0x3fb8aa3b
s_mov_b32 s35, 0x7fff7fff
s_mov_b32 s34, 0x40000
v_mov_b32 v{vONE}, 1
s_mul_i32 s57, s45, {KCH}
s_add_u32 s57, s57, {KA}
s_cmp_lg_u32 s62, 0
s_cselect_b32 s58, s57, s61
s_mul_i32 s56, s45, {UCH}
s_add_u32 s56, s56, {UB}
s_lshl_b32 s8, s45, 7
s_add_u32 s8, s8, {FL}
v_mov_b32 v{vCF}, s8
s_lshl_b32 s8, s62, 10
v_add_u32 v14, s8, v{vTA}
s_waitcnt lgkmcnt(0)
s_lshl_b32 s8, s40, 16
s_and_b32 s40, s40, 0xffff0000
s_lshl_b32 s9, s41, 16
s_and_b32 s41, s41, 0xffff0000
s_bitcmp0_b32 s46, 0
s_cselect_b32 s40, s8, s40
s_cselect_b32 s41, s9, s41
v_mov_b32 v{vDT}, s63
v_mov_b32 v{vDSK}, 0
v_mul_f32 v{vDT}, s40, v{vDT}
v_writelane_b32 v{vDSK}, s41, 0
v_exp_f32 v{vDT}, v{vDT}
s_cmp_lg_u32 s62, 0
""")
    stamp(a, opt, 2)
    if opt.codepf == 3:
        a("s_waitcnt vmcnt(1)\ns_cmp_ge_u32 s44, 10\ns_cbranch_scc1 L_pw\ns_waitcnt vmcnt(0)\nL_pw:\ns_cmp_lg_u32 s62, 0")
    else:
        a("s_waitcnt vmcnt(0)")
    stamp(a, opt, 3)
    if opt.chain: a(f"ds_write_b32 v{vCF}, v{vONE} offset:96")
    kprio(a, opt, 0)
    if opt.bpos == 0: a("s_barrier")
    MH = "v_mfma_f32_16x16x32_f16"
    AB, CC, TA, TB, zf, wf, Zf, w2, w4, MX, MT = 52, 54, 56, 58, 60, 62, 64, 66, 68, 70, 71
    hz1, hz2, hz4, hZ1, hZ2, hZ4 = 88, 89, 90, 91, 92, 93
    RR = {j: 94 + j for j in range(1, 17)}
    LL = {}
    free = list(range(111, 128))
    def hmul(dst, x, m, conj=False):
        if not conj:
            a(f"v_pk_mul_f16 v{dst}, v{x}, v{m} op_sel:[0,0] op_sel_hi:[0,1]")
            a(f"v_pk_fma_f16 v{dst}, v{x}, v{m}, v{dst} op_sel:[1,1,0] op_sel_hi:[1,0,1] neg_lo:[0,1,0]")
        else:
            a(f"v_pk_mul_f16 v{dst}, v{x}, v{m} op_sel:[0,0] op_sel_hi:[0,1] neg_hi:[0,1]")
            a(f"v_pk_fma_f16 v{dst}, v{x}, v{m}, v{dst} op_sel:[1,1,0] op_sel_hi:[1,0,1]")
    dpp = lambda c, rm="0xf": f"v_max_u32_dpp v{MX}, v{MX}, v{MX} {c} row_mask:{rm} bank_mask:0xf"
    a(f"""
v_perm_b32 v{TA}, v{vP}, v{vP}, s49
v_and_b32 v{MX}, s35, v{vP+2}
v_mul_f32 v{TA}, s63, v{TA}
v_and_b32 v{MT}, s35, v{vP+3}
v_exp_f32 v{TA}, v{TA}
v_pk_max_u16 v{MX}, v{MX}, v{MT}
v_perm_b32 v{TA+1}, v{vP+1}, v{vP+1}, s49
v_lshlrev_b32 v{MT}, 16, v{MX}
v_cvt_pk_bf16_f32 v{vDT}, v{vDT}, v{TA}
v_max_u32 v{MX}, v{MX}, v{MT}
v_and_b32 v{TA}, 0xffff0000, v{vDT}
v_lshlrev_b32 v{vDT}, 16, v{vDT}
{dpp("row_shr:1")}
v_pk_mul_f32 {R(AB,2)}, {R(TA,2)}, {R(vDT,2)} op_sel_hi:[1,0]
v_pk_mul_f32 {R(AB,2)}, {R(AB,2)}, s[12:13]
{dpp("row_shr:2")}
v_pk_mul_f32 {R(TA,2)}, {R(AB,2)}, s[14:15] op_sel_hi:[1,0]
v_pk_mul_f32 {R(TB,2)}, {R(AB,2)}, s[14:15] op_sel:[0,1] op_sel_hi:[1,1]
{dpp("row_shr:4")}
v_fract_f32 v{AB+1}, v{AB+1}
v_exp_f32 v{AB}, v{AB}
{dpp("row_shr:8")}
v_cos_f32 v{zf}, v{AB+1}
v_sin_f32 v{zf+1}, v{AB+1}
{dpp("row_bcast:15", "0xa")}
v_fract_f32 v{TB+1}, v{TB+1}
v_pk_mul_f32 {R(zf,2)}, {R(zf,2)}, {R(AB,2)} op_sel_hi:[1,0]
{dpp("row_bcast:31", "0xc")}
v_exp_f32 v{TB}, v{TB}
v_cos_f32 v{Zf}, v{TB+1}
v_readlane_b32 s10, v{MX}, 63
v_sin_f32 v{Zf+1}, v{TB+1}
v_fract_f32 v{TA+1}, v{TA+1}
v_perm_b32 v{CC}, v{vP+2}, v{vP+2}, s49
s_and_b32 s10, s10, 0x7f800000
s_sub_u32 s8, 0x7f000000, s10
s_add_u32 s10, s10, 0x00800000
v_pk_mul_f32 {R(Zf,2)}, {R(Zf,2)}, {R(TB,2)} op_sel_hi:[1,0]
v_perm_b32 v{CC+1}, v{vP+3}, v{vP+3}, s49
v_exp_f32 v{TA}, v{TA}
v_cos_f32 v{wf}, v{TA+1}
v_sin_f32_e64 v{wf+1}, -v{TA+1}
v_pk_mul_f32 {R(CC,2)}, {R(CC,2)}, s[8:9] op_sel_hi:[1,0]
v_cvt_pk_f16_f32 v{hz1}, v{zf}, v{zf+1}
v_pk_mul_f32 {R(wf,2)}, {R(wf,2)}, {R(TA,2)} op_sel_hi:[1,0]
v_cvt_pk_f16_f32 v{hZ1}, v{Zf}, v{Zf+1}
v_mul_f32 v{vC2}, s10, v{vDT}
s_cmp_lg_u32 s62, 0
""")
    if opt.bpos == 1: a("s_barrier")
    if opt.go == 1: a(f"ds_write_b32 v{vCF}, v{vONE} offset:96")
    if opt.stamps == 1: stamp(a, opt, 10)
    pend = []
    def flush():
        for t, slot in pend: a(f"ds_write_addtid_b32 v{t} offset:{PITCH*slot}")
        pend.clear()
    def put(reg, slot):
        pend.append((reg, slot))
        if len(pend) == opt.batch: flush()
    rot = [0]
    def tmp():
        r = 120 + rot[0] % 8; rot[0] += 1; return r
    keep = {0: 111, 2: 112, 4: 113, 6: 114, 256: 115, 260: 116, 512: 117, 768: 118, 1024: 119}
    def L(b, src, m, slot, conj=False):
        dst = keep.get(b) or tmp()
        hmul(dst, src, m, conj); put(dst, slot)
    a(f"v_cvt_pk_f16_f32 v{keep[0]}, v{CC}, v{CC+1}"); put(keep[0], 0)
    hmul(hz2, hz1, hz1)
    a(f"v_cvt_pk_f16_f32 v{RR[1]}, v{wf}, v{wf+1}")
    L(1, keep[0], hz1, 1); L(2, keep[0], hz2, 2)
    hmul(hz4, hz2, hz2)
    L(3, keep[2], hz1, 3); L(4, keep[0], hz4, 4); L(5, keep[4], hz1, 5); L(6, keep[4], hz2, 6); L(7, keep[6], hz1, 7)
    L(256, keep[0], hZ1, 8); L(258, keep[2], hZ1, 10); L(260, keep[4], hZ1, 11); L(262, keep[6], hZ1, 14)
    L(264, keep[256], RR[1], 15, conj=True)
    flush()
    for k in range(4): a(f"ds_read_b128 {R(vLF+4*k,4)}, v{vSL0} offset:{64*k}")
    if opt.bpos == 2: a("s_barrier")
    if opt.k4 < 2: kprio(a, opt, 1)
    hmul(hZ2, hZ1, hZ1)
    cmul(a, w2, wf, wf)
    L(512, keep[0], hZ2, 0); L(516, keep[4], hZ2, 1); L(768, keep[256], hZ2, 4); L(772, keep[260], hZ2, 5)
    hmul(hZ4, hZ2, hZ2)
    cmul(a, w4, w2, w2)
    L(1024, keep[0], hZ4, 8); L(1280, keep[256], hZ4, 12); L(1536, keep[512], hZ4, 9); L(1792, keep[768], hZ4, 13); L(2048, keep[1024], hZ4, 6)
    flush()
    for k in range(4): a(f"ds_read_b128 {R(vLF+16+4*k,4)}, v{vSR} offset:{64*k}")
    if opt.stamps == 1: stamp(a, opt, 11)
    if opt.bpos == 3: a("s_barrier")
    if opt.go == 2: a(f"ds_write_b32 v{vCF}, v{vONE} offset:96")
    if opt.k4: kprio(a, opt, 2 if opt.k4 == 1 else 1)
    t = tmp()
    a(f"v_mov_b32 v{t}, 0x3c00"); put(t, 0); put(RR[1], 1)
    a(f"v_cvt_pk_f16_f32 v{RR[2]}, v{w2}, v{w2+1}"); put(RR[2], 2)
    a(f"v_cvt_pk_f16_f32 v{RR[4]}, v{w4}, v{w4+1}"); put(RR[4], 4)
    hmul(RR[3], RR[1], RR[2]); put(RR[3], 3)
    hmul(RR[8], RR[4], RR[4]); put(RR[8], 8)
    for j in (5, 6, 7): hmul(RR[j], RR[j-4], RR[4]); put(RR[j], j)
    hmul(RR[16], RR[8], RR[8])
    if opt.rhi:
        a(f"ds_write_addtid_b32 v{RR[16]} offset:{PITCH*16}")
    for j in range(9, 16):
        hmul(RR[j], RR[j-8], RR[8]); put(RR[j], j)
        if j == 11 and not opt.k4: kprio(a, opt, 2)
    flush()
    if opt.rhi:
        WF = 104
        if opt.go == 3: a(f"ds_write_b32 v{vCF}, v{vONE} offset:96")
        a.label("L_tw")
        a(f"ds_read_b32 v13, v{vCF} offset:100")
        a(f"ds_read_b128 v[88:91], v{vTA}")
        a(f"ds_read_b128 v[92:95], v14 offset:1024")
        for k in range(4):
            a(f"ds_read_b128 {R(vRF+4*k,4)}, v{vSR} offset:{64*k}")
            a(f"ds_read_b128 {R(WF+4*k,4)}, v{vSL1} offset:{64*k}")
        if opt.stamps == 1: stamp(a, opt, 12, True)
        if opt.k4: kprio(a, opt, 3 if opt.k4 == 1 else 2)
        else: a(f"s_setprio {opt.xprio}")
        def mm(n, k, m):
            dd = vD + 8 * m + 4 * n
            src = (vRF if n == 0 else WF) + 4 * k
            a(f"{MH} {R(dd,4)}, {R(vLF+16*m+4*k,4)}, {R(src,4)}, {'0' if k == 0 else R(dd,4)}")
        for k in range(4):
            if opt.k4 >= 2 and k == opt.k4: kprio(a, opt, 3)
            a(f"s_waitcnt lgkmcnt({6-2*k})")
            if k == 0:
                a("v_cmp_gt_u32 vcc, 4, v13\ns_cbranch_vccnz L_tws\nL_twd:")
                STUBS.append("L_tws:\ns_sleep 1\ns_waitcnt lgkmcnt(0)\ns_sub_u32 s34, s34, 1\ns_cbranch_scc0 L_tw\ns_branch L_twd")
            adds = [[(vU, 88, 56), (vKF, 89, 57)], [(vKT, 90, 57), (vPW0, 91, 60)], [(vPA, 92, 61), (vAC, 95, 57)], [(vKD, 93, 57), (vRD, 94, 58)]][k]
            for dd_, ss_, sg_ in adds: a(f"v_add_u32 v{dd_}, s{sg_}, v{ss_}")
            for e in range(4):
                t = tmp(); x = vRF + 4 * k + e; m_ = WF + 4 * k + e
                a(f"v_pk_mul_f16 v{t}, v{x}, v{m_} op_sel:[0,0] op_sel_hi:[0,1]")
                a(f"v_pk_fma_f16 v{m_}, v{x}, v{m_}, v{t} op_sel:[1,1,0] op_sel_hi:[1,0,1] neg_lo:[0,1,0]")
                if e == 0: mm(0, k, 0)
                if e == 1 and k > 0: mm(1, k - 1, 0)
                if e == 2: mm(0, k, 1)
                if e == 3 and k > 0: mm(1, k - 1, 1)
        a("s_nop 1")
        mm(1, 3, 0); mm(1, 3, 1)
        a(f"s_setprio {opt.xprio}\ns_nop 0" if opt.k4 else "s_nop 1")
    else:
        for k in range(4): a(f"ds_read_b128 {R(vRF+4*k,4)}, v{vSR} offset:{64*k}")
        put(RR[16], 0)
        for j in range(17, 32):
            t = tmp()
            hmul(t, RR[j-16], RR[16]); put(t, j - 16)
            if j == 19:
                a(f"s_waitcnt lgkmcnt({4 - len(pend)})")
            if 19 <= j < 27:
                k, m = (j - 19) // 2, (j - 19) % 2
                dd = vD + 8 * m
                a(f"{MH} {R(dd,4)}, {R(vLF+16*m+4*k,4)}, {R(vRF+4*k,4)}, {'0' if k == 0 else R(dd,4)}")
        flush()
        if opt.stamps == 1: stamp(a, opt, 12, True)
        for k in range(4): a(f"ds_read_b128 {R(vRF+4*k,4)}, v{vSR} offset:{64*k}")
        a(f"s_setprio {opt.xprio}")
        for k in range(4):
            a(f"s_waitcnt lgkmcnt({3-k})")
            for m in range(2):
                dd = vD + 8 * m + 4
                a(f"{MH} {R(dd,4)}, {R(vLF+16*m+4*k,4)}, {R(vRF+4*k,4)}, {'0' if k == 0 else R(dd,4)}")
    a(f"""
ds_write_b128 v{vPW0}, {R(vD,4)}
s_cmp_lg_u32 s62, 0
s_cbranch_scc1 L_xL
ds_write_addtid_b32 v{vD+8} offset:2048
ds_write_addtid_b32 v{vD+10} offset:2560
{"ds_write_addtid_b32 v%d offset:2816" % (vD+9) if opt.lall else "s_nop 0"}
s_nop 1
ds_write_b128 v{vPW0}, {R(vD+4,4)} offset:512
ds_write_addtid_b32 v{vD+12} offset:2304
{"ds_write_addtid_b32 v%d offset:3072" % (vD+13) if opt.lall else ""}
ds_write_b32 v{vCF}, v{vONE}
""")
    if opt.stamps == 1: stamp(a, opt, 13)
    wait_flags(a, [(20, 4)], "pxd")
    stamp(a, opt, 4)
    A_, B_, Pv, E, O, E2, O2 = 88, 100, 96, 108, 112, 116, 120
    d = lambda k: A_ + k
    a(f"""
ds_read_b128 {R(A_+4,4)}, v{vRD} offset:16
ds_read_b128 {R(B_+4,4)}, v{vRD} offset:{STGW+16}
ds_read_b128 {R(A_,4)}, v{vRD}
ds_read_b128 {R(B_,4)}, v{vRD} offset:{STGW}
{"" if opt.lall else "ds_read_addtid_b32 v20 offset:%d" % (STGW+2048)}
{"" if opt.lall else "ds_read_addtid_b32 v21 offset:%d" % (STGW+2304)}
s_waitcnt lgkmcnt({2 if opt.lall else 4})
v_pk_add_f32 {R(A_+4,2)}, {R(A_+4,2)}, {R(B_+4,2)}
v_pk_add_f32 {R(A_+6,2)}, {R(A_+6,2)}, {R(B_+6,2)}
v_pk_mul_f32 {R(A_+4,2)}, {R(A_+4,2)}, {R(vC2,2)} op_sel_hi:[1,0]
v_pk_mul_f32 {R(A_+6,2)}, {R(A_+6,2)}, {R(vC2,2)} op_sel_hi:[1,0]
s_waitcnt lgkmcnt({0 if opt.lall else 2})
v_pk_add_f32 {R(A_,2)}, {R(A_,2)}, {R(B_,2)}
v_pk_add_f32 {R(A_+2,2)}, {R(A_+2,2)}, {R(B_+2,2)}
v_fma_f32 v{A_}, v{A_}, v{vC2}, v{vDSK}
v_mul_f32 v{A_+1}, v{A_+1}, v{vC2}
v_pk_mul_f32 {R(A_+2,2)}, {R(A_+2,2)}, {R(vC2,2)} op_sel_hi:[1,0]
v_mov_b32_dpp v{Pv}, v{d(5)} wave_shr:1 row_mask:0xf bank_mask:0xf bound_ctrl:0
v_mov_b32_dpp v{Pv+1}, v{d(6)} wave_shr:1 row_mask:0xf bank_mask:0xf bound_ctrl:0
v_mov_b32_dpp v{Pv+2}, v{d(7)} wave_shr:1 row_mask:0xf bank_mask:0xf bound_ctrl:0
v_cvt_pk_bf16_f32 v{E}, v{d(7)}, v{d(6)}
v_cvt_pk_bf16_f32 v{E+1}, v{d(5)}, v{d(4)}
v_cvt_pk_bf16_f32 v{E+2}, v{d(3)}, v{d(2)}
v_cvt_pk_bf16_f32 v{E+3}, v{d(1)}, v{d(0)}
ds_write_b128 v{vKD}, {R(E,4)}
v_cvt_pk_bf16_f32 v{O}, v{d(6)}, v{d(5)}
v_cvt_pk_bf16_f32 v{O+1}, v{d(4)}, v{d(3)}
v_cvt_pk_bf16_f32 v{O+2}, v{d(2)}, v{d(1)}
v_cvt_pk_bf16_f32 v{O+3}, v{d(0)}, v{Pv+2}
ds_write_b128 v{vKD}, {R(O,4)} offset:{KCP}
v_mov_b32 v{E2}, v{E+1}
v_mov_b32 v{E2+1}, v{E+2}
v_mov_b32 v{E2+2}, v{E+3}
v_cvt_pk_bf16_f32 v{E2+3}, v{Pv+2}, v{Pv+1}
ds_write_b128 v{vKD}, {R(E2,4)} offset:{2*KCP}
v_mov_b32 v{O2}, v{O+1}
v_mov_b32 v{O2+1}, v{O+2}
v_mov_b32 v{O2+2}, v{O+3}
v_cvt_pk_bf16_f32 v{O2+3}, v{Pv+1}, v{Pv}
ds_write_b128 v{vKD}, {R(O2,4)} offset:{3*KCP}
""")
    if not opt.lall: a(f"""
s_waitcnt lgkmcnt(4)
v_add_f32 v20, v20, v{vD+9}
v_add_f32 v21, v21, v{vD+13}
v_mul_f32 v20, v20, v{vC2}
v_mul_f32 v21, v21, v{vC2}
v_cvt_pk_bf16_f32 v20, v20, v21
""")
    for sg in range(0 if opt.lall else 4):
        a(f"ds_write_b16 v{vAC}, v20 offset:{sg*(KCP-2)+16}")
        a(f"ds_write_b16_d16_hi v{vAC}, v20 offset:{sg*(KCP-2)}")
    a(f"ds_write_b32 v{vCF}, v{vONE} offset:8")
    stamp(a, opt, 5)
    SD = Stream(a)
    F = {16 + 32 * s: Frag("F", 16 + 32 * s, dF + 4 * s) for s in range(16)}
    for k in range(opt.pre):
        SD.load(F[16 + 32 * k] if opt.blk else F[16 + 32 * (k // 2) + 256 * (k % 2)])
    a(f"s_setprio {dprio(opt, 0)}")
    if opt.stag: a(f"s_cmp_ge_u32 s45, 2\ns_cbranch_scc1 L_dl\ns_setprio 0\nL_dl:")
    wait_flags(a, [(18, 16)] if opt.defer else [(18, 16), (19, 12)], "d")
    SD.done = SD.lds_n
    stamp(a, opt, 7, True)
    emit_dense(a, opt, SD, F)
    a("s_branch L_fin")
    a.label("L_xL")
    a(f"""
{"s_nop 0" if opt.lall else "ds_write_addtid_b32 v%d offset:2048" % (vD+9)}
v_mov_b32 v20, s61
s_nop 2
ds_write_b128 v{vPW0}, {R(vD+4,4)} offset:512
{"" if opt.lall else "ds_write_addtid_b32 v%d offset:2304" % (vD+13)}
ds_write_b32 v{vCF}, v{vONE} offset:4
s_mov_b32 m0, s61
""")
    if opt.stamps == 1: stamp(a, opt, 13)
    wait_flags(a, [(21, 0)], "pxl")
    stamp(a, opt, 4)
    n0, n1 = vD + 8, vD + 12
    a(f"""
ds_read_addtid_b32 v24 offset:2048
ds_read_addtid_b32 v25 offset:2304
ds_read_addtid_b32 v26 offset:2560
{"ds_read_addtid_b32 v27 offset:2816" if opt.lall else ""}
{"ds_read_addtid_b32 v28 offset:3072" if opt.lall else ""}
ds_read_b128 v[32:35], v20 offset:2032
ds_read_b128 v[36:39], v20 offset:{2032+STGW}
s_mov_b32 s8, -2
s_waitcnt lgkmcnt(2)
v_add_f32 v24, v24, v{n0}
v_add_f32 v25, v25, v{n1}
v_add_f32 v26, v26, v{n0+2}
v_mul_f32 v24, v24, v{vC2}
v_mul_f32 v25, v25, v{vC2}
v_mul_f32 v26, v26, v{vC2}
v_cvt_pk_bf16_f32 v40, v24, v25
v_mov_b32_dpp v42, v24 quad_perm:[0,0,0,0] row_mask:0x4 bank_mask:0xf
""")
    for sg in range(4):
        a(f"ds_write_b16_d16_hi v{vAC}, v40 offset:{sg*(KCP-2)}")
    if opt.lall:
        a(f"""
v_add_f32 v27, v27, v{n0+1}
v_add_f32 v28, v28, v{n1+1}
v_mul_f32 v27, v27, v{vC2}
v_mul_f32 v28, v28, v{vC2}
v_cvt_pk_bf16_f32 v41, v27, v28
""")
        for sg in range(4):
            a(f"ds_write_b16 v{vRD}, v41 offset:{sg*(KCP-2)+16}")
            a(f"ds_write_b16_d16_hi v{vRD}, v41 offset:{sg*(KCP-2)}")
    a(f"""
s_waitcnt lgkmcnt({12 if opt.lall else 4})
v_mov_b32_dpp v42, v26 quad_perm:[0,1,2,3] row_mask:0x2 bank_mask:0xf
v_add_f32 v33, v33, v37
v_pk_add_f32 v[34:35], v[34:35], v[38:39]
v_mul_f32 v33, v33, v{vC2}
v_pk_mul_f32 v[34:35], v[34:35], {R(vC2,2)} op_sel_hi:[1,0]
s_mov_b32 exec_lo, s8
s_mov_b32 exec_hi, s8
""")
    for sg in range(4):
        a(f"ds_write_b16 v{vAC}, v40 offset:{sg*(KCP-2)+16}")
    a(f"""
s_mov_b64 exec, -1
v_mov_b32_dpp v42, v33 quad_perm:[0,1,2,3] row_mask:0x8 bank_mask:0x1
v_mov_b32_dpp v42, v34 quad_perm:[0,1,2,3] row_mask:0x8 bank_mask:0x2
v_mov_b32_dpp v42, v35 quad_perm:[0,1,2,3] row_mask:0x1 bank_mask:0xf
v_subrev_u32 v19, 4096, v{vTA}
v_cvt_pk_bf16_f32 v42, v42, v42
""")
    for sg in range(4):
        a(f"ds_write_b16 v{vAM}, v42 offset:{sg*(KCP-2)}")
    a(f"ds_write_b32 v{vCF}, v{vONE} offset:12")
    stamp(a, opt, 5)
    SL = Stream(a)
    LK = level_frags()
    for k in LORDER[:opt.prel]:
        SL.load(LK[k])
    a(f"s_setprio {int(str(opt.llist)[0]) if opt.llist else min(dprio(opt, 0) + opt.lup, 3)}")
    if opt.stag: a(f"s_cmp_ge_u32 s45, 2\ns_cbranch_scc1 L_ll\ns_setprio 0\nL_ll:")
    wait_flags(a, [(16, 16), (17, 8)], "l")
    SL.done = SL.lds_n
    stamp(a, opt, 7, True)
    for j, wdt in enumerate((3, 5, 7, 9)):
        SL.lds(f"ds_read_b128 {R(BOX[wdt],4)}, v19 offset:{1024*j}")
    if not opt.nol: emit_level(a, opt, SL, LK)
    a("s_branch L_fin")
    NM = opt.nm; TP = 8 // NM; S2 = NM == 2 or opt.st2
    mT, mIN, mSO = 88, 96, 104
    a(f"""
{".p2align 6" if opt.malign else ""}
L_mem0:
s_sub_u32 s45, s44, 12
v_mov_b32 v8, 0
v_mov_b32 v9, 0
v_mov_b32 v10, 0
v_mov_b32 v11, 0
v_lshlrev_b32 v17, 4, v1
ds_write_b128 v17, v[8:11] offset:{FL}
v_min_u32 v5, 5, v1
v_mul_u32_u24 v16, {CHB}, v5
ds_write_b32 v16, v8 offset:{OFLO}
ds_write_b32 v16, v8 offset:{OFLO + 256}
s_mul_i32 s8, s45, {6*KCP}
s_add_u32 s8, s8, {KA}
v_add_u32 v7, s8, v17
""")
    for k in range(6): a(f"ds_write_b128 v7, v[8:11] offset:{KCP*k + 1024}")
    a(f"""
v_lshrrev_b32 v7, 2, v1
v_min_u32 v7, 5, v7
v_mul_u32_u24 v7, {KCP}, v7
v_and_b32 v6, 48, v17
v_add3_u32 v7, v7, v6, s8
ds_write_b128 v7, v[8:11]
v_lshrrev_b32 v7, 5, v1
s_lshl_b32 s8, s45, 1
v_add_u32 v7, s8, v7
v_min_u32 v7, 5, v7
v_mul_u32_u24 v7, {UCH}, v7
v_and_b32 v6, 31, v1
v_lshl_add_u32 v6, v6, 4, v7
v_add_u32 v6, {UB}, v6
ds_write_b128 v6, v[8:11]
s_getpc_b64 s[52:53]
L_pc2:
s_add_u32 s52, s52, L_table-L_pc2
s_addc_u32 s53, s53, 0
s_lshl_b32 s8, s45, 11
v_add_u32 v17, s8, v17
s_add_u32 s8, s8, {BOXL}
s_mov_b32 m0, s8
v_lshlrev_b32 v6, 7, v5
{"global_load_lds_dwordx4 v17, s[52:53]" if opt.tearly else ""}
{"global_load_lds_dwordx4 v17, s[52:53] offset:1024" if opt.tearly else ""}
v_and_b32 v4, 15, v1
v_lshrrev_b32 v15, 4, v1
""")
    ts = 1 if opt.tint else TP
    tj = NM if opt.tint else 1
    a(f"""
s_lshl_b32 s47, s5, 1
s_mul_i32 s9, s45, {ts*256*1152}
s_add_u32 s9, s9, s47
v_mul_u32_u24 v19, {4*1152}, v1
s_add_u32 s48, s48, s47
s_mov_b32 s34, {2048*2304}
s_mov_b32 s35, 0x00020000
s_mov_b32 s50, 0x05040100
s_mov_b32 s51, 0x07060302
s_mov_b32 s36, 0x40000
v_lshl_add_u32 v4, v4, 2, v15
v_mul_u32_u24 v18, {4*2304}, v4
s_mul_i32 s8, s45, {ts*512}
s_add_u32 s8, s8, {UB + 512}
v_lshl_add_u32 v3, v1, 3, s8
v_add_u32 v18, s48, v18
s_mul_i32 s8, s45, {ts*4}
s_add_u32 s8, s8, {FL + 16}
v_lshl_add_u32 v14, v5, 7, s8
v_mov_b32 v2, 1
s_and_b32 s8, s45, {1 if S2 else 3}
s_mul_i32 s57, s8, {4608 if S2 else 2304}
s_mov_b32 s56, 1
s_lshr_b32 s8, s8, {0 if S2 else 1}
s_lshl_b32 s8, s8, 8
s_add_u32 s8, s8, {OUTO}
v_lshl_add_u32 v4, v1, 2, s8
""")
    if opt.mord:
        for k in range(NM - 1):
            a(f"s_cmp_eq_u32 s45, {k}\ns_cbranch_scc1 L_mp\ns_setprio {2-k}")
        a.label("L_mp")
    a(f"""
s_waitcnt lgkmcnt(0)
s_mov_b32 s18, {2048*1152}
s_mov_b32 s19, 0x00020000
""")
    if opt.stamps == 1: stamp(a, opt, 14)
    a("s_barrier")
    def chainwait(tag):
        a(f"""
v_mov_b32 v6, {FL + 96 + 128*opt.trig}
L_chw{tag}:
ds_read_b32 v7, v6
s_waitcnt lgkmcnt(0)
s_sub_u32 s36, s36, 1
s_cbranch_scc1 L_chok{tag}
v_cmp_eq_u32 vcc, 0, v7
s_cbranch_vccz L_chok{tag}
s_sleep 2
s_branch L_chw{tag}
L_chok{tag}:
""")
    if opt.chain and NM == 4:
        a(f"s_cmp_lt_u32 s45, {opt.chain}\ns_cbranch_scc1 L_chok")
        chainwait("")
    if opt.go:
        a(f"""
s_mov_b64 exec, 63
s_waitcnt vmcnt(0)
ds_add_u32 v6, v2 offset:{FL + 100}
s_mov_b64 exec, -1
""")
        chainwait("g")
    stamp(a, opt, 1)
    if not opt.tearly: a("global_load_lds_dwordx4 v17, s[52:53]\nglobal_load_lds_dwordx4 v17, s[52:53] offset:1024")
    for j in range(TP):
        if j == 1 and not opt.go:
            a(f"""
s_mov_b64 exec, 63
s_waitcnt vmcnt(4)
ds_add_u32 v6, v2 offset:{FL + 100}
s_mov_b64 exec, -1
""")
        if opt.chain and NM == 2 and j == opt.chain: chainwait("")
        for e in range(4):
            a(f"buffer_load_dwordx3 {R(mUD+16*j+4*e,3)}, v19, s[16:19], s9 offen offset:{e*1152}" + (" nt" if opt.nt else ""))
        if j < TP - 1: a(f"s_add_u32 s9, s9, {tj*256*1152}")
    stamp(a, opt, 2)
    a("s_setprio 3")
    for j in range(TP):
        a(f"s_waitcnt vmcnt({4*(TP-1-j)})")
        q = lambda e, m: mUD + 16 * j + 4 * e + m
        for m in range(3):
            for hi in range(2):
                t = mT + 2 * ((2 * m + hi) % 4)
                a(f"v_perm_b32 v{t}, v{q(1,m)}, v{q(0,m)}, s{50+hi}")
                a(f"v_perm_b32 v{t+1}, v{q(3,m)}, v{q(2,m)}, s{50+hi}")
                a(f"ds_write_b64 v3, {R(t,2)} offset:{(2*m+hi)*UCH + 512*tj*j}")
        a(f"ds_write_b32 v14, v2 offset:{4*tj*j}")
        stamp(a, opt, 6 if j == 0 else (11 if j == TP - 1 else (4 if j == 1 else 12)))
    if not S2: a("s_bitcmp1_b32 s45, 0\ns_cselect_b32 s50, s51, s50")
    if NM == 4 and S2: a("s_cmp_lt_u32 s45, 2\ns_cbranch_scc1 L_fin")
    a(f"""
L_mpoll:
ds_read_b32 v8, v16 offset:{OFLO}
s_waitcnt lgkmcnt(0)
v_cmp_gt_u32 vcc, s56, v8
s_cbranch_vccz L_mgo
s_sleep {opt.msleep}
s_sub_u32 s36, s36, 1
s_cbranch_scc0 L_mpoll
L_mgo:
""")
    for c in range(6):
        a(f"ds_read_b32 v{mIN+c}, v4 offset:{CHB*c}")
    a(f"v_add_u32 v4, 512, v4")
    for m in range(3):
        a(f"s_waitcnt lgkmcnt({4-2*m})")
        a(f"v_perm_b32 v{mSO+m}, v{mIN+2*m+1}, v{mIN+2*m}, s50")
    a(f"buffer_store_dwordx3 {R(mSO,3)}, v18, s[32:35], s57 offen")
    if S2:
        for m in range(3): a(f"v_perm_b32 v{mSO+4+m}, v{mIN+2*m+1}, v{mIN+2*m}, s51")
        a(f"buffer_store_dwordx3 {R(mSO+4,3)}, v18, s[32:35], s57 offen offset:2304")
    a(f"s_add_u32 s57, s57, {256*2304}\ns_add_u32 s56, s56, 1")
    if opt.stamps:
        a(f"s_cmp_lg_u32 s56, 2\ns_cbranch_scc1 L_ms")
        stamp(a, opt, 10)
        a.label(f"L_ms")
    a(f"s_cmp_le_u32 s56, 8\ns_cbranch_scc1 L_mpoll")
    a.label("L_fin")
    if opt.amp: stamp(a, opt, 8)
    if opt.stamps and not opt.amp:
        stamp(a, opt, 8)
        a("s_waitcnt vmcnt(0)")
        stamp(a, opt, 9)
        a(f"""
s_load_dwordx2 s[8:9], s[0:1], 128
s_waitcnt lgkmcnt(0)
s_lshl_b32 s10, s2, 4
s_add_u32 s10, s10, s44
s_lshl_b32 s10, s10, 7
s_add_u32 s10, s10, {1<<20}
v_mov_b32 v20, s10
""")
        for k in range(1, NST):
            a(f"s_sub_u32 s11, s{64+2*k}, s64\nv_mov_b32 v21, s11\nglobal_store_dword v20, v21, s[8:9] offset:{4*k}")
        a("s_memrealtime s[10:11]\ns_waitcnt lgkmcnt(0)\nv_mov_b32 v21, s10\nglobal_store_dword v20, v21, s[8:9] offset:0")
        a("v_mov_b32 v21, s100\nglobal_store_dword v20, v21, s[8:9] offset:80")
        a("s_getreg_b32 s11, hwreg(HW_REG_HW_ID)\nv_mov_b32 v21, s11\nglobal_store_dword v20, v21, s[8:9] offset:84")
        a("s_getreg_b32 s11, hwreg(HW_REG_XCC_ID)\nv_mov_b32 v21, s11\nglobal_store_dword v20, v21, s[8:9] offset:88")
        a("v_mov_b32 v21, s64\nglobal_store_dword v20, v21, s[8:9] offset:92")
    if opt.amp:
        ampx = ("s_add_u32 s10, s82, %d" % opt.amp) if opt.amp > 100 else ("s_sub_u32 s10, s%d, s64\ns_lshl_b32 s10, s10, 2\ns_add_u32 s10, s10, s82" % (64 + 2 * opt.amp))
        a(f"""
s_waitcnt vmcnt(0)
s_memtime s[82:83]
s_waitcnt lgkmcnt(0)
s_cmp_lg_u32 s2, {opt.ampg}
s_cbranch_scc1 L_end
s_cmp_lg_u32 s44, {opt.ampw}
s_cbranch_scc1 L_end
{ampx}
L_amp:
s_memtime s[12:13]
s_waitcnt lgkmcnt(0)
s_sub_u32 s11, s12, s10
s_cmp_lt_i32 s11, 0
s_cbranch_scc1 L_amp
""")
    a.label("L_end")
    a("s_endpgm")
    for st in STUBS: a(st)
    a.label("L_codeend")
    out += a.text()
    out += ".p2align 7\n.type L_table,@object\nL_table:\n"
    for row in lane_table():
        out += ".long " + ", ".join(f"{x:#x}" for x in row) + "\n"
    out += ".size L_table, 8192\n"
    out += f""".section .rodata,"a"
.p2align 6
.amdhsa_kernel {NAME}_kernel
  .amdhsa_next_free_vgpr 128
  .amdhsa_next_free_sgpr 102
  .amdhsa_accum_offset 128
  .amdhsa_group_segment_fixed_size 0
  .amdhsa_kernarg_size 136
  .amdhsa_user_sgpr_count 2
  .amdhsa_user_sgpr_kernarg_segment_ptr 1
  .amdhsa_system_sgpr_workgroup_id_x 1
.end_amdhsa_kernel
"""
    return out

if __name__ == "__main__":
    p = argparse.ArgumentParser()
    p.add_argument("-o", default="cdna_kernels/" + NAME + ".s")
    for k, v in dict(stamps=0, la=6, batch=8, pre=15, prel=1, codepf=0, chain=0, trig=0, rhi=1, sidem=1, blk=8, dry=0, bpos=0, lall=1, clist=33322110, kli=15, stag=0, malign=1, tearly=1, go=0, nm=4, tint=1, st2=1, plist=33221100, llist=3322110, mold=1, bprio=0, wb=0, wbg=8, amp=0, ampg=0, ampw=15, k4=3, alow=0, e2=1, gate=0, nt=1, kmin=0, upf=0, nol=0, msleep=1, quarter=1,
                     ptop=2, pstep=3, lead=-1, xprio=3, mord=0, lateb=1, defer=1, ktop=3, klead=0, thr=0, lup=0).items():
        p.add_argument("--" + k, type=int, default=v)
    opt = p.parse_args()
    open(opt.o, "w").write(generate(opt))
```

```python
import sys, argparse

NAME = "concat_heads__ssm_conv_s4d__ssm_conv_s4d__prompt"

PITCH = 288
STGW = 4896
CHB = 10752
OUTO, OFLO = 6144, 10240
FL = 6 * CHB
KA = FL + 1024
KCP = 2112
KCH = 4 * KCP
UB = KA + 6 * KCH
UCH = 4608
BOXL = UB + 6 * UCH
TABL = BOXL + 4096
LDS_TOTAL = TABL + 4096
ZD, ZX = 543, 1615
Z2 = [687 + 64 * m for m in range(4)]
Z3 = [991, 1071]
DUMMY = 1040

vPA, vCF, vONE, vOW = 0, 1, 2, 3
vU, vKF, vKT, vSR, vSL0, vSL1, vPW0 = 4, 5, 6, 7, 8, 9, 10
vTA = 15
vKD, vRD = 11, 12
vAC, vAM = 14, 11
BOX = {3: 112, 5: 116, 7: 120, 9: 124}
vLF, vRF, vD = 20, 52, 68
vP = 36
vDT, vDSK, vC2 = 84, 85, 86
Z_, W_, ZZ, X_, Y_ = 88, 90, 92, 94, 96
T_ = [98, 99, 100, 101]
dF, dACC, dG, dPT, dOT, dFLG, dCN, dUT = 20, 84, 96, 12, 16, 18, 8, 10
dTH, dTT = 6, 19
lT2, lT3, lFX, lF5, lACC, lW, lG, lUT = 20, 44, 60, 64, 68, 92, 104, 7
mUD, mT, mIN, mSO = 20, 52, 60, 72
MF = "v_mfma_f32_16x16x32_bf16"

class Asm:
    def __init__(self): self.lines = []
    def __call__(self, s):
        for l in s.strip("\n").split("\n"):
            if not l.strip(): continue
            self.lines.append(l if l.rstrip().endswith(":") and not l.startswith(" ") else "    " + l.strip())
    def label(self, l): self.lines.append(l + ":")
    def text(self): return "\n".join(self.lines) + "\n"

def R(a, n=1): return f"v{a}" if n == 1 else f"v[{a}:{a+n-1}]"

def cmul(a, dst, x, m, conj=False):
    if not conj:
        a(f"v_pk_mul_f32 {R(dst,2)}, {R(x,2)}, {R(m,2)} op_sel:[0,0] op_sel_hi:[0,1]")
        a(f"v_pk_fma_f32 {R(dst,2)}, {R(x,2)}, {R(m,2)}, {R(dst,2)} op_sel:[1,1,0] op_sel_hi:[1,0,1] neg_lo:[0,1,0]")
    else:
        a(f"v_pk_mul_f32 {R(dst,2)}, {R(x,2)}, {R(m,2)} op_sel:[0,0] op_sel_hi:[0,1] neg_hi:[0,1]")
        a(f"v_pk_fma_f32 {R(dst,2)}, {R(x,2)}, {R(m,2)}, {R(dst,2)} op_sel:[1,1,0] op_sel_hi:[1,0,1]")

NST = 18
def stamp(a, opt, idx, wait=False):
    if opt.stamps and idx is not None:
        a(f"s_memtime s[{64+2*idx}:{65+2*idx}]")
        if wait: a("s_waitcnt lgkmcnt(0)")

class Frag:
    def __init__(self, kind, key, reg=None):
        self.kind, self.key, self.reg = kind, key, reg
        self.first = None; self.last = None; self.issued = False; self.seq = -1

def frag_reads(f):
    k = f.key
    if f.kind == "G": return [("ds_read_b128", f.reg, 4, vU, 512 + 2 * k)]
    if f.kind in ("F", "FX"):
        o = 2 * (ZD - 3 - k) if f.kind == "F" else 2 * (ZX - 3 - 1040)
        return [("ds_read_b64", f.reg, 2, vKF, o), ("ds_read_b64", f.reg + 2, 2, vKF, o + 8)]
    if f.kind == "T2":
        d, h = k
        return [("ds_read_b64", f.reg + 2 * j, 2, vKT, 2 * (Z2[2 * h + j] - 3 - 16 * d)) for j in range(2)]
    if f.kind == "T3":
        return [("ds_read_b64", f.reg + 2 * j, 2, vKT, 2 * (Z3[j] - 3 - 16 * k)) for j in range(2)]
    raise ValueError

class Stream:
    def __init__(self, a):
        self.a = a; self.n = 0; self.lds_n = 0; self.done = 0
    def ins(self, s, w=1): self.a(s); self.n += w
    def lds(self, s): self.ins(s); self.lds_n += 1; return self.lds_n
    def wait(self, seq):
        if seq > self.done:
            k = min(self.lds_n - seq, 15)
            self.ins(f"s_waitcnt lgkmcnt({k})"); self.done = self.lds_n - k
    def until(self, n):
        if self.n < n: self.ins(f"s_nop {n - self.n - 1}", n - self.n)
    def load(self, f):
        for (mn, d, n, ar, off) in frag_reads(f):
            f.seq = self.lds(f"{mn} {R(d,n)}, v{ar} offset:{off}")
        f.issued = True

STUBS = []
def wait_flags(a, reads, tag):
    rd = "\n".join(f"ds_read_b32 v{t}, v{vCF} offset:{o}" for t, o in reads)
    comb = "" if len(reads) == 1 else f"v_and_b32 v{reads[0][0]}, v{reads[0][0]}, v{reads[1][0]}\n"
    a.label(f"L_w_{tag}")
    a(f"{rd}\ns_waitcnt lgkmcnt(0)\n{comb}v_cmp_eq_u32 vcc, 0, v{reads[0][0]}\ns_cbranch_vccnz L_ws_{tag}")
    a.label(f"L_wd_{tag}")
    STUBS.append(f"L_ws_{tag}:\ns_sleep 1\ns_sub_u32 s34, s34, 1\ns_cbranch_scc0 L_w_{tag}\ns_branch L_wd_{tag}")

def flag_check(a, S, seq, tmp, off, tag, extra=""):
    S.wait(seq)
    S.ins(f"v_cmp_eq_u32 vcc, 0, v{tmp}")
    S.ins(f"s_cbranch_vccnz L_sp_{tag}")
    a.label(f"L_ok_{tag}")
    STUBS.append(f"""L_sp_{tag}:
s_sleep 1
ds_read_b32 v{tmp}, v{vCF} offset:{off}
{extra}s_waitcnt lgkmcnt(0)
s_sub_u32 s34, s34, 1
s_cbranch_scc1 L_ok_{tag}
v_cmp_eq_u32 vcc, 0, v{tmp}
s_cbranch_vccnz L_sp_{tag}
s_branch L_ok_{tag}""")

def cnt_check(a, S, seq, tmp, rd, val, tag, extra=""):
    S.wait(seq)
    S.ins(f"v_cmp_gt_u32 vcc, {val}, v{tmp}")
    S.ins(f"s_cbranch_vccnz L_sp_{tag}")
    a.label(f"L_ok_{tag}")
    STUBS.append(f"""L_sp_{tag}:
s_sleep 1
{rd}
{extra}s_waitcnt lgkmcnt(0)
s_sub_u32 s34, s34, 1
s_cbranch_scc1 L_ok_{tag}
v_cmp_gt_u32 vcc, {val}, v{tmp}
s_cbranch_vccnz L_sp_{tag}
s_branch L_ok_{tag}""")

def early_switch(a, S, opt, tag, prio, t1, t2):
    S.ins("s_cmp_ge_u32 s45, 2")
    S.ins(f"s_cbranch_scc1 L_es_{tag}")
    a(f"""ds_read_b32 v{t1}, v{vCF} offset:{2*128+12}
ds_read_b32 v{t2}, v{vCF} offset:{4*128+12}
s_waitcnt lgkmcnt(0)
v_and_b32 v{t1}, v{t1}, v{t2}
v_cmp_eq_u32 vcc, 0, v{t1}
s_setprio {prio}
s_cbranch_vccz L_es_{tag}
s_setprio 0""")
    a.label(f"L_es_{tag}")

def dprio(opt, t):
    if opt.plist: return int(str(opt.plist)[min(t, 7)])
    return max(opt.ptop - t // opt.pstep, 0)

def emit_dense(a, opt, S, F):
    ops = []
    for tau in range(8):
        gs = [Frag("G", 256 * tau - 16 - 32 * s) for s in range(8)]
        for s in range(8): gs[s].tile = tau if s == 0 else None
        lag = opt.blk
        for s in range(8 + lag):
            if s < 8: ops.append((tau, F[16 + 32 * s], gs[s], tau == 0 and s == 0))
            if s == 7 and lag: ops.append(("end", tau))
            if tau < 7 and 0 <= s - lag < 8: ops.append((tau + 1, F[272 + 32 * (s - lag)], gs[s - lag], s == lag))
            if s == 7 and not lag: ops.append(("end", tau))
    gl = []
    for i, op in enumerate(ops):
        if op[0] == "end": continue
        for g in (op[1], op[2]):
            if g.first is None:
                g.first = i
                if not g.issued: gl.append(g)
            g.last = i
    endpos = {op[1]: i for i, op in enumerate(ops) if op[0] == "end"}
    tfirst = {g.tile: g.first for g in gl if g.kind == "G" and g.tile is not None}
    ring = [-1] * 8
    acc_last = {}
    side = []
    pinfo = {}
    PRD = f"ds_read_addtid_b32 v{dFLG} offset:{OFLO + 256}"
    def ptxt(t): return f"ds_read_b128 {R(dPT,4)}, v{vPA} offset:{(t-2)*1024}"
    def queue_out(t):
        ac = dACC + 4 * (t % 3)
        rn = acc_last[t] + 8
        if t >= 2:
            if not opt.nol:
                side.append((0, lambda: cnt_check(a, S, pinfo[t], dFLG, PRD, t, f"p{t}", ptxt(t) + "\n")))
            side.append((rn, lambda: (S.ins(f"v_add_f32 v{dPT}, v{dPT}, v{ac}"), S.ins(f"v_add_f32 v{dPT+1}, v{dPT+1}, v{ac+1}"))))
            side.append((rn, lambda: (S.ins(f"v_add_f32 v{dPT+2}, v{dPT+2}, v{ac+2}"), S.ins(f"v_add_f32 v{dPT+3}, v{dPT+3}, v{ac+3}"))))
            src = dPT
        else:
            src = ac
        side.append((rn, lambda: (S.ins(f"v_cvt_pk_bf16_f32 v{dOT}, v{src}, v{src+1}"), S.ins(f"v_cvt_pk_bf16_f32 v{dOT+1}, v{src+2}, v{src+3}"))))
        side.append((rn, lambda: (S.lds(f"ds_write_addtid_b32 v{dOT} offset:{OUTO + 512*t}"), S.ins(f"v_mov_b32 v{dCN}, {t+1}"))))
        side.append((rn, lambda: S.lds(f"ds_write_addtid_b32 v{dOT+1} offset:{OUTO + 512*t + 256}")))
        def fin():
            S.lds(f"ds_write_addtid_b32 v{dCN} offset:{OFLO}")
            if opt.stamps == 2:
                stamp(a, opt, 10 + t, True); S.done = S.lds_n
        side.append((rn, fin))
    pend = list(gl)
    useq = {}
    thr = {}
    lateF = []
    for i, op in enumerate(ops):
        if lateF and i >= opt.kli:
            while side:
                rn, fn = side.pop(0); S.until(rn); fn()
            flag_check(a, S, klseq, dFLG, 12, "kl"); S.load(lateF.pop())
        if opt.defer and i == max(opt.kli - 4, 2):
            klseq = S.lds(f"ds_read_b32 v{dFLG}, v{vCF} offset:12")
        for t in range(1, 8):
            if t not in useq and i + opt.la + 3 >= tfirst[t]:
                useq[t] = S.lds(f"ds_read_b32 v{dUT}, v{vCF} offset:{16 + 4*t}")
        while pend and pend[0].first <= i + opt.la:
            if pend[0].kind == "F":
                if opt.defer and pend[0].key == 496:
                    if i < opt.kli:
                        lateF.append(pend.pop(0)); continue
                    flag_check(a, S, klseq, dFLG, 12, "kl")
                S.load(pend.pop(0)); continue
            slot = next((s for s in range(8) if ring[s] < i), None)
            if slot is None:
                assert pend[0].first > i
                break
            g = pend.pop(0)
            if g.tile: flag_check(a, S, useq[g.tile], dUT, 16 + 4 * g.tile, f"du{g.tile}")
            ring[slot] = g.last; g.reg = dG + 4 * slot; S.load(g)
        for t in range(2, 8):
            if t not in pinfo and i >= endpos[t] - 3:
                while side:
                    rn, fn = side.pop(0); S.until(rn); fn()
                S.lds(PRD)
                pinfo[t] = S.lds(ptxt(t))
        if opt.thr:
            for t in range(opt.thr, 8):
                if t not in thr and i + 5 >= endpos[t - 1]:
                    thr[t] = S.lds(f"ds_read_b32 v{dTT}, v{dTH}")
        if op[0] == "end":
            t1 = op[1] + 1
            if opt.thr and opt.thr <= t1 < 8:
                S.wait(thr[t1])
                S.ins(f"v_cmp_gt_u32 vcc, {t1 - opt.thr + 1}, v{dTT}")
                S.ins(f"s_cbranch_vccnz L_th_{t1}")
                a.label(f"L_tk_{t1}")
                STUBS.append(f"""L_th_{t1}:
s_sleep 1
ds_read_b32 v{dTT}, v{dTH}
s_waitcnt lgkmcnt(0)
s_sub_u32 s34, s34, 1
s_cbranch_scc1 L_tk_{t1}
v_cmp_gt_u32 vcc, {t1 - opt.thr + 1}, v{dTT}
s_cbranch_vccnz L_th_{t1}
s_branch L_tk_{t1}""")
            queue_out(op[1])
            if opt.stag and op[1] < 7 and dprio(opt, op[1] + 1) > 0:
                post = lambda t1=op[1] + 1: early_switch(a, S, opt, f"d{t1}", dprio(opt, t1), 19, 9)
            else: post = lambda: None
            if opt.clist and op[1] < 7:
                t1 = op[1] + 1
                pa, pc = dprio(opt, t1), int(str(opt.clist)[t1])
                ca, cc = pa != dprio(opt, t1 - 1), pc != int(str(opt.clist)[t1 - 1])
                if ca and cc and pa == pc: S.ins(f"s_setprio {pa}")
                elif ca or cc:
                    assert not (ca and cc)
                    S.ins("s_cmp_ge_u32 s45, 4")
                    S.ins(f"s_cbranch_scc{1 if ca else 0} L_cp{t1}")
                    S.ins(f"s_setprio {pa if ca else pc}", 0)
                    a.label(f"L_cp{t1}")
            elif op[1] < 7 and (dprio(opt, op[1] + 1) != dprio(opt, op[1]) or (opt.alow and op[1] == 1)): S.ins(f"s_setprio {dprio(opt, op[1] + 1)}")
            post()
            continue
        t, f, g, first = op
        S.wait(max(f.seq, g.seq))
        ac = dACC + 4 * (t % 3)
        S.ins(f"{MF} {R(ac,4)}, {R(f.reg,4)}, {R(g.reg,4)}, {'0' if first else R(ac,4)}")
        acc_last[t] = S.n
        isq0 = f.key < 272
        if opt.sidem == 0 or isq0 or opt.blk:
            if side and side[0][0] <= S.n: side.pop(0)[1]()
        if isq0 and t == 7 and side and side[0][0] <= S.n: side.pop(0)[1]()
        if opt.sidem == 0 and t == 7 and not isq0 and side and side[0][0] <= S.n: side.pop(0)[1]()
    while side:
        rn, fn = side.pop(0); S.until(rn); fn()

def level_frags():
    K = {}
    for d in (2, 3, 4):
        for h in (0, 1): K[("T2", d, h)] = Frag("T2", (d, h), lT2 + 4 * ((d - 2) * 2 + h))
    for d in (4, 5, 6): K[("T3", d)] = Frag("T3", d, lT3 + 4 * (d - 4))
    K[("T3", 7)] = Frag("T3", 7, lACC + 16)
    K["FX"] = Frag("FX", 0, lFX)
    K["F5"] = Frag("F", 528, lF5)
    return K
LORDER = ["FX", ("T2", 2, 0), ("T2", 3, 0), ("T2", 4, 0), ("T2", 2, 1), ("T2", 3, 1), ("T2", 4, 1), ("T3", 7), ("T3", 4), ("T3", 5), ("T3", 6)]

def emit_level(a, opt, S, K):
    acc = lambda t: lACC + 4 * (t - 2)
    inited = set(); acc_last = {}; vq = []; wr = {}; pubq = []
    def drain(k):
        while k > 0 and vq and vq[0][0] <= S.n:
            rn, txt, key = vq.pop(0); S.ins(txt); wr[key] = S.n + 2; k -= 1
    def force(key):
        while any(q[2] == key for q in vq):
            rn, txt, kk = vq.pop(0); S.until(rn); S.ins(txt); wr[kk] = S.n + 2
    def need(f):
        if not f.issued: S.load(f)
        S.wait(f.seq)
    def mf(d, A, B, c):
        S.ins(f"{MF} {R(d,4)}, {R(A,4)}, {R(B,4)}, {c}")
        n = S.n
        if pubq: pubflush()
        else: drain(1)
        return n
    def am(t, A, B):
        c = R(acc(t), 4) if t in inited else "0"
        inited.add(t)
        acc_last[t] = mf(acc(t), A, B, c)
    G0 = [Frag("G", 256 * b - 16, lG) for b in range(6)]
    GM = [Frag("G", 256 * b - 24, lG + 4) for b in range(6)]
    S.load(G0[0]); S.load(GM[0])
    lo = ["F5", "FX", ("T2", 2, 0), ("T2", 2, 1), ("T2", 3, 0), ("T2", 4, 0), ("T2", 3, 1), ("T2", 4, 1), ("T3", 7), ("T3", 4), ("T3", 5), ("T3", 6)] if opt.e2 else ["F5"] + LORDER
    lazy = [K[k] for k in lo if not K[k].issued]
    tsets = [[12, 16], [8, 56]]
    def publish(t):
        S.until(acc_last[t] + 8)
        S.lds(f"ds_write_b128 v{vPA}, {R(acc(t),4)} offset:{(t-2)*1024}")
        S.ins(f"v_mov_b32 v{vONE}, {t}")
        pubq.append(t)
    def pubflush():
        while pubq:
            t = pubq.pop(0)
            S.lds(f"ds_write_addtid_b32 v{vONE} offset:{OFLO + 256}")
            if opt.stamps == 2:
                stamp(a, opt, 10 + t, True); S.done = S.lds_n
    def uses(b, h, ds=None):
        if b < 0 or b > 5: return
        if h < 2: lst = [(b + d, K[("T2", d, h)]) for d in (ds or ((3, 4) if opt.e2 else (2, 3, 4))) if b + d <= 7]
        else: lst = [(b + d, K[("T3", d)]) for d in (7, 4, 5, 6) if b + d <= 7 and b <= 3]
        if lst: force((b, h))
        for t, f in lst:
            need(f); S.until(wr[(b, h)]); am(t, lW + 4 * h, f.reg)
    grp = 0; prevkey = None
    lp = lambda nb: int(str(opt.llist)[nb]) if opt.llist else min(dprio(opt, max(nb - opt.lead, 0)) + opt.lup, 3)
    for nb in range(7):
        b = nb - 1
        pairs = []
        if nb <= 5:
            g0, gm = G0[nb], GM[nb]
            pairs = [[(g0, 3), (g0, 5)], [(gm, 3), (gm, 5)]]
            if nb <= 3: pairs.append([(g0, 7), (gm, 9)])
        if nb > 0 and (lp(nb) != lp(nb - 1) or (opt.alow and nb == 2)): S.ins(f"s_setprio {lp(nb)}")
        if opt.stag and nb > 0 and lp(nb) > 0: early_switch(a, S, opt, f"l{nb}", lp(nb), 3, 6 if nb >= 2 else 7)
        for h in range(3):
            newv = []
            for _ in range(3):
                if lazy: S.load(lazy.pop(0))
            if h < len(pairs):
                tm = tsets[grp % 2]; grp += 1
                for q in list(vq):
                    if q[2] != prevkey: force(q[2])
                for j, (g, box) in enumerate(pairs[h]):
                    need(g)
                    n = mf(tm[j], g.reg, BOX[box], "0")
                    dst = lW + 4 * h + 2 * j
                    newv.append((n + 8, f"v_cvt_pk_bf16_f32 v{dst}, v{tm[j]}, v{tm[j]+1}", (nb, h)))
                    newv.append((n + 8, f"v_cvt_pk_bf16_f32 v{dst+1}, v{tm[j]+2}, v{tm[j]+3}", (nb, h)))
                if h == 0:
                    need(K["F5"]); am(nb + 2, K["F5"].reg, g0.reg)
                    if nb < 5: useq = S.lds(f"ds_read_b32 v{lUT}, v{vCF} offset:{16 + 4*(nb+1)}")
                if h == 1 and nb <= 3:
                    need(K["FX"]); am(nb + 4, K["FX"].reg, g0.reg)
                if h == len(pairs) - 1 and nb < 5:
                    flag_check(a, S, useq, lUT, 16 + 4 * (nb + 1), f"lu{nb+1}")
                    S.load(G0[nb + 1]); S.load(GM[nb + 1])
            if opt.e2:
                if h == 0 and b >= 0: uses(b, 1, (2,))
                uses(b, h)
                if h == 0 and b >= 0: publish(b + 2)
                if h == 2: uses(nb, 0, (2,))
            else:
                uses(b, h)
                if h == 2 and b >= 0: publish(b + 2)
            if newv:
                vq.extend(newv); prevkey = (nb, h)
    pubflush()

def kprio(a, opt, i):
    if opt.stag:
        p = int(str(opt.stag)[i])
        if i == 0 or p != int(str(opt.stag)[i - 1]):
            a(f"s_cmp_lt_u32 s45, 2\ns_cbranch_scc1 L_kp{i}\ns_setprio {p}\nL_kp{i}:")
        return
    p = max(opt.ktop - i, opt.kmin)
    if opt.klead:
        a(f"s_setprio {max(p,0)}\ns_cbranch_scc0 L_kp{i}\ns_setprio {min(max(p,0)+1,3)}\nL_kp{i}:")
    else:
        a(f"s_setprio {max(p,0)}")

def lane_table():
    rows = []
    misc = {0: ZD-511, 1: ZD-512, 2: ZD-513, 3: ZD-514, 16: Z3[1]-127, 32: ZX-1027, 33: ZX-1028, 34: Z2[3]-63, 48: ZD-509, 52: ZD-510}
    for l in range(64):
        r, g = l & 15, l >> 4
        t = []
        for wdt, lo in ((3, 11), (5, 6), (7, 5), (9, 4)):
            for w in range(4):
                d = 0
                for hf in range(2):
                    if r + lo <= 8 * g + 2 * w + hf <= r + lo + wdt - 1: d |= 0x3F80 << (16 * hf)
                t.append(d)
        kb = (3 - (r & 3)) * KCP - 8 * (r >> 2)
        sel = (l & 1) + 2 * (g >> 1)
        cm = 32 * (g & 1) + (r & 14)
        t += [32 * r + 16 * g, kb + 16 * g, kb + 8 * g, 1024 * (g >> 1) + 32 * r + 16 * (g & 1)]
        t += [16 * l, 1072 - 16 * l, 32 * l, 2 * ([655, 783, 976, 895][sel] - 8) - cm]
        t += [16 * l, 2 * misc.get(l, DUMMY), 2 * ([655, 783, 976, 895][sel] - 8) - cm, 2 * ([848, 719, 1008, 927][sel] - 8) - cm]
        t += [0, 0, 0, 0]
        rows.append([x & 0xFFFFFFFF for x in t])
    return [rows[l][4 * c:4 * c + 4] for c in range(8) for l in range(64)]

def pack64(vals, bits):
    c = 0
    for i, v in enumerate(vals): c |= v << (bits * i)
    return c & 0xffffffff, c >> 32

def generate(opt):
    a = Asm()
    hdr = open("cdna_kernels/" + NAME + ".s.ref").read().split("\n")
    top = [l for l in hdr if l.startswith(";") and "@launch" not in l and "Override launch" not in l and "grid=ceil" not in l]
    out = "\n".join(top) + "\n"
    out += f"; @launch grid=(200,1,1) block=({768 + 64 * opt.nm},1,1) lds={LDS_TOTAL}\n"
    out += f""".amdgcn_target "amdgcn-amd-amdhsa--gfx950"
.text
.globl {NAME}_kernel
.p2align 8
.type {NAME}_kernel,@function
{NAME}_kernel:
"""
    stamp(a, opt, 0)
    if opt.stamps: a("s_memrealtime s[100:101]")
    a(f"""
s_and_b32 s3, s2, 7
s_mul_i32 s3, s3, 25
s_lshr_b32 s4, s2, 3
s_add_u32 s3, s3, s4
s_cmp_ge_u32 s3, 99
s_cselect_b32 s6, 56, 0
s_load_dwordx16 s[16:31], s[0:1], s6
s_load_dwordx2 s[32:33], s[0:1], 112
""")
    if opt.codepf == 1:
        a(f"""
s_getpc_b64 s[52:53]
L_pc:
v_lshlrev_b32 v6, 7, v0
v_cmp_gt_u32 vcc, L_codeend-L_pc, v6
s_and_saveexec_b64 s[12:13], vcc
s_cbranch_execz L_nocpf
global_load_dword v102, v6, s[52:53]
L_nocpf:
s_mov_b64 exec, s[12:13]
s_cmp_ge_u32 s3, 99
""")
    a(f"""
v_lshrrev_b32 v2, 6, v0
s_cselect_b32 s7, 9, 0
s_cselect_b32 s48, 1152, 0
v_readfirstlane_b32 s44, v2
s_cmp_ge_u32 s2, 200
s_cbranch_scc1 L_end
s_cmp_ge_u32 s3, 198
s_cbranch_scc1 L_end
v_and_b32 v1, 63, v0
s_add_u32 s44, s44, {16 - opt.nm}
s_and_b32 s44, s44, 15
{"s_cmp_ge_u32 s44, 14" if opt.nm == 2 else ""}
{"s_cselect_b32 s8, 2, 0" if opt.nm == 2 else ""}
{"s_sub_u32 s44, s44, s8" if opt.nm == 2 else ""}
s_mul_i32 s4, s3, 5958
s_lshr_b32 s4, s4, 16
s_mul_i32 s5, s4, 11
s_sub_u32 s59, s3, s5
s_mul_i32 s5, s59, 6
s_min_u32 s5, s5, 58
s_sub_u32 s4, s4, s7
s_lshl_b32 s4, s4, 6
s_add_u32 s5, s5, s4
s_setprio 3
""")
    if opt.gate:
        a(f"""
v_mov_b32 v8, 0
v_mov_b32 v9, 0
v_mov_b32 v10, 0
v_mov_b32 v11, 0
v_lshlrev_b32 v7, 4, v1
ds_write_b128 v7, v[8:11] offset:{FL}
s_waitcnt lgkmcnt(0)
s_barrier
""")
    a(f"""
s_cmp_ge_u32 s44, 12
{"s_cbranch_scc0 L_comp" if opt.dry else "s_cbranch_scc1 L_mem0"}
""")
    if opt.dry:
        a("""
s_mov_b64 exec, 0
s_setprio 0
s_mov_b32 s62, 0
s_mov_b32 s45, 0
s_cmp_eq_u32 s44, 13
s_cbranch_scc1 L_proL
s_cmp_eq_u32 s44, 14
s_cbranch_scc1 L_dry2
s_cmp_eq_u32 s44, 15
s_cbranch_scc1 L_dry3
s_branch L_dry0
L_comp:
""")
    a(f"""
s_sub_u32 s45, s44, 6
s_cmp_ge_u32 s44, 6
s_cselect_b32 s45, s45, s44
s_cselect_b32 s62, 1, 0
s_add_u32 s46, s5, s45
s_lshl_b32 s8, s46, 8
v_lshl_add_u32 v20, v1, 2, s8
s_lshl_b32 s8, s46, 1
s_and_b32 s8, s8, -4
s_waitcnt lgkmcnt(0)
global_load_dword v{vP}, v20, s[18:19]
global_load_dword v{vP+1}, v20, s[20:21]
global_load_dword v{vP+2}, v20, s[22:23]
global_load_dword v{vP+3}, v20, s[24:25]
s_load_dword s40, s[26:27], s8
s_load_dword s41, s[28:29], s8
""")
    if opt.codepf == 3:
        a(("""
s_cmp_lt_u32 s44, 10
s_cbranch_scc1 L_nocpf
s_getpc_b64 s[52:53]
L_pc:
v_subrev_u32 v6, CPFBASE, v0
v_lshlrev_b32 v6, 7, v6
v_min_u32 v6, L_codeend-L_pc-4, v6
global_load_dword v87, v6, s[52:53]
L_nocpf:
""").replace("CPFBASE", str(640 + 64 * opt.nm)))
    if opt.gate:
        a(f"""
v_lshlrev_b32 v21, 2, v1
v_mov_b32 v{vONE}, 1
ds_add_u32 v21, v{vONE} offset:{FL + 768 - 65536 if False else 0}
""".replace("v21, v2 offset:0", "v21, v2 offset:%d" % (FL + 768)))
    if opt.stamps == 1: stamp(a, opt, 14)

    stamp(a, opt, 1)
    if opt.bpos == -2: a("s_barrier")
    sl0 = pack64([0,1,2,3,4,5,6,7,8,8,10,11,11,11,14,15], 4)
    a(f"""
s_mul_i32 s61, s45, {CHB}
s_mul_i32 s60, s62, {STGW}
s_add_u32 s60, s60, s61
s_mov_b32 m0, s60
s_movk_i32 s9, {PITCH}
s_mov_b32 s10, {sl0[0]:#x}
s_mov_b32 s11, {sl0[1]:#x}
v_and_b32 v20, 15, v1
v_and_b32 v21, 48, v1
v_add_u32 v24, s60, v21
v_mad_u32_u24 v{vSR}, v20, s9, v24
v_add_u32 v{vSL1}, {16*PITCH}, v24
v_lshlrev_b32 v25, 2, v20
v_lshrrev_b64 v[26:27], v25, s[10:11]
v_and_b32 v26, 15, v26
v_mad_u32_u24 v{vSL0}, v26, s9, v24
v_lshlrev_b32 v{vTA}, 4, v1
v_add_u32 v{vTA}, {TABL}, v{vTA}
s_mov_b32 s49, 0x01000c0c
s_cmp_lg_u32 s62, 0
s_cselect_b32 s49, 0x03020c0c, s49
s_mov_b32 s12, 0xbfb8aa3b
s_mov_b32 s13, 0x3e22f983
s_mov_b32 s14, 0x41000000
s_mov_b32 s15, 0x43800000
s_mov_b32 s63, 0x3fb8aa3b
s_mov_b32 s35, 0x7fff7fff
s_mov_b32 s34, 0x40000
v_mov_b32 v{vONE}, 1
s_mul_i32 s57, s45, {KCH}
s_add_u32 s57, s57, {KA}
s_cmp_lg_u32 s62, 0
s_cselect_b32 s58, s57, s61
s_mul_i32 s56, s45, {UCH}
s_add_u32 s56, s56, {UB}
s_lshl_b32 s8, s45, 7
s_add_u32 s8, s8, {FL}
v_mov_b32 v{vCF}, s8
s_lshl_b32 s8, s62, 10
v_add_u32 v14, s8, v{vTA}
{"s_barrier" if opt.bpos == -3 else ""}
s_waitcnt lgkmcnt(0)
s_lshl_b32 s8, s40, 16
s_and_b32 s40, s40, 0xffff0000
s_lshl_b32 s9, s41, 16
s_and_b32 s41, s41, 0xffff0000
s_bitcmp0_b32 s46, 0
s_cselect_b32 s40, s8, s40
s_cselect_b32 s41, s9, s41
v_mov_b32 v{vDT}, s63
v_mov_b32 v{vDSK}, 0
v_mul_f32 v{vDT}, s40, v{vDT}
v_writelane_b32 v{vDSK}, s41, 0
v_exp_f32 v{vDT}, v{vDT}
s_cmp_lg_u32 s62, 0
""")
    if opt.bpos == -1: a("s_barrier")
    stamp(a, opt, 2)
    if opt.codepf == 3:
        a("s_waitcnt vmcnt(1)\ns_cmp_ge_u32 s44, 10\ns_cbranch_scc1 L_pw\ns_waitcnt vmcnt(0)\nL_pw:\ns_cmp_lg_u32 s62, 0")
    else:
        a("s_waitcnt vmcnt(0)")
    stamp(a, opt, 3)
    if opt.chain: a(f"ds_write_b32 v{vCF}, v{vONE} offset:96")
    kprio(a, opt, 0)
    if opt.bpos == 0: a("s_barrier")
    MH = "v_mfma_f32_16x16x32_f16"
    AB, CC, TA, TB, zf, wf, Zf, w2, w4, MX, MT = 52, 54, 56, 58, 60, 62, 64, 66, 68, 70, 71
    hz1, hz2, hz4, hZ1, hZ2, hZ4 = 88, 89, 90, 91, 92, 93
    RR = {j: 94 + j for j in range(1, 17)}
    LL = {}
    free = list(range(111, 128))
    def hmul(dst, x, m, conj=False):
        if not conj:
            a(f"v_pk_mul_f16 v{dst}, v{x}, v{m} op_sel:[0,0] op_sel_hi:[0,1]")
            a(f"v_pk_fma_f16 v{dst}, v{x}, v{m}, v{dst} op_sel:[1,1,0] op_sel_hi:[1,0,1] neg_lo:[0,1,0]")
        else:
            a(f"v_pk_mul_f16 v{dst}, v{x}, v{m} op_sel:[0,0] op_sel_hi:[0,1] neg_hi:[0,1]")
            a(f"v_pk_fma_f16 v{dst}, v{x}, v{m}, v{dst} op_sel:[1,1,0] op_sel_hi:[1,0,1]")
    dpp = lambda c, rm="0xf": f"v_max_u32_dpp v{MX}, v{MX}, v{MX} {c} row_mask:{rm} bank_mask:0xf"
    a(f"""
v_perm_b32 v{TA}, v{vP}, v{vP}, s49
v_and_b32 v{MX}, s35, v{vP+2}
v_mul_f32 v{TA}, s63, v{TA}
v_and_b32 v{MT}, s35, v{vP+3}
v_exp_f32 v{TA}, v{TA}
v_pk_max_u16 v{MX}, v{MX}, v{MT}
v_perm_b32 v{TA+1}, v{vP+1}, v{vP+1}, s49
v_lshlrev_b32 v{MT}, 16, v{MX}
v_cvt_pk_bf16_f32 v{vDT}, v{vDT}, v{TA}
v_max_u32 v{MX}, v{MX}, v{MT}
v_and_b32 v{TA}, 0xffff0000, v{vDT}
v_lshlrev_b32 v{vDT}, 16, v{vDT}
{dpp("row_shr:1")}
v_pk_mul_f32 {R(AB,2)}, {R(TA,2)}, {R(vDT,2)} op_sel_hi:[1,0]
v_pk_mul_f32 {R(AB,2)}, {R(AB,2)}, s[12:13]
{dpp("row_shr:2")}
v_pk_mul_f32 {R(TA,2)}, {R(AB,2)}, s[14:15] op_sel_hi:[1,0]
v_pk_mul_f32 {R(TB,2)}, {R(AB,2)}, s[14:15] op_sel:[0,1] op_sel_hi:[1,1]
{dpp("row_shr:4")}
v_fract_f32 v{AB+1}, v{AB+1}
v_exp_f32 v{AB}, v{AB}
{dpp("row_shr:8")}
v_cos_f32 v{zf}, v{AB+1}
v_sin_f32 v{zf+1}, v{AB+1}
{dpp("row_bcast:15", "0xa")}
v_fract_f32 v{TB+1}, v{TB+1}
v_pk_mul_f32 {R(zf,2)}, {R(zf,2)}, {R(AB,2)} op_sel_hi:[1,0]
{dpp("row_bcast:31", "0xc")}
v_exp_f32 v{TB}, v{TB}
v_cos_f32 v{Zf}, v{TB+1}
v_readlane_b32 s10, v{MX}, 63
v_sin_f32 v{Zf+1}, v{TB+1}
v_fract_f32 v{TA+1}, v{TA+1}
v_perm_b32 v{CC}, v{vP+2}, v{vP+2}, s49
s_and_b32 s10, s10, 0x7f800000
s_sub_u32 s8, 0x7f000000, s10
s_add_u32 s10, s10, 0x00800000
v_pk_mul_f32 {R(Zf,2)}, {R(Zf,2)}, {R(TB,2)} op_sel_hi:[1,0]
v_perm_b32 v{CC+1}, v{vP+3}, v{vP+3}, s49
v_exp_f32 v{TA}, v{TA}
v_cos_f32 v{wf}, v{TA+1}
v_sin_f32_e64 v{wf+1}, -v{TA+1}
v_pk_mul_f32 {R(CC,2)}, {R(CC,2)}, s[8:9] op_sel_hi:[1,0]
v_cvt_pk_f16_f32 v{hz1}, v{zf}, v{zf+1}
v_pk_mul_f32 {R(wf,2)}, {R(wf,2)}, {R(TA,2)} op_sel_hi:[1,0]
v_cvt_pk_f16_f32 v{hZ1}, v{Zf}, v{Zf+1}
v_mul_f32 v{vC2}, s10, v{vDT}
s_cmp_lg_u32 s62, 0
""")
    if opt.bpos == 1: a("s_barrier")
    if opt.go == 1: a(f"ds_write_b32 v{vCF}, v{vONE} offset:96")
    if opt.stamps == 1: stamp(a, opt, 10)
    pend = []
    def flush():
        for t, slot in pend: a(f"ds_write_addtid_b32 v{t} offset:{PITCH*slot}")
        pend.clear()
    def put(reg, slot):
        pend.append((reg, slot))
        if len(pend) == opt.batch: flush()
    rot = [0]
    def tmp():
        r = 120 + rot[0] % 8; rot[0] += 1; return r
    keep = {0: 111, 2: 112, 4: 113, 6: 114, 256: 115, 260: 116, 512: 117, 768: 118, 1024: 119}
    def L(b, src, m, slot, conj=False):
        dst = keep.get(b) or tmp()
        hmul(dst, src, m, conj); put(dst, slot)
    a(f"v_cvt_pk_f16_f32 v{keep[0]}, v{CC}, v{CC+1}"); put(keep[0], 0)
    hmul(hz2, hz1, hz1)
    a(f"v_cvt_pk_f16_f32 v{RR[1]}, v{wf}, v{wf+1}")
    L(1, keep[0], hz1, 1); L(2, keep[0], hz2, 2)
    hmul(hz4, hz2, hz2)
    L(3, keep[2], hz1, 3); L(4, keep[0], hz4, 4); L(5, keep[4], hz1, 5); L(6, keep[4], hz2, 6); L(7, keep[6], hz1, 7)
    L(256, keep[0], hZ1, 8); L(258, keep[2], hZ1, 10); L(260, keep[4], hZ1, 11); L(262, keep[6], hZ1, 14)
    L(264, keep[256], RR[1], 15, conj=True)
    flush()
    for k in range(4): a(f"ds_read_b128 {R(vLF+4*k,4)}, v{vSL0} offset:{64*k}")
    if opt.bpos == 2: a("s_barrier")
    if opt.k4 < 2: kprio(a, opt, 1)
    hmul(hZ2, hZ1, hZ1)
    cmul(a, w2, wf, wf)
    L(512, keep[0], hZ2, 0); L(516, keep[4], hZ2, 1); L(768, keep[256], hZ2, 4); L(772, keep[260], hZ2, 5)
    hmul(hZ4, hZ2, hZ2)
    cmul(a, w4, w2, w2)
    L(1024, keep[0], hZ4, 8); L(1280, keep[256], hZ4, 12); L(1536, keep[512], hZ4, 9); L(1792, keep[768], hZ4, 13); L(2048, keep[1024], hZ4, 6)
    flush()
    for k in range(4): a(f"ds_read_b128 {R(vLF+16+4*k,4)}, v{vSR} offset:{64*k}")
    if opt.stamps == 1: stamp(a, opt, 11)
    if opt.bpos == 3: a("s_barrier")
    if opt.go == 2: a(f"ds_write_b32 v{vCF}, v{vONE} offset:96")
    if opt.k4: kprio(a, opt, 2 if opt.k4 == 1 else 1)
    t = tmp()
    a(f"v_mov_b32 v{t}, 0x3c00"); put(t, 0); put(RR[1], 1)
    a(f"v_cvt_pk_f16_f32 v{RR[2]}, v{w2}, v{w2+1}"); put(RR[2], 2)
    a(f"v_cvt_pk_f16_f32 v{RR[4]}, v{w4}, v{w4+1}"); put(RR[4], 4)
    hmul(RR[3], RR[1], RR[2]); put(RR[3], 3)
    hmul(RR[8], RR[4], RR[4]); put(RR[8], 8)
    for j in (5, 6, 7): hmul(RR[j], RR[j-4], RR[4]); put(RR[j], j)
    hmul(RR[16], RR[8], RR[8])
    if opt.rhi:
        a(f"ds_write_addtid_b32 v{RR[16]} offset:{PITCH*16}")
    for j in range(9, 16):
        hmul(RR[j], RR[j-8], RR[8]); put(RR[j], j)
        if j == 11 and not opt.k4: kprio(a, opt, 2)
    flush()
    if opt.rhi:
        WF = 104
        if opt.go == 3: a(f"ds_write_b32 v{vCF}, v{vONE} offset:96")
        a.label("L_tw")
        a(f"ds_read_b32 v13, v{vCF} offset:100")
        a(f"ds_read_b128 v[88:91], v{vTA}")
        a(f"ds_read_b128 v[92:95], v14 offset:1024")
        for k in range(4):
            a(f"ds_read_b128 {R(vRF+4*k,4)}, v{vSR} offset:{64*k}")
            a(f"ds_read_b128 {R(WF+4*k,4)}, v{vSL1} offset:{64*k}")
        if opt.stamps == 1: stamp(a, opt, 12, True)
        if opt.k4: kprio(a, opt, 3 if opt.k4 == 1 else 2)
        else: a(f"s_setprio {opt.xprio}")
        def mm(n, k, m):
            dd = vD + 8 * m + 4 * n
            src = (vRF if n == 0 else WF) + 4 * k
            a(f"{MH} {R(dd,4)}, {R(vLF+16*m+4*k,4)}, {R(src,4)}, {'0' if k == 0 else R(dd,4)}")
        for k in range(4):
            if opt.k4 >= 2 and k == opt.k4: kprio(a, opt, 3)
            a(f"s_waitcnt lgkmcnt({6-2*k})")
            if k == 0:
                a("v_cmp_gt_u32 vcc, 4, v13\ns_cbranch_vccnz L_tws\nL_twd:")
                STUBS.append("L_tws:\ns_sleep 1\ns_waitcnt lgkmcnt(0)\ns_sub_u32 s34, s34, 1\ns_cbranch_scc0 L_tw\ns_branch L_twd")
            adds = [[(vU, 88, 56), (vKF, 89, 57)], [(vKT, 90, 57), (vPW0, 91, 60)], [(vPA, 92, 61), (vAC, 95, 57)], [(vKD, 93, 57), (vRD, 94, 58)]][k]
            for dd_, ss_, sg_ in adds: a(f"v_add_u32 v{dd_}, s{sg_}, v{ss_}")
            for e in range(4):
                t = tmp(); x = vRF + 4 * k + e; m_ = WF + 4 * k + e
                a(f"v_pk_mul_f16 v{t}, v{x}, v{m_} op_sel:[0,0] op_sel_hi:[0,1]")
                a(f"v_pk_fma_f16 v{m_}, v{x}, v{m_}, v{t} op_sel:[1,1,0] op_sel_hi:[1,0,1] neg_lo:[0,1,0]")
                if e == 0: mm(0, k, 0)
                if e == 1 and k > 0: mm(1, k - 1, 0)
                if e == 2: mm(0, k, 1)
                if e == 3 and k > 0: mm(1, k - 1, 1)
        a("s_nop 1")
        mm(1, 3, 0); mm(1, 3, 1)
        a(f"s_setprio {opt.xprio}\ns_nop 0" if opt.k4 else "s_nop 1")
    else:
        for k in range(4): a(f"ds_read_b128 {R(vRF+4*k,4)}, v{vSR} offset:{64*k}")
        put(RR[16], 0)
        for j in range(17, 32):
            t = tmp()
            hmul(t, RR[j-16], RR[16]); put(t, j - 16)
            if j == 19:
                a(f"s_waitcnt lgkmcnt({4 - len(pend)})")
            if 19 <= j < 27:
                k, m = (j - 19) // 2, (j - 19) % 2
                dd = vD + 8 * m
                a(f"{MH} {R(dd,4)}, {R(vLF+16*m+4*k,4)}, {R(vRF+4*k,4)}, {'0' if k == 0 else R(dd,4)}")
        flush()
        if opt.stamps == 1: stamp(a, opt, 12, True)
        for k in range(4): a(f"ds_read_b128 {R(vRF+4*k,4)}, v{vSR} offset:{64*k}")
        a(f"s_setprio {opt.xprio}")
        for k in range(4):
            a(f"s_waitcnt lgkmcnt({3-k})")
            for m in range(2):
                dd = vD + 8 * m + 4
                a(f"{MH} {R(dd,4)}, {R(vLF+16*m+4*k,4)}, {R(vRF+4*k,4)}, {'0' if k == 0 else R(dd,4)}")
    a(f"""
ds_write_b128 v{vPW0}, {R(vD,4)}
s_cmp_lg_u32 s62, 0
s_cbranch_scc1 L_xL
ds_write_addtid_b32 v{vD+8} offset:2048
ds_write_addtid_b32 v{vD+10} offset:2560
{"ds_write_addtid_b32 v%d offset:2816" % (vD+9) if opt.lall else "s_nop 0"}
s_nop 1
ds_write_b128 v{vPW0}, {R(vD+4,4)} offset:512
ds_write_addtid_b32 v{vD+12} offset:2304
{"ds_write_addtid_b32 v%d offset:3072" % (vD+13) if opt.lall else ""}
ds_write_b32 v{vCF}, v{vONE}
""")
    if opt.stamps == 1: stamp(a, opt, 13)
    wait_flags(a, [(20, 4)], "pxd")
    stamp(a, opt, 4)
    A_, B_, Pv, E, O, E2, O2 = 88, 100, 96, 108, 112, 116, 120
    d = lambda k: A_ + k
    a(f"""
ds_read_b128 {R(A_+4,4)}, v{vRD} offset:16
ds_read_b128 {R(B_+4,4)}, v{vRD} offset:{STGW+16}
ds_read_b128 {R(A_,4)}, v{vRD}
ds_read_b128 {R(B_,4)}, v{vRD} offset:{STGW}
{"" if opt.lall else "ds_read_addtid_b32 v20 offset:%d" % (STGW+2048)}
{"" if opt.lall else "ds_read_addtid_b32 v21 offset:%d" % (STGW+2304)}
s_waitcnt lgkmcnt({2 if opt.lall else 4})
v_pk_add_f32 {R(A_+4,2)}, {R(A_+4,2)}, {R(B_+4,2)}
v_pk_add_f32 {R(A_+6,2)}, {R(A_+6,2)}, {R(B_+6,2)}
v_pk_mul_f32 {R(A_+4,2)}, {R(A_+4,2)}, {R(vC2,2)} op_sel_hi:[1,0]
v_pk_mul_f32 {R(A_+6,2)}, {R(A_+6,2)}, {R(vC2,2)} op_sel_hi:[1,0]
s_waitcnt lgkmcnt({0 if opt.lall else 2})
v_pk_add_f32 {R(A_,2)}, {R(A_,2)}, {R(B_,2)}
v_pk_add_f32 {R(A_+2,2)}, {R(A_+2,2)}, {R(B_+2,2)}
v_fma_f32 v{A_}, v{A_}, v{vC2}, v{vDSK}
v_mul_f32 v{A_+1}, v{A_+1}, v{vC2}
v_pk_mul_f32 {R(A_+2,2)}, {R(A_+2,2)}, {R(vC2,2)} op_sel_hi:[1,0]
v_mov_b32_dpp v{Pv}, v{d(5)} wave_shr:1 row_mask:0xf bank_mask:0xf bound_ctrl:0
v_mov_b32_dpp v{Pv+1}, v{d(6)} wave_shr:1 row_mask:0xf bank_mask:0xf bound_ctrl:0
v_mov_b32_dpp v{Pv+2}, v{d(7)} wave_shr:1 row_mask:0xf bank_mask:0xf bound_ctrl:0
v_cvt_pk_bf16_f32 v{E}, v{d(7)}, v{d(6)}
v_cvt_pk_bf16_f32 v{E+1}, v{d(5)}, v{d(4)}
v_cvt_pk_bf16_f32 v{E+2}, v{d(3)}, v{d(2)}
v_cvt_pk_bf16_f32 v{E+3}, v{d(1)}, v{d(0)}
ds_write_b128 v{vKD}, {R(E,4)}
v_cvt_pk_bf16_f32 v{O}, v{d(6)}, v{d(5)}
v_cvt_pk_bf16_f32 v{O+1}, v{d(4)}, v{d(3)}
v_cvt_pk_bf16_f32 v{O+2}, v{d(2)}, v{d(1)}
v_cvt_pk_bf16_f32 v{O+3}, v{d(0)}, v{Pv+2}
ds_write_b128 v{vKD}, {R(O,4)} offset:{KCP}
v_mov_b32 v{E2}, v{E+1}
v_mov_b32 v{E2+1}, v{E+2}
v_mov_b32 v{E2+2}, v{E+3}
v_cvt_pk_bf16_f32 v{E2+3}, v{Pv+2}, v{Pv+1}
ds_write_b128 v{vKD}, {R(E2,4)} offset:{2*KCP}
v_mov_b32 v{O2}, v{O+1}
v_mov_b32 v{O2+1}, v{O+2}
v_mov_b32 v{O2+2}, v{O+3}
v_cvt_pk_bf16_f32 v{O2+3}, v{Pv+1}, v{Pv}
ds_write_b128 v{vKD}, {R(O2,4)} offset:{3*KCP}
""")
    if not opt.lall: a(f"""
s_waitcnt lgkmcnt(4)
v_add_f32 v20, v20, v{vD+9}
v_add_f32 v21, v21, v{vD+13}
v_mul_f32 v20, v20, v{vC2}
v_mul_f32 v21, v21, v{vC2}
v_cvt_pk_bf16_f32 v20, v20, v21
""")
    for sg in range(0 if opt.lall else 4):
        a(f"ds_write_b16 v{vAC}, v20 offset:{sg*(KCP-2)+16}")
        a(f"ds_write_b16_d16_hi v{vAC}, v20 offset:{sg*(KCP-2)}")
    a(f"ds_write_b32 v{vCF}, v{vONE} offset:8")
    stamp(a, opt, 5)
    SD = Stream(a)
    F = {16 + 32 * s: Frag("F", 16 + 32 * s, dF + 4 * s) for s in range(16)}
    for k in range(opt.pre):
        SD.load(F[16 + 32 * k] if opt.blk else F[16 + 32 * (k // 2) + 256 * (k % 2)])
    a(f"s_setprio {dprio(opt, 0)}")
    if opt.stag: a(f"s_cmp_ge_u32 s45, 2\ns_cbranch_scc1 L_dl\ns_setprio 0\nL_dl:")
    wait_flags(a, [(18, 16)] if opt.defer else [(18, 16), (19, 12)], "d")
    SD.done = SD.lds_n
    stamp(a, opt, 7, True)
    emit_dense(a, opt, SD, F)
    a("s_branch L_fin")
    a.label("L_xL")
    a(f"""
{"s_nop 0" if opt.lall else "ds_write_addtid_b32 v%d offset:2048" % (vD+9)}
v_mov_b32 v20, s61
s_nop 2
ds_write_b128 v{vPW0}, {R(vD+4,4)} offset:512
{"" if opt.lall else "ds_write_addtid_b32 v%d offset:2304" % (vD+13)}
ds_write_b32 v{vCF}, v{vONE} offset:4
s_mov_b32 m0, s61
""")
    if opt.stamps == 1: stamp(a, opt, 13)
    wait_flags(a, [(21, 0)], "pxl")
    stamp(a, opt, 4)
    n0, n1 = vD + 8, vD + 12
    a(f"""
ds_read_addtid_b32 v24 offset:2048
ds_read_addtid_b32 v25 offset:2304
ds_read_addtid_b32 v26 offset:2560
{"ds_read_addtid_b32 v27 offset:2816" if opt.lall else ""}
{"ds_read_addtid_b32 v28 offset:3072" if opt.lall else ""}
ds_read_b128 v[32:35], v20 offset:2032
ds_read_b128 v[36:39], v20 offset:{2032+STGW}
s_mov_b32 s8, -2
s_waitcnt lgkmcnt(2)
v_add_f32 v24, v24, v{n0}
v_add_f32 v25, v25, v{n1}
v_add_f32 v26, v26, v{n0+2}
v_mul_f32 v24, v24, v{vC2}
v_mul_f32 v25, v25, v{vC2}
v_mul_f32 v26, v26, v{vC2}
v_cvt_pk_bf16_f32 v40, v24, v25
v_mov_b32_dpp v42, v24 quad_perm:[0,0,0,0] row_mask:0x4 bank_mask:0xf
""")
    for sg in range(4):
        a(f"ds_write_b16_d16_hi v{vAC}, v40 offset:{sg*(KCP-2)}")
    if opt.lall:
        a(f"""
v_add_f32 v27, v27, v{n0+1}
v_add_f32 v28, v28, v{n1+1}
v_mul_f32 v27, v27, v{vC2}
v_mul_f32 v28, v28, v{vC2}
v_cvt_pk_bf16_f32 v41, v27, v28
""")
        for sg in range(4):
            a(f"ds_write_b16 v{vRD}, v41 offset:{sg*(KCP-2)+16}")
            a(f"ds_write_b16_d16_hi v{vRD}, v41 offset:{sg*(KCP-2)}")
    a(f"""
s_waitcnt lgkmcnt({12 if opt.lall else 4})
v_mov_b32_dpp v42, v26 quad_perm:[0,1,2,3] row_mask:0x2 bank_mask:0xf
v_add_f32 v33, v33, v37
v_pk_add_f32 v[34:35], v[34:35], v[38:39]
v_mul_f32 v33, v33, v{vC2}
v_pk_mul_f32 v[34:35], v[34:35], {R(vC2,2)} op_sel_hi:[1,0]
s_mov_b32 exec_lo, s8
s_mov_b32 exec_hi, s8
""")
    for sg in range(4):
        a(f"ds_write_b16 v{vAC}, v40 offset:{sg*(KCP-2)+16}")
    a(f"""
s_mov_b64 exec, -1
v_mov_b32_dpp v42, v33 quad_perm:[0,1,2,3] row_mask:0x8 bank_mask:0x1
v_mov_b32_dpp v42, v34 quad_perm:[0,1,2,3] row_mask:0x8 bank_mask:0x2
v_mov_b32_dpp v42, v35 quad_perm:[0,1,2,3] row_mask:0x1 bank_mask:0xf
v_subrev_u32 v19, 4096, v{vTA}
v_cvt_pk_bf16_f32 v42, v42, v42
""")
    for sg in range(4):
        a(f"ds_write_b16 v{vAM}, v42 offset:{sg*(KCP-2)}")
    a(f"ds_write_b32 v{vCF}, v{vONE} offset:12")
    stamp(a, opt, 5)
    SL = Stream(a)
    LK = level_frags()
    for k in LORDER[:opt.prel]:
        SL.load(LK[k])
    a(f"s_setprio {int(str(opt.llist)[0]) if opt.llist else min(dprio(opt, 0) + opt.lup, 3)}")
    if opt.stag: a(f"s_cmp_ge_u32 s45, 2\ns_cbranch_scc1 L_ll\ns_setprio 0\nL_ll:")
    wait_flags(a, [(16, 16), (17, 8)], "l")
    SL.done = SL.lds_n
    stamp(a, opt, 7, True)
    for j, wdt in enumerate((3, 5, 7, 9)):
        SL.lds(f"ds_read_b128 {R(BOX[wdt],4)}, v19 offset:{1024*j}")
    if not opt.nol: emit_level(a, opt, SL, LK)
    a("s_branch L_fin")
    NM = opt.nm; TP = 8 // NM; S2 = NM == 2 or opt.st2
    mT, mIN, mSO = 88, 96, 104
    a(f"""
{".p2align 6" if opt.malign else ""}
L_mem0:
s_sub_u32 s45, s44, 12
v_mov_b32 v8, 0
v_mov_b32 v9, 0
v_mov_b32 v10, 0
v_mov_b32 v11, 0
v_lshlrev_b32 v17, 4, v1
ds_write_b128 v17, v[8:11] offset:{FL}
v_min_u32 v5, 5, v1
v_mul_u32_u24 v16, {CHB}, v5
ds_write_b32 v16, v8 offset:{OFLO}
ds_write_b32 v16, v8 offset:{OFLO + 256}
s_mul_i32 s8, s45, {6*KCP}
s_add_u32 s8, s8, {KA}
v_add_u32 v7, s8, v17
""")
    for k in range(6): a(f"ds_write_b128 v7, v[8:11] offset:{KCP*k + 1024}")
    a(f"""
v_lshrrev_b32 v7, 2, v1
v_min_u32 v7, 5, v7
v_mul_u32_u24 v7, {KCP}, v7
v_and_b32 v6, 48, v17
v_add3_u32 v7, v7, v6, s8
ds_write_b128 v7, v[8:11]
v_lshrrev_b32 v7, 5, v1
s_lshl_b32 s8, s45, 1
v_add_u32 v7, s8, v7
v_min_u32 v7, 5, v7
v_mul_u32_u24 v7, {UCH}, v7
v_and_b32 v6, 31, v1
v_lshl_add_u32 v6, v6, 4, v7
v_add_u32 v6, {UB}, v6
ds_write_b128 v6, v[8:11]
s_getpc_b64 s[52:53]
L_pc2:
s_add_u32 s52, s52, L_table-L_pc2
s_addc_u32 s53, s53, 0
s_lshl_b32 s8, s45, 11
v_add_u32 v17, s8, v17
s_add_u32 s8, s8, {BOXL}
s_mov_b32 m0, s8
v_lshlrev_b32 v6, 7, v5
{"global_load_lds_dwordx4 v17, s[52:53]" if opt.tearly else ""}
{"global_load_lds_dwordx4 v17, s[52:53] offset:1024" if opt.tearly else ""}
v_and_b32 v4, 15, v1
v_lshrrev_b32 v15, 4, v1
""")
    ts = 1 if opt.tint else TP
    tj = NM if opt.tint else 1
    a(f"""
s_lshl_b32 s47, s5, 1
s_mul_i32 s9, s45, {ts*256*1152}
s_add_u32 s9, s9, s47
v_mul_u32_u24 v19, {4*1152}, v1
s_add_u32 s48, s48, s47
s_mov_b32 s34, {2048*2304}
s_mov_b32 s35, 0x00020000
s_mov_b32 s50, 0x05040100
s_mov_b32 s51, 0x07060302
s_mov_b32 s36, 0x40000
v_lshl_add_u32 v4, v4, 2, v15
v_mul_u32_u24 v18, {4*2304}, v4
s_mul_i32 s8, s45, {ts*512}
s_add_u32 s8, s8, {UB + 512}
v_lshl_add_u32 v3, v1, 3, s8
v_add_u32 v18, s48, v18
s_mul_i32 s8, s45, {ts*4}
s_add_u32 s8, s8, {FL + 16}
v_lshl_add_u32 v14, v5, 7, s8
v_mov_b32 v2, 1
s_and_b32 s8, s45, {1 if S2 else 3}
s_mul_i32 s57, s8, {4608 if S2 else 2304}
s_mov_b32 s56, 1
s_lshr_b32 s8, s8, {0 if S2 else 1}
s_lshl_b32 s8, s8, 8
s_add_u32 s8, s8, {OUTO}
v_lshl_add_u32 v4, v1, 2, s8
""")
    if opt.mord:
        for k in range(NM - 1):
            a(f"s_cmp_eq_u32 s45, {k}\ns_cbranch_scc1 L_mp\ns_setprio {2-k}")
        a.label("L_mp")
    a(f"""
s_waitcnt lgkmcnt(0)
s_mov_b32 s18, {2048*1152}
s_mov_b32 s19, 0x00020000
""")
    if opt.stamps == 1: stamp(a, opt, 14)
    a("s_barrier")
    def chainwait(tag):
        a(f"""
v_mov_b32 v6, {FL + 96 + 128*opt.trig}
L_chw{tag}:
ds_read_b32 v7, v6
s_waitcnt lgkmcnt(0)
s_sub_u32 s36, s36, 1
s_cbranch_scc1 L_chok{tag}
v_cmp_eq_u32 vcc, 0, v7
s_cbranch_vccz L_chok{tag}
s_sleep 2
s_branch L_chw{tag}
L_chok{tag}:
""")
    if opt.chain and NM == 4:
        a(f"s_cmp_lt_u32 s45, {opt.chain}\ns_cbranch_scc1 L_chok")
        chainwait("")
    if opt.go:
        a(f"""
s_mov_b64 exec, 63
s_waitcnt vmcnt(0)
ds_add_u32 v6, v2 offset:{FL + 100}
s_mov_b64 exec, -1
""")
        chainwait("g")
    stamp(a, opt, 1)
    if not opt.tearly: a("global_load_lds_dwordx4 v17, s[52:53]\nglobal_load_lds_dwordx4 v17, s[52:53] offset:1024")
    for j in range(TP):
        if j == 1 and not opt.go:
            a(f"""
s_mov_b64 exec, 63
s_waitcnt vmcnt(4)
ds_add_u32 v6, v2 offset:{FL + 100}
s_mov_b64 exec, -1
""")
        if opt.chain and NM == 2 and j == opt.chain: chainwait("")
        for e in range(4):
            a(f"buffer_load_dwordx3 {R(mUD+16*j+4*e,3)}, v19, s[16:19], s9 offen offset:{e*1152}" + (" nt" if opt.nt else ""))
        if j < TP - 1: a(f"s_add_u32 s9, s9, {tj*256*1152}")
    stamp(a, opt, 2)
    a("s_setprio 3")
    for j in range(TP):
        a(f"s_waitcnt vmcnt({4*(TP-1-j)})")
        q = lambda e, m: mUD + 16 * j + 4 * e + m
        for m in range(3):
            for hi in range(2):
                t = mT + 2 * ((2 * m + hi) % 4)
                a(f"v_perm_b32 v{t}, v{q(1,m)}, v{q(0,m)}, s{50+hi}")
                a(f"v_perm_b32 v{t+1}, v{q(3,m)}, v{q(2,m)}, s{50+hi}")
                a(f"ds_write_b64 v3, {R(t,2)} offset:{(2*m+hi)*UCH + 512*tj*j}")
        a(f"ds_write_b32 v14, v2 offset:{4*tj*j}")
        stamp(a, opt, 6 if j == 0 else (11 if j == TP - 1 else (4 if j == 1 else 12)))
    if not S2: a("s_bitcmp1_b32 s45, 0\ns_cselect_b32 s50, s51, s50")
    if NM == 4 and S2: a("s_cmp_lt_u32 s45, 2\ns_cbranch_scc1 L_fin")
    a(f"""
L_mpoll:
ds_read_b32 v8, v16 offset:{OFLO}
s_waitcnt lgkmcnt(0)
v_cmp_gt_u32 vcc, s56, v8
s_cbranch_vccz L_mgo
s_sleep {opt.msleep}
s_sub_u32 s36, s36, 1
s_cbranch_scc0 L_mpoll
L_mgo:
""")
    for c in range(6):
        a(f"ds_read_b32 v{mIN+c}, v4 offset:{CHB*c}")
    a(f"v_add_u32 v4, 512, v4")
    for m in range(3):
        a(f"s_waitcnt lgkmcnt({4-2*m})")
        a(f"v_perm_b32 v{mSO+m}, v{mIN+2*m+1}, v{mIN+2*m}, s50")
    a(f"buffer_store_dwordx3 {R(mSO,3)}, v18, s[32:35], s57 offen")
    if S2:
        for m in range(3): a(f"v_perm_b32 v{mSO+4+m}, v{mIN+2*m+1}, v{mIN+2*m}, s51")
        a(f"buffer_store_dwordx3 {R(mSO+4,3)}, v18, s[32:35], s57 offen offset:2304")
    a(f"s_add_u32 s57, s57, {256*2304}\ns_add_u32 s56, s56, 1")
    if opt.stamps:
        a(f"s_cmp_lg_u32 s56, 2\ns_cbranch_scc1 L_ms")
        stamp(a, opt, 10)
        a.label(f"L_ms")
    a(f"s_cmp_le_u32 s56, 8\ns_cbranch_scc1 L_mpoll")
    a.label("L_fin")
    if opt.amp: stamp(a, opt, 8)
    if opt.stamps and not opt.amp:
        stamp(a, opt, 8)
        a("s_waitcnt vmcnt(0)")
        stamp(a, opt, 9)
        a(f"""
s_load_dwordx2 s[8:9], s[0:1], 128
s_waitcnt lgkmcnt(0)
s_lshl_b32 s10, s2, 4
s_add_u32 s10, s10, s44
s_lshl_b32 s10, s10, 7
s_add_u32 s10, s10, {1<<20}
v_mov_b32 v20, s10
""")
        for k in range(1, NST):
            a(f"s_sub_u32 s11, s{64+2*k}, s64\nv_mov_b32 v21, s11\nglobal_store_dword v20, v21, s[8:9] offset:{4*k}")
        a("s_memrealtime s[10:11]\ns_waitcnt lgkmcnt(0)\nv_mov_b32 v21, s10\nglobal_store_dword v20, v21, s[8:9] offset:0")
        a("v_mov_b32 v21, s100\nglobal_store_dword v20, v21, s[8:9] offset:80")
        a("s_getreg_b32 s11, hwreg(HW_REG_HW_ID)\nv_mov_b32 v21, s11\nglobal_store_dword v20, v21, s[8:9] offset:84")
        a("s_getreg_b32 s11, hwreg(HW_REG_XCC_ID)\nv_mov_b32 v21, s11\nglobal_store_dword v20, v21, s[8:9] offset:88")
        a("v_mov_b32 v21, s64\nglobal_store_dword v20, v21, s[8:9] offset:92")
    if opt.amp:
        ampx = ("s_add_u32 s10, s82, %d" % opt.amp) if opt.amp > 100 else ("s_sub_u32 s10, s%d, s64\ns_lshl_b32 s10, s10, 2\ns_add_u32 s10, s10, s82" % (64 + 2 * opt.amp))
        a(f"""
s_waitcnt vmcnt(0)
s_memtime s[82:83]
s_waitcnt lgkmcnt(0)
{"s_cmp_lg_u32 s2, %d" % opt.ampg if opt.ampg >= 0 else ""}
{"s_cbranch_scc1 L_end" if opt.ampg >= 0 else ""}
s_cmp_lg_u32 s44, {opt.ampw}
s_cbranch_scc1 L_end
{ampx}
L_amp:
s_memtime s[12:13]
s_waitcnt lgkmcnt(0)
s_sub_u32 s11, s12, s10
s_cmp_lt_i32 s11, 0
s_cbranch_scc1 L_amp
""")
    a.label("L_end")
    a("s_endpgm")
    for st in STUBS: a(st)
    a.label("L_codeend")
    out += a.text()
    out += ".p2align 7\n.type L_table,@object\nL_table:\n"
    for row in lane_table():
        out += ".long " + ", ".join(f"{x:#x}" for x in row) + "\n"
    out += ".size L_table, 8192\n"
    out += f""".section .rodata,"a"
.p2align 6
.amdhsa_kernel {NAME}_kernel
  .amdhsa_next_free_vgpr 128
  .amdhsa_next_free_sgpr 102
  .amdhsa_accum_offset 128
  .amdhsa_group_segment_fixed_size 0
  .amdhsa_kernarg_size 136
  .amdhsa_user_sgpr_count 2
  .amdhsa_user_sgpr_kernarg_segment_ptr 1
  .amdhsa_system_sgpr_workgroup_id_x 1
.end_amdhsa_kernel
"""
    return out

if __name__ == "__main__":
    p = argparse.ArgumentParser()
    p.add_argument("-o", default="cdna_kernels/" + NAME + ".s")
    for k, v in dict(stamps=0, la=6, batch=8, pre=15, prel=1, codepf=0, chain=0, trig=0, rhi=1, sidem=1, blk=8, dry=0, bpos=0, lall=1, clist=33322110, kli=15, stag=0, malign=1, tearly=0, go=0, nm=4, tint=1, st2=1, plist=33221100, llist=3322110, mold=1, bprio=0, wb=0, wbg=8, amp=0, ampg=0, ampw=15, k4=3, alow=0, e2=1, gate=0, nt=0, kmin=0, upf=0, nol=0, msleep=1, quarter=1,
                     ptop=2, pstep=3, lead=-1, xprio=3, mord=0, lateb=1, defer=1, ktop=3, klead=0, thr=0, lup=0).items():
        p.add_argument("--" + k, type=int, default=v)
    opt = p.parse_args()
    open(opt.o, "w").write(generate(opt))
```

```python
import sys, argparse

NAME = "concat_heads__ssm_conv_s4d__ssm_conv_s4d__prompt"

PITCH = 288
STGW = 4896
CHB = 10752
OUTO, OFLO = 6144, 10240
FL = 6 * CHB
KA = FL + 1024
KCP = 2112
KCH = 4 * KCP
UB = KA + 6 * KCH
UCH = 4608
BOXL = UB + 6 * UCH
TABL = BOXL + 4096
LDS_TOTAL = TABL + 4096
ZD, ZX = 543, 1615
Z2 = [687 + 64 * m for m in range(4)]
Z3 = [991, 1071]
DUMMY = 1040

vPA, vCF, vONE, vOW = 0, 1, 2, 3
vU, vKF, vKT, vSR, vSL0, vSL1, vPW0 = 4, 5, 6, 7, 8, 9, 10
vTA = 15
vKD, vRD = 11, 12
vAC, vAM = 14, 11
BOX = {3: 112, 5: 116, 7: 120, 9: 124}
vLF, vRF, vD = 20, 52, 68
vP = 36
vDT, vDSK, vC2 = 84, 85, 86
Z_, W_, ZZ, X_, Y_ = 88, 90, 92, 94, 96
T_ = [98, 99, 100, 101]
dF, dACC, dG, dPT, dOT, dFLG, dCN, dUT = 20, 84, 96, 12, 16, 18, 8, 10
dTH, dTT = 6, 19
lT2, lT3, lFX, lF5, lACC, lW, lG, lUT = 20, 44, 60, 64, 68, 92, 104, 7
mUD, mT, mIN, mSO = 20, 52, 60, 72
MF = "v_mfma_f32_16x16x32_bf16"

class Asm:
    def __init__(self): self.lines = []
    def __call__(self, s):
        for l in s.strip("\n").split("\n"):
            if not l.strip(): continue
            self.lines.append(l if l.rstrip().endswith(":") and not l.startswith(" ") else "    " + l.strip())
    def label(self, l): self.lines.append(l + ":")
    def text(self): return "\n".join(self.lines) + "\n"

def R(a, n=1): return f"v{a}" if n == 1 else f"v[{a}:{a+n-1}]"

def cmul(a, dst, x, m, conj=False):
    if not conj:
        a(f"v_pk_mul_f32 {R(dst,2)}, {R(x,2)}, {R(m,2)} op_sel:[0,0] op_sel_hi:[0,1]")
        a(f"v_pk_fma_f32 {R(dst,2)}, {R(x,2)}, {R(m,2)}, {R(dst,2)} op_sel:[1,1,0] op_sel_hi:[1,0,1] neg_lo:[0,1,0]")
    else:
        a(f"v_pk_mul_f32 {R(dst,2)}, {R(x,2)}, {R(m,2)} op_sel:[0,0] op_sel_hi:[0,1] neg_hi:[0,1]")
        a(f"v_pk_fma_f32 {R(dst,2)}, {R(x,2)}, {R(m,2)}, {R(dst,2)} op_sel:[1,1,0] op_sel_hi:[1,0,1]")

NST = 18
def stamp(a, opt, idx, wait=False):
    if opt.stamps and idx is not None:
        a(f"s_memtime s[{64+2*idx}:{65+2*idx}]")
        if wait: a("s_waitcnt lgkmcnt(0)")

class Frag:
    def __init__(self, kind, key, reg=None):
        self.kind, self.key, self.reg = kind, key, reg
        self.first = None; self.last = None; self.issued = False; self.seq = -1

def frag_reads(f):
    k = f.key
    if f.kind == "G": return [("ds_read_b128", f.reg, 4, vU, 512 + 2 * k)]
    if f.kind in ("F", "FX"):
        o = 2 * (ZD - 3 - k) if f.kind == "F" else 2 * (ZX - 3 - 1040)
        return [("ds_read_b64", f.reg, 2, vKF, o), ("ds_read_b64", f.reg + 2, 2, vKF, o + 8)]
    if f.kind == "T2":
        d, h = k
        return [("ds_read_b64", f.reg + 2 * j, 2, vKT, 2 * (Z2[2 * h + j] - 3 - 16 * d)) for j in range(2)]
    if f.kind == "T3":
        return [("ds_read_b64", f.reg + 2 * j, 2, vKT, 2 * (Z3[j] - 3 - 16 * k)) for j in range(2)]
    raise ValueError

class Stream:
    def __init__(self, a):
        self.a = a; self.n = 0; self.lds_n = 0; self.done = 0
    def ins(self, s, w=1): self.a(s); self.n += w
    def lds(self, s): self.ins(s); self.lds_n += 1; return self.lds_n
    def wait(self, seq):
        if seq > self.done:
            k = min(self.lds_n - seq, 15)
            self.ins(f"s_waitcnt lgkmcnt({k})"); self.done = self.lds_n - k
    def until(self, n):
        if self.n < n: self.ins(f"s_nop {n - self.n - 1}", n - self.n)
    def load(self, f):
        for (mn, d, n, ar, off) in frag_reads(f):
            f.seq = self.lds(f"{mn} {R(d,n)}, v{ar} offset:{off}")
        f.issued = True

STUBS = []
def wait_flags(a, reads, tag):
    rd = "\n".join(f"ds_read_b32 v{t}, v{vCF} offset:{o}" for t, o in reads)
    comb = "" if len(reads) == 1 else f"v_and_b32 v{reads[0][0]}, v{reads[0][0]}, v{reads[1][0]}\n"
    a.label(f"L_w_{tag}")
    a(f"{rd}\ns_waitcnt lgkmcnt(0)\n{comb}v_cmp_eq_u32 vcc, 0, v{reads[0][0]}\ns_cbranch_vccnz L_ws_{tag}")
    a.label(f"L_wd_{tag}")
    STUBS.append(f"L_ws_{tag}:\ns_sleep 1\ns_sub_u32 s34, s34, 1\ns_cbranch_scc0 L_w_{tag}\ns_branch L_wd_{tag}")

def flag_check(a, S, seq, tmp, off, tag, extra=""):
    S.wait(seq)
    S.ins(f"v_cmp_eq_u32 vcc, 0, v{tmp}")
    S.ins(f"s_cbranch_vccnz L_sp_{tag}")
    a.label(f"L_ok_{tag}")
    STUBS.append(f"""L_sp_{tag}:
s_sleep 1
ds_read_b32 v{tmp}, v{vCF} offset:{off}
{extra}s_waitcnt lgkmcnt(0)
s_sub_u32 s34, s34, 1
s_cbranch_scc1 L_ok_{tag}
v_cmp_eq_u32 vcc, 0, v{tmp}
s_cbranch_vccnz L_sp_{tag}
s_branch L_ok_{tag}""")

def cnt_check(a, S, seq, tmp, rd, val, tag, extra=""):
    S.wait(seq)
    S.ins(f"v_cmp_gt_u32 vcc, {val}, v{tmp}")
    S.ins(f"s_cbranch_vccnz L_sp_{tag}")
    a.label(f"L_ok_{tag}")
    STUBS.append(f"""L_sp_{tag}:
s_sleep 1
{rd}
{extra}s_waitcnt lgkmcnt(0)
s_sub_u32 s34, s34, 1
s_cbranch_scc1 L_ok_{tag}
v_cmp_gt_u32 vcc, {val}, v{tmp}
s_cbranch_vccnz L_sp_{tag}
s_branch L_ok_{tag}""")

def early_switch(a, S, opt, tag, prio, t1, t2):
    S.ins("s_cmp_ge_u32 s45, 2")
    S.ins(f"s_cbranch_scc1 L_es_{tag}")
    a(f"""ds_read_b32 v{t1}, v{vCF} offset:{2*128+12}
ds_read_b32 v{t2}, v{vCF} offset:{4*128+12}
s_waitcnt lgkmcnt(0)
v_and_b32 v{t1}, v{t1}, v{t2}
v_cmp_eq_u32 vcc, 0, v{t1}
s_setprio {prio}
s_cbranch_vccz L_es_{tag}
s_setprio 0""")
    a.label(f"L_es_{tag}")

def dprio(opt, t):
    if opt.plist: return int(str(opt.plist)[min(t, 7)])
    return max(opt.ptop - t // opt.pstep, 0)

def emit_dense(a, opt, S, F):
    ops = []
    for tau in range(8):
        gs = [Frag("G", 256 * tau - 16 - 32 * s) for s in range(8)]
        for s in range(8): gs[s].tile = tau if s == 0 else None
        lag = opt.blk
        for s in range(8 + lag):
            if s < 8: ops.append((tau, F[16 + 32 * s], gs[s], tau == 0 and s == 0))
            if s == 7 and lag: ops.append(("end", tau))
            if tau < 7 and 0 <= s - lag < 8: ops.append((tau + 1, F[272 + 32 * (s - lag)], gs[s - lag], s == lag))
            if s == 7 and not lag: ops.append(("end", tau))
    gl = []
    for i, op in enumerate(ops):
        if op[0] == "end": continue
        for g in (op[1], op[2]):
            if g.first is None:
                g.first = i
                if not g.issued: gl.append(g)
            g.last = i
    endpos = {op[1]: i for i, op in enumerate(ops) if op[0] == "end"}
    tfirst = {g.tile: g.first for g in gl if g.kind == "G" and g.tile is not None}
    ring = [-1] * 8
    acc_last = {}
    side = []
    pinfo = {}
    PRD = f"ds_read_addtid_b32 v{dFLG} offset:{OFLO + 256}"
    def ptxt(t): return f"ds_read_b128 {R(dPT,4)}, v{vPA} offset:{(t-2)*1024}"
    def queue_out(t):
        ac = dACC + 4 * (t % 3)
        rn = acc_last[t] + 8
        if t >= 2:
            if not opt.nol:
                side.append((0, lambda: cnt_check(a, S, pinfo[t], dFLG, PRD, t, f"p{t}", ptxt(t) + "\n")))
            side.append((rn, lambda: (S.ins(f"v_add_f32 v{dPT}, v{dPT}, v{ac}"), S.ins(f"v_add_f32 v{dPT+1}, v{dPT+1}, v{ac+1}"))))
            side.append((rn, lambda: (S.ins(f"v_add_f32 v{dPT+2}, v{dPT+2}, v{ac+2}"), S.ins(f"v_add_f32 v{dPT+3}, v{dPT+3}, v{ac+3}"))))
            src = dPT
        else:
            src = ac
        side.append((rn, lambda: (S.ins(f"v_cvt_pk_bf16_f32 v{dOT}, v{src}, v{src+1}"), S.ins(f"v_cvt_pk_bf16_f32 v{dOT+1}, v{src+2}, v{src+3}"))))
        side.append((rn, lambda: (S.lds(f"ds_write_addtid_b32 v{dOT} offset:{OUTO + 512*t}"), S.ins(f"v_mov_b32 v{dCN}, {t+1}"))))
        side.append((rn, lambda: S.lds(f"ds_write_addtid_b32 v{dOT+1} offset:{OUTO + 512*t + 256}")))
        def fin():
            S.lds(f"ds_write_addtid_b32 v{dCN} offset:{OFLO}")
            if opt.stamps == 2:
                stamp(a, opt, 10 + t, True); S.done = S.lds_n
        side.append((rn, fin))
    pend = list(gl)
    useq = {}
    thr = {}
    lateF = []
    for i, op in enumerate(ops):
        if lateF and i >= opt.kli:
            while side:
                rn, fn = side.pop(0); S.until(rn); fn()
            flag_check(a, S, klseq, dFLG, 12, "kl"); S.load(lateF.pop())
        if opt.defer and i == max(opt.kli - 4, 2):
            klseq = S.lds(f"ds_read_b32 v{dFLG}, v{vCF} offset:12")
        for t in range(1, 8):
            if t not in useq and i + opt.la + 3 >= tfirst[t]:
                useq[t] = S.lds(f"ds_read_b32 v{dUT}, v{vCF} offset:{16 + 4*t}")
        while pend and pend[0].first <= i + opt.la:
            if pend[0].kind == "F":
                if opt.defer and pend[0].key == 496:
                    if i < opt.kli:
                        lateF.append(pend.pop(0)); continue
                    flag_check(a, S, klseq, dFLG, 12, "kl")
                S.load(pend.pop(0)); continue
            slot = next((s for s in range(8) if ring[s] < i), None)
            if slot is None:
                assert pend[0].first > i
                break
            g = pend.pop(0)
            if g.tile: flag_check(a, S, useq[g.tile], dUT, 16 + 4 * g.tile, f"du{g.tile}")
            ring[slot] = g.last; g.reg = dG + 4 * slot; S.load(g)
        for t in range(2, 8):
            if t not in pinfo and i >= endpos[t] - 3:
                while side:
                    rn, fn = side.pop(0); S.until(rn); fn()
                S.lds(PRD)
                pinfo[t] = S.lds(ptxt(t))
        if opt.thr:
            for t in range(opt.thr, 8):
                if t not in thr and i + 5 >= endpos[t - 1]:
                    thr[t] = S.lds(f"ds_read_b32 v{dTT}, v{dTH}")
        if op[0] == "end":
            t1 = op[1] + 1
            if opt.thr and opt.thr <= t1 < 8:
                S.wait(thr[t1])
                S.ins(f"v_cmp_gt_u32 vcc, {t1 - opt.thr + 1}, v{dTT}")
                S.ins(f"s_cbranch_vccnz L_th_{t1}")
                a.label(f"L_tk_{t1}")
                STUBS.append(f"""L_th_{t1}:
s_sleep 1
ds_read_b32 v{dTT}, v{dTH}
s_waitcnt lgkmcnt(0)
s_sub_u32 s34, s34, 1
s_cbranch_scc1 L_tk_{t1}
v_cmp_gt_u32 vcc, {t1 - opt.thr + 1}, v{dTT}
s_cbranch_vccnz L_th_{t1}
s_branch L_tk_{t1}""")
            queue_out(op[1])
            if opt.stag and op[1] < 7 and dprio(opt, op[1] + 1) > 0:
                post = lambda t1=op[1] + 1: early_switch(a, S, opt, f"d{t1}", dprio(opt, t1), 19, 9)
            else: post = lambda: None
            if opt.clist and op[1] < 7:
                t1 = op[1] + 1
                pa, pc = dprio(opt, t1), int(str(opt.clist)[t1])
                ca, cc = pa != dprio(opt, t1 - 1), pc != int(str(opt.clist)[t1 - 1])
                if ca and cc and pa == pc: S.ins(f"s_setprio {pa}")
                elif ca or cc:
                    assert not (ca and cc)
                    S.ins("s_cmp_ge_u32 s45, 4")
                    S.ins(f"s_cbranch_scc{1 if ca else 0} L_cp{t1}")
                    S.ins(f"s_setprio {pa if ca else pc}", 0)
                    a.label(f"L_cp{t1}")
            elif op[1] < 7 and (dprio(opt, op[1] + 1) != dprio(opt, op[1]) or (opt.alow and op[1] == 1)): S.ins(f"s_setprio {dprio(opt, op[1] + 1)}")
            post()
            continue
        t, f, g, first = op
        S.wait(max(f.seq, g.seq))
        ac = dACC + 4 * (t % 3)
        S.ins(f"{MF} {R(ac,4)}, {R(f.reg,4)}, {R(g.reg,4)}, {'0' if first else R(ac,4)}")
        acc_last[t] = S.n
        isq0 = f.key < 272
        if opt.sidem == 0 or isq0 or opt.blk:
            if side and side[0][0] <= S.n: side.pop(0)[1]()
        if isq0 and t == 7 and side and side[0][0] <= S.n: side.pop(0)[1]()
        if opt.sidem == 0 and t == 7 and not isq0 and side and side[0][0] <= S.n: side.pop(0)[1]()
    while side:
        rn, fn = side.pop(0); S.until(rn); fn()

def level_frags():
    K = {}
    for d in (2, 3, 4):
        for h in (0, 1): K[("T2", d, h)] = Frag("T2", (d, h), lT2 + 4 * ((d - 2) * 2 + h))
    for d in (4, 5, 6): K[("T3", d)] = Frag("T3", d, lT3 + 4 * (d - 4))
    K[("T3", 7)] = Frag("T3", 7, lACC + 16)
    K["FX"] = Frag("FX", 0, lFX)
    K["F5"] = Frag("F", 528, lF5)
    return K
LORDER = ["FX", ("T2", 2, 0), ("T2", 3, 0), ("T2", 4, 0), ("T2", 2, 1), ("T2", 3, 1), ("T2", 4, 1), ("T3", 7), ("T3", 4), ("T3", 5), ("T3", 6)]

def emit_level(a, opt, S, K):
    acc = lambda t: lACC + 4 * (t - 2)
    inited = set(); acc_last = {}; vq = []; wr = {}; pubq = []
    def drain(k):
        while k > 0 and vq and vq[0][0] <= S.n:
            rn, txt, key = vq.pop(0); S.ins(txt); wr[key] = S.n + 2; k -= 1
    def force(key):
        while any(q[2] == key for q in vq):
            rn, txt, kk = vq.pop(0); S.until(rn); S.ins(txt); wr[kk] = S.n + 2
    def need(f):
        if not f.issued: S.load(f)
        S.wait(f.seq)
    def mf(d, A, B, c):
        S.ins(f"{MF} {R(d,4)}, {R(A,4)}, {R(B,4)}, {c}")
        n = S.n
        if pubq: pubflush()
        else: drain(1)
        return n
    def am(t, A, B):
        c = R(acc(t), 4) if t in inited else "0"
        inited.add(t)
        acc_last[t] = mf(acc(t), A, B, c)
    G0 = [Frag("G", 256 * b - 16, lG) for b in range(6)]
    GM = [Frag("G", 256 * b - 24, lG + 4) for b in range(6)]
    S.load(G0[0]); S.load(GM[0])
    lo = ["F5", "FX", ("T2", 2, 0), ("T2", 2, 1), ("T2", 3, 0), ("T2", 4, 0), ("T2", 3, 1), ("T2", 4, 1), ("T3", 7), ("T3", 4), ("T3", 5), ("T3", 6)] if opt.e2 else ["F5"] + LORDER
    lazy = [K[k] for k in lo if not K[k].issued]
    tsets = [[12, 16], [8, 56]]
    def publish(t):
        S.until(acc_last[t] + 8)
        S.lds(f"ds_write_b128 v{vPA}, {R(acc(t),4)} offset:{(t-2)*1024}")
        S.ins(f"v_mov_b32 v{vONE}, {t}")
        pubq.append(t)
    def pubflush():
        while pubq:
            t = pubq.pop(0)
            S.lds(f"ds_write_addtid_b32 v{vONE} offset:{OFLO + 256}")
            if opt.stamps == 2:
                stamp(a, opt, 10 + t, True); S.done = S.lds_n
    def uses(b, h, ds=None):
        if b < 0 or b > 5: return
        if h < 2: lst = [(b + d, K[("T2", d, h)]) for d in (ds or ((3, 4) if opt.e2 else (2, 3, 4))) if b + d <= 7]
        else: lst = [(b + d, K[("T3", d)]) for d in (7, 4, 5, 6) if b + d <= 7 and b <= 3]
        if lst: force((b, h))
        for t, f in lst:
            need(f); S.until(wr[(b, h)]); am(t, lW + 4 * h, f.reg)
    grp = 0; prevkey = None
    lp = lambda nb: int(str(opt.llist)[nb]) if opt.llist else min(dprio(opt, max(nb - opt.lead, 0)) + opt.lup, 3)
    for nb in range(7):
        b = nb - 1
        pairs = []
        if nb <= 5:
            g0, gm = G0[nb], GM[nb]
            pairs = [[(g0, 3), (g0, 5)], [(gm, 3), (gm, 5)]]
            if nb <= 3: pairs.append([(g0, 7), (gm, 9)])
        if nb > 0 and (lp(nb) != lp(nb - 1) or (opt.alow and nb == 2)): S.ins(f"s_setprio {lp(nb)}")
        if opt.stag and nb > 0 and lp(nb) > 0: early_switch(a, S, opt, f"l{nb}", lp(nb), 3, 6 if nb >= 2 else 7)
        for h in range(3):
            newv = []
            for _ in range(3):
                if lazy: S.load(lazy.pop(0))
            if h < len(pairs):
                tm = tsets[grp % 2]; grp += 1
                for q in list(vq):
                    if q[2] != prevkey: force(q[2])
                for j, (g, box) in enumerate(pairs[h]):
                    need(g)
                    n = mf(tm[j], g.reg, BOX[box], "0")
                    dst = lW + 4 * h + 2 * j
                    newv.append((n + 8, f"v_cvt_pk_bf16_f32 v{dst}, v{tm[j]}, v{tm[j]+1}", (nb, h)))
                    newv.append((n + 8, f"v_cvt_pk_bf16_f32 v{dst+1}, v{tm[j]+2}, v{tm[j]+3}", (nb, h)))
                if h == 0:
                    need(K["F5"]); am(nb + 2, K["F5"].reg, g0.reg)
                    if nb < 5: useq = S.lds(f"ds_read_b32 v{lUT}, v{vCF} offset:{16 + 4*(nb+1)}")
                if h == 1 and nb <= 3:
                    need(K["FX"]); am(nb + 4, K["FX"].reg, g0.reg)
                if h == len(pairs) - 1 and nb < 5:
                    flag_check(a, S, useq, lUT, 16 + 4 * (nb + 1), f"lu{nb+1}")
                    S.load(G0[nb + 1]); S.load(GM[nb + 1])
            if opt.e2:
                if h == 0 and b >= 0: uses(b, 1, (2,))
                uses(b, h)
                if h == 0 and b >= 0: publish(b + 2)
                if h == 2: uses(nb, 0, (2,))
            else:
                uses(b, h)
                if h == 2 and b >= 0: publish(b + 2)
            if newv:
                vq.extend(newv); prevkey = (nb, h)
    pubflush()

def kprio(a, opt, i):
    if opt.stag:
        p = int(str(opt.stag)[i])
        if i == 0 or p != int(str(opt.stag)[i - 1]):
            a(f"s_cmp_lt_u32 s45, 2\ns_cbranch_scc1 L_kp{i}\ns_setprio {p}\nL_kp{i}:")
        return
    p = max(opt.ktop - i, opt.kmin)
    if opt.klead:
        a(f"s_setprio {max(p,0)}\ns_cbranch_scc0 L_kp{i}\ns_setprio {min(max(p,0)+1,3)}\nL_kp{i}:")
    else:
        a(f"s_setprio {max(p,0)}")

GRID = {0: 200, 1: 200, 2: 224}
def wg_map(kind):
    full = lambda l: [64 * l + min(6 * g, 58) for g in range(11)]
    part = lambda lo, hi: [min(c, hi - 6) for c in range(lo, hi, 6)]
    if kind == 1:
        per = []
        for x in range(4):
            lo, hi = 144 * x, 144 * x + 144
            lst = []
            c = lo
            while c < hi:
                e = min((c // 64 + 1) * 64, hi)
                lst += part(c, e); c = e
            per.append(lst)
    else:
        per = [full(0) + full(1) + part(128, 160), part(160, 192) + full(3) + full(4)[:0] + full(4), full(5) + full(6), full(7) + full(8)]
    n = GRID[kind] // 8
    out = []
    for s_ in range(n):
        for x in range(8):
            l = per[x & 3]
            out.append(l[s_] if s_ < len(l) else 0xffff)
    cov = set()
    for l in per:
        assert len(l) <= n, len(l)
        for c in l:
            assert c // 64 == (c + 5) // 64
            cov |= set(range(c, c + 6))
    assert cov == set(range(576))
    return out

def lane_table():
    rows = []
    misc = {0: ZD-511, 1: ZD-512, 2: ZD-513, 3: ZD-514, 16: Z3[1]-127, 32: ZX-1027, 33: ZX-1028, 34: Z2[3]-63, 48: ZD-509, 52: ZD-510}
    for l in range(64):
        r, g = l & 15, l >> 4
        t = []
        for wdt, lo in ((3, 11), (5, 6), (7, 5), (9, 4)):
            for w in range(4):
                d = 0
                for hf in range(2):
                    if r + lo <= 8 * g + 2 * w + hf <= r + lo + wdt - 1: d |= 0x3F80 << (16 * hf)
                t.append(d)
        kb = (3 - (r & 3)) * KCP - 8 * (r >> 2)
        sel = (l & 1) + 2 * (g >> 1)
        cm = 32 * (g & 1) + (r & 14)
        t += [32 * r + 16 * g, kb + 16 * g, kb + 8 * g, 1024 * (g >> 1) + 32 * r + 16 * (g & 1)]
        t += [16 * l, 1072 - 16 * l, 32 * l, 2 * ([655, 783, 976, 895][sel] - 8) - cm]
        t += [16 * l, 2 * misc.get(l, DUMMY), 2 * ([655, 783, 976, 895][sel] - 8) - cm, 2 * ([848, 719, 1008, 927][sel] - 8) - cm]
        t += [0, 0, 0, 0]
        rows.append([x & 0xFFFFFFFF for x in t])
    return [rows[l][4 * c:4 * c + 4] for c in range(8) for l in range(64)]

def pack64(vals, bits):
    c = 0
    for i, v in enumerate(vals): c |= v << (bits * i)
    return c & 0xffffffff, c >> 32

def generate(opt):
    a = Asm()
    hdr = open("cdna_kernels/" + NAME + ".s.ref").read().split("\n")
    top = [l for l in hdr if l.startswith(";") and "@launch" not in l and "Override launch" not in l and "grid=ceil" not in l]
    out = "\n".join(top) + "\n"
    out += f"; @launch grid=({GRID[opt.map]},1,1) block=({768 + 64 * opt.nm},1,1) lds={LDS_TOTAL}\n"
    out += f""".amdgcn_target "amdgcn-amd-amdhsa--gfx950"
.text
.globl {NAME}_kernel
.p2align 8
.type {NAME}_kernel,@function
{NAME}_kernel:
"""
    stamp(a, opt, 0)
    if opt.stamps: a("s_memrealtime s[100:101]")
    a(f"""
""")
    if opt.map == 0:
        a(f"""
s_and_b32 s3, s2, 7
s_mul_i32 s3, s3, 25
s_lshr_b32 s4, s2, 3
s_add_u32 s3, s3, s4
s_cmp_ge_u32 s3, 99
s_cselect_b32 s6, 56, 0
s_load_dwordx16 s[16:31], s[0:1], s6
s_load_dwordx2 s[32:33], s[0:1], 112
v_lshrrev_b32 v2, 6, v0
s_cselect_b32 s7, 9, 0
s_cselect_b32 s48, 1152, 0
v_readfirstlane_b32 s44, v2
s_cmp_ge_u32 s2, 200
s_cbranch_scc1 L_end
s_cmp_ge_u32 s3, 198
s_cbranch_scc1 L_end
v_and_b32 v1, 63, v0
s_add_u32 s44, s44, {16 - opt.nm}
s_and_b32 s44, s44, 15
{"s_cmp_ge_u32 s44, 14" if opt.nm == 2 else ""}
{"s_cselect_b32 s8, 2, 0" if opt.nm == 2 else ""}
{"s_sub_u32 s44, s44, s8" if opt.nm == 2 else ""}
s_mul_i32 s4, s3, 5958
s_lshr_b32 s4, s4, 16
s_mul_i32 s5, s4, 11
s_sub_u32 s59, s3, s5
s_mul_i32 s5, s59, 6
s_min_u32 s5, s5, 58
s_sub_u32 s4, s4, s7
s_lshl_b32 s4, s4, 6
s_add_u32 s5, s5, s4
""")
    else:
        a(f"""
s_getpc_b64 s[52:53]
L_pc0:
s_and_b32 s3, s2, 7
s_lshl_b32 s4, s2, 2
s_add_u32 s4, s4, L_wgmap-L_pc0
s_cmp_ge_u32 s2, {GRID[opt.map]}
s_cbranch_scc1 L_end
s_load_dword s5, s[52:53], s4
s_cmp_ge_u32 s3, 4
s_cselect_b32 s6, 56, 0
s_load_dwordx16 s[16:31], s[0:1], s6
s_load_dwordx2 s[32:33], s[0:1], 112
v_lshrrev_b32 v2, 6, v0
s_cselect_b32 s48, 1152, 0
v_and_b32 v1, 63, v0
v_readfirstlane_b32 s44, v2
s_add_u32 s44, s44, 12
s_and_b32 s44, s44, 15
""")
    a(f"""
s_setprio 3
""")
    if opt.gate:
        a(f"""
v_mov_b32 v8, 0
v_mov_b32 v9, 0
v_mov_b32 v10, 0
v_mov_b32 v11, 0
v_lshlrev_b32 v7, 4, v1
ds_write_b128 v7, v[8:11] offset:{FL}
s_waitcnt lgkmcnt(0)
s_barrier
""")
    a(f"""
s_cmp_ge_u32 s44, 12
{"s_cbranch_scc0 L_comp" if opt.dry else "s_cbranch_scc1 L_mem0"}
""")
    if opt.dry:
        a("""
s_mov_b64 exec, 0
s_setprio 0
s_mov_b32 s62, 0
s_mov_b32 s45, 0
s_cmp_eq_u32 s44, 13
s_cbranch_scc1 L_proL
s_cmp_eq_u32 s44, 14
s_cbranch_scc1 L_dry2
s_cmp_eq_u32 s44, 15
s_cbranch_scc1 L_dry3
s_branch L_dry0
L_comp:
""")
    a(f"""
s_sub_u32 s45, s44, 6
s_cmp_ge_u32 s44, 6
s_cselect_b32 s45, s45, s44
s_cselect_b32 s62, 1, 0
{"s_waitcnt lgkmcnt(0)" if opt.map else ""}
{"s_cmp_ge_u32 s5, 1024" if opt.map else ""}
{"s_cbranch_scc1 L_end" if opt.map else ""}
s_add_u32 s46, s5, s45
s_lshl_b32 s8, s46, 8
v_lshl_add_u32 v20, v1, 2, s8
s_lshl_b32 s8, s46, 1
s_and_b32 s8, s8, -4
s_waitcnt lgkmcnt(0)
global_load_dword v{vP}, v20, s[18:19]
global_load_dword v{vP+1}, v20, s[20:21]
global_load_dword v{vP+2}, v20, s[22:23]
global_load_dword v{vP+3}, v20, s[24:25]
s_load_dword s40, s[26:27], s8
s_load_dword s41, s[28:29], s8
""")
    if opt.codepf == 3:
        a(("""
s_cmp_lt_u32 s44, 10
s_cbranch_scc1 L_nocpf
s_getpc_b64 s[52:53]
L_pc:
v_subrev_u32 v6, CPFBASE, v0
v_lshlrev_b32 v6, 7, v6
v_min_u32 v6, L_codeend-L_pc-4, v6
global_load_dword v87, v6, s[52:53]
L_nocpf:
""").replace("CPFBASE", str(640 + 64 * opt.nm)))
    if opt.gate:
        a(f"""
v_lshlrev_b32 v21, 2, v1
v_mov_b32 v{vONE}, 1
ds_add_u32 v21, v{vONE} offset:{FL + 768 - 65536 if False else 0}
""".replace("v21, v2 offset:0", "v21, v2 offset:%d" % (FL + 768)))
    if opt.stamps == 1: stamp(a, opt, 14)

    stamp(a, opt, 1)
    if opt.bpos == -2: a("s_barrier")
    sl0 = pack64([0,1,2,3,4,5,6,7,8,8,10,11,11,11,14,15], 4)
    a(f"""
s_mul_i32 s61, s45, {CHB}
s_mul_i32 s60, s62, {STGW}
s_add_u32 s60, s60, s61
s_mov_b32 m0, s60
s_movk_i32 s9, {PITCH}
s_mov_b32 s10, {sl0[0]:#x}
s_mov_b32 s11, {sl0[1]:#x}
v_and_b32 v20, 15, v1
v_and_b32 v21, 48, v1
v_add_u32 v24, s60, v21
v_mad_u32_u24 v{vSR}, v20, s9, v24
v_add_u32 v{vSL1}, {16*PITCH}, v24
v_lshlrev_b32 v25, 2, v20
v_lshrrev_b64 v[26:27], v25, s[10:11]
v_and_b32 v26, 15, v26
v_mad_u32_u24 v{vSL0}, v26, s9, v24
v_lshlrev_b32 v{vTA}, 4, v1
v_add_u32 v{vTA}, {TABL}, v{vTA}
s_mov_b32 s49, 0x01000c0c
s_cmp_lg_u32 s62, 0
s_cselect_b32 s49, 0x03020c0c, s49
s_mov_b32 s12, 0xbfb8aa3b
s_mov_b32 s13, 0x3e22f983
s_mov_b32 s14, 0x41000000
s_mov_b32 s15, 0x43800000
s_mov_b32 s63, 0x3fb8aa3b
s_mov_b32 s35, 0x7fff7fff
s_mov_b32 s34, 0x40000
v_mov_b32 v{vONE}, 1
s_mul_i32 s57, s45, {KCH}
s_add_u32 s57, s57, {KA}
s_cmp_lg_u32 s62, 0
s_cselect_b32 s58, s57, s61
s_mul_i32 s56, s45, {UCH}
s_add_u32 s56, s56, {UB}
s_lshl_b32 s8, s45, 7
s_add_u32 s8, s8, {FL}
v_mov_b32 v{vCF}, s8
s_lshl_b32 s8, s62, 10
v_add_u32 v14, s8, v{vTA}
{"s_barrier" if opt.bpos == -3 else ""}
s_waitcnt lgkmcnt(0)
s_lshl_b32 s8, s40, 16
s_and_b32 s40, s40, 0xffff0000
s_lshl_b32 s9, s41, 16
s_and_b32 s41, s41, 0xffff0000
s_bitcmp0_b32 s46, 0
s_cselect_b32 s40, s8, s40
s_cselect_b32 s41, s9, s41
v_mov_b32 v{vDT}, s63
v_mov_b32 v{vDSK}, 0
v_mul_f32 v{vDT}, s40, v{vDT}
v_writelane_b32 v{vDSK}, s41, 0
v_exp_f32 v{vDT}, v{vDT}
s_cmp_lg_u32 s62, 0
""")
    if opt.bpos == -1: a("s_barrier")
    stamp(a, opt, 2)
    if opt.codepf == 3:
        a("s_waitcnt vmcnt(1)\ns_cmp_ge_u32 s44, 10\ns_cbranch_scc1 L_pw\ns_waitcnt vmcnt(0)\nL_pw:\ns_cmp_lg_u32 s62, 0")
    else:
        a("s_waitcnt vmcnt(0)")
    stamp(a, opt, 3)
    if opt.chain: a(f"ds_write_b32 v{vCF}, v{vONE} offset:96")
    kprio(a, opt, 0)
    if opt.bpos == 0: a("s_barrier")
    MH = "v_mfma_f32_16x16x32_f16"
    AB, CC, TA, TB, zf, wf, Zf, w2, w4, MX, MT = 52, 54, 56, 58, 60, 62, 64, 66, 68, 70, 71
    hz1, hz2, hz4, hZ1, hZ2, hZ4 = 88, 89, 90, 91, 92, 93
    RR = {j: 94 + j for j in range(1, 17)}
    LL = {}
    free = list(range(111, 128))
    def hmul(dst, x, m, conj=False):
        if not conj:
            a(f"v_pk_mul_f16 v{dst}, v{x}, v{m} op_sel:[0,0] op_sel_hi:[0,1]")
            a(f"v_pk_fma_f16 v{dst}, v{x}, v{m}, v{dst} op_sel:[1,1,0] op_sel_hi:[1,0,1] neg_lo:[0,1,0]")
        else:
            a(f"v_pk_mul_f16 v{dst}, v{x}, v{m} op_sel:[0,0] op_sel_hi:[0,1] neg_hi:[0,1]")
            a(f"v_pk_fma_f16 v{dst}, v{x}, v{m}, v{dst} op_sel:[1,1,0] op_sel_hi:[1,0,1]")
    dpp = lambda c, rm="0xf": f"v_max_u32_dpp v{MX}, v{MX}, v{MX} {c} row_mask:{rm} bank_mask:0xf"
    a(f"""
v_perm_b32 v{TA}, v{vP}, v{vP}, s49
v_and_b32 v{MX}, s35, v{vP+2}
v_mul_f32 v{TA}, s63, v{TA}
v_and_b32 v{MT}, s35, v{vP+3}
v_exp_f32 v{TA}, v{TA}
v_pk_max_u16 v{MX}, v{MX}, v{MT}
v_perm_b32 v{TA+1}, v{vP+1}, v{vP+1}, s49
v_lshlrev_b32 v{MT}, 16, v{MX}
v_cvt_pk_bf16_f32 v{vDT}, v{vDT}, v{TA}
v_max_u32 v{MX}, v{MX}, v{MT}
v_and_b32 v{TA}, 0xffff0000, v{vDT}
v_lshlrev_b32 v{vDT}, 16, v{vDT}
{dpp("row_shr:1")}
v_pk_mul_f32 {R(AB,2)}, {R(TA,2)}, {R(vDT,2)} op_sel_hi:[1,0]
v_pk_mul_f32 {R(AB,2)}, {R(AB,2)}, s[12:13]
{dpp("row_shr:2")}
v_pk_mul_f32 {R(TA,2)}, {R(AB,2)}, s[14:15] op_sel_hi:[1,0]
v_pk_mul_f32 {R(TB,2)}, {R(AB,2)}, s[14:15] op_sel:[0,1] op_sel_hi:[1,1]
{dpp("row_shr:4")}
v_fract_f32 v{AB+1}, v{AB+1}
v_exp_f32 v{AB}, v{AB}
{dpp("row_shr:8")}
v_cos_f32 v{zf}, v{AB+1}
v_sin_f32 v{zf+1}, v{AB+1}
{dpp("row_bcast:15", "0xa")}
v_fract_f32 v{TB+1}, v{TB+1}
v_pk_mul_f32 {R(zf,2)}, {R(zf,2)}, {R(AB,2)} op_sel_hi:[1,0]
{dpp("row_bcast:31", "0xc")}
v_exp_f32 v{TB}, v{TB}
v_cos_f32 v{Zf}, v{TB+1}
v_readlane_b32 s10, v{MX}, 63
v_sin_f32 v{Zf+1}, v{TB+1}
v_fract_f32 v{TA+1}, v{TA+1}
v_perm_b32 v{CC}, v{vP+2}, v{vP+2}, s49
s_and_b32 s10, s10, 0x7f800000
s_sub_u32 s8, 0x7f000000, s10
s_add_u32 s10, s10, 0x00800000
v_pk_mul_f32 {R(Zf,2)}, {R(Zf,2)}, {R(TB,2)} op_sel_hi:[1,0]
v_perm_b32 v{CC+1}, v{vP+3}, v{vP+3}, s49
v_exp_f32 v{TA}, v{TA}
v_cos_f32 v{wf}, v{TA+1}
v_sin_f32_e64 v{wf+1}, -v{TA+1}
v_pk_mul_f32 {R(CC,2)}, {R(CC,2)}, s[8:9] op_sel_hi:[1,0]
v_cvt_pk_f16_f32 v{hz1}, v{zf}, v{zf+1}
v_pk_mul_f32 {R(wf,2)}, {R(wf,2)}, {R(TA,2)} op_sel_hi:[1,0]
v_cvt_pk_f16_f32 v{hZ1}, v{Zf}, v{Zf+1}
v_mul_f32 v{vC2}, s10, v{vDT}
s_cmp_lg_u32 s62, 0
""")
    if opt.bpos == 1: a("s_barrier")
    if opt.go == 1: a(f"ds_write_b32 v{vCF}, v{vONE} offset:96")
    if opt.stamps == 1: stamp(a, opt, 10)
    pend = []
    def flush():
        for t, slot in pend: a(f"ds_write_addtid_b32 v{t} offset:{PITCH*slot}")
        pend.clear()
    def put(reg, slot):
        pend.append((reg, slot))
        if len(pend) == opt.batch: flush()
    rot = [0]
    def tmp():
        r = 120 + rot[0] % 8; rot[0] += 1; return r
    keep = {0: 111, 2: 112, 4: 113, 6: 114, 256: 115, 260: 116, 512: 117, 768: 118, 1024: 119}
    def L(b, src, m, slot, conj=False):
        dst = keep.get(b) or tmp()
        hmul(dst, src, m, conj); put(dst, slot)
    a(f"v_cvt_pk_f16_f32 v{keep[0]}, v{CC}, v{CC+1}"); put(keep[0], 0)
    hmul(hz2, hz1, hz1)
    a(f"v_cvt_pk_f16_f32 v{RR[1]}, v{wf}, v{wf+1}")
    L(1, keep[0], hz1, 1); L(2, keep[0], hz2, 2)
    hmul(hz4, hz2, hz2)
    L(3, keep[2], hz1, 3); L(4, keep[0], hz4, 4); L(5, keep[4], hz1, 5); L(6, keep[4], hz2, 6); L(7, keep[6], hz1, 7)
    L(256, keep[0], hZ1, 8); L(258, keep[2], hZ1, 10); L(260, keep[4], hZ1, 11); L(262, keep[6], hZ1, 14)
    L(264, keep[256], RR[1], 15, conj=True)
    flush()
    for k in range(4): a(f"ds_read_b128 {R(vLF+4*k,4)}, v{vSL0} offset:{64*k}")
    if opt.bpos == 2: a("s_barrier")
    if opt.k4 < 2: kprio(a, opt, 1)
    hmul(hZ2, hZ1, hZ1)
    cmul(a, w2, wf, wf)
    L(512, keep[0], hZ2, 0); L(516, keep[4], hZ2, 1); L(768, keep[256], hZ2, 4); L(772, keep[260], hZ2, 5)
    hmul(hZ4, hZ2, hZ2)
    cmul(a, w4, w2, w2)
    L(1024, keep[0], hZ4, 8); L(1280, keep[256], hZ4, 12); L(1536, keep[512], hZ4, 9); L(1792, keep[768], hZ4, 13); L(2048, keep[1024], hZ4, 6)
    flush()
    for k in range(4): a(f"ds_read_b128 {R(vLF+16+4*k,4)}, v{vSR} offset:{64*k}")
    if opt.stamps == 1: stamp(a, opt, 11)
    if opt.bpos == 3: a("s_barrier")
    if opt.go == 2: a(f"ds_write_b32 v{vCF}, v{vONE} offset:96")
    if opt.k4: kprio(a, opt, 2 if opt.k4 == 1 else 1)
    t = tmp()
    a(f"v_mov_b32 v{t}, 0x3c00"); put(t, 0); put(RR[1], 1)
    a(f"v_cvt_pk_f16_f32 v{RR[2]}, v{w2}, v{w2+1}"); put(RR[2], 2)
    a(f"v_cvt_pk_f16_f32 v{RR[4]}, v{w4}, v{w4+1}"); put(RR[4], 4)
    hmul(RR[3], RR[1], RR[2]); put(RR[3], 3)
    hmul(RR[8], RR[4], RR[4]); put(RR[8], 8)
    for j in (5, 6, 7): hmul(RR[j], RR[j-4], RR[4]); put(RR[j], j)
    hmul(RR[16], RR[8], RR[8])
    if opt.rhi:
        a(f"ds_write_addtid_b32 v{RR[16]} offset:{PITCH*16}")
    for j in range(9, 16):
        hmul(RR[j], RR[j-8], RR[8]); put(RR[j], j)
        if j == 11 and not opt.k4: kprio(a, opt, 2)
    flush()
    if opt.rhi:
        WF = 104
        if opt.go == 3: a(f"ds_write_b32 v{vCF}, v{vONE} offset:96")
        a.label("L_tw")
        a(f"ds_read_b32 v13, v{vCF} offset:100")
        a(f"ds_read_b128 v[88:91], v{vTA}")
        a(f"ds_read_b128 v[92:95], v14 offset:1024")
        for k in range(4):
            a(f"ds_read_b128 {R(vRF+4*k,4)}, v{vSR} offset:{64*k}")
            a(f"ds_read_b128 {R(WF+4*k,4)}, v{vSL1} offset:{64*k}")
        if opt.stamps == 1: stamp(a, opt, 12, True)
        if opt.k4: kprio(a, opt, 3 if opt.k4 == 1 else 2)
        else: a(f"s_setprio {opt.xprio}")
        def mm(n, k, m):
            dd = vD + 8 * m + 4 * n
            src = (vRF if n == 0 else WF) + 4 * k
            a(f"{MH} {R(dd,4)}, {R(vLF+16*m+4*k,4)}, {R(src,4)}, {'0' if k == 0 else R(dd,4)}")
        for k in range(4):
            if opt.k4 >= 2 and k == opt.k4: kprio(a, opt, 3)
            a(f"s_waitcnt lgkmcnt({6-2*k})")
            if k == 0:
                a("v_cmp_gt_u32 vcc, 4, v13\ns_cbranch_vccnz L_tws\nL_twd:")
                STUBS.append("L_tws:\ns_sleep 1\ns_waitcnt lgkmcnt(0)\ns_sub_u32 s34, s34, 1\ns_cbranch_scc0 L_tw\ns_branch L_twd")
            adds = [[(vU, 88, 56), (vKF, 89, 57)], [(vKT, 90, 57), (vPW0, 91, 60)], [(vPA, 92, 61), (vAC, 95, 57)], [(vKD, 93, 57), (vRD, 94, 58)]][k]
            for dd_, ss_, sg_ in adds: a(f"v_add_u32 v{dd_}, s{sg_}, v{ss_}")
            for e in range(4):
                t = tmp(); x = vRF + 4 * k + e; m_ = WF + 4 * k + e
                a(f"v_pk_mul_f16 v{t}, v{x}, v{m_} op_sel:[0,0] op_sel_hi:[0,1]")
                a(f"v_pk_fma_f16 v{m_}, v{x}, v{m_}, v{t} op_sel:[1,1,0] op_sel_hi:[1,0,1] neg_lo:[0,1,0]")
                if e == 0: mm(0, k, 0)
                if e == 1 and k > 0: mm(1, k - 1, 0)
                if e == 2: mm(0, k, 1)
                if e == 3 and k > 0: mm(1, k - 1, 1)
        a("s_nop 1")
        mm(1, 3, 0); mm(1, 3, 1)
        a(f"s_setprio {opt.xprio}\ns_nop 0" if opt.k4 else "s_nop 1")
    else:
        for k in range(4): a(f"ds_read_b128 {R(vRF+4*k,4)}, v{vSR} offset:{64*k}")
        put(RR[16], 0)
        for j in range(17, 32):
            t = tmp()
            hmul(t, RR[j-16], RR[16]); put(t, j - 16)
            if j == 19:
                a(f"s_waitcnt lgkmcnt({4 - len(pend)})")
            if 19 <= j < 27:
                k, m = (j - 19) // 2, (j - 19) % 2
                dd = vD + 8 * m
                a(f"{MH} {R(dd,4)}, {R(vLF+16*m+4*k,4)}, {R(vRF+4*k,4)}, {'0' if k == 0 else R(dd,4)}")
        flush()
        if opt.stamps == 1: stamp(a, opt, 12, True)
        for k in range(4): a(f"ds_read_b128 {R(vRF+4*k,4)}, v{vSR} offset:{64*k}")
        a(f"s_setprio {opt.xprio}")
        for k in range(4):
            a(f"s_waitcnt lgkmcnt({3-k})")
            for m in range(2):
                dd = vD + 8 * m + 4
                a(f"{MH} {R(dd,4)}, {R(vLF+16*m+4*k,4)}, {R(vRF+4*k,4)}, {'0' if k == 0 else R(dd,4)}")
    a(f"""
ds_write_b128 v{vPW0}, {R(vD,4)}
s_cmp_lg_u32 s62, 0
s_cbranch_scc1 L_xL
ds_write_addtid_b32 v{vD+8} offset:2048
ds_write_addtid_b32 v{vD+10} offset:2560
{"ds_write_addtid_b32 v%d offset:2816" % (vD+9) if opt.lall else "s_nop 0"}
s_nop 1
ds_write_b128 v{vPW0}, {R(vD+4,4)} offset:512
ds_write_addtid_b32 v{vD+12} offset:2304
{"ds_write_addtid_b32 v%d offset:3072" % (vD+13) if opt.lall else ""}
ds_write_b32 v{vCF}, v{vONE}
""")
    if opt.stamps == 1: stamp(a, opt, 13)
    wait_flags(a, [(20, 4)], "pxd")
    stamp(a, opt, 4)
    A_, B_, Pv, E, O, E2, O2 = 88, 100, 96, 108, 112, 116, 120
    d = lambda k: A_ + k
    a(f"""
ds_read_b128 {R(A_+4,4)}, v{vRD} offset:16
ds_read_b128 {R(B_+4,4)}, v{vRD} offset:{STGW+16}
ds_read_b128 {R(A_,4)}, v{vRD}
ds_read_b128 {R(B_,4)}, v{vRD} offset:{STGW}
{"" if opt.lall else "ds_read_addtid_b32 v20 offset:%d" % (STGW+2048)}
{"" if opt.lall else "ds_read_addtid_b32 v21 offset:%d" % (STGW+2304)}
s_waitcnt lgkmcnt({2 if opt.lall else 4})
v_pk_add_f32 {R(A_+4,2)}, {R(A_+4,2)}, {R(B_+4,2)}
v_pk_add_f32 {R(A_+6,2)}, {R(A_+6,2)}, {R(B_+6,2)}
v_pk_mul_f32 {R(A_+4,2)}, {R(A_+4,2)}, {R(vC2,2)} op_sel_hi:[1,0]
v_pk_mul_f32 {R(A_+6,2)}, {R(A_+6,2)}, {R(vC2,2)} op_sel_hi:[1,0]
s_waitcnt lgkmcnt({0 if opt.lall else 2})
v_pk_add_f32 {R(A_,2)}, {R(A_,2)}, {R(B_,2)}
v_pk_add_f32 {R(A_+2,2)}, {R(A_+2,2)}, {R(B_+2,2)}
v_fma_f32 v{A_}, v{A_}, v{vC2}, v{vDSK}
v_mul_f32 v{A_+1}, v{A_+1}, v{vC2}
v_pk_mul_f32 {R(A_+2,2)}, {R(A_+2,2)}, {R(vC2,2)} op_sel_hi:[1,0]
v_mov_b32_dpp v{Pv}, v{d(5)} wave_shr:1 row_mask:0xf bank_mask:0xf bound_ctrl:0
v_mov_b32_dpp v{Pv+1}, v{d(6)} wave_shr:1 row_mask:0xf bank_mask:0xf bound_ctrl:0
v_mov_b32_dpp v{Pv+2}, v{d(7)} wave_shr:1 row_mask:0xf bank_mask:0xf bound_ctrl:0
v_cvt_pk_bf16_f32 v{E}, v{d(7)}, v{d(6)}
v_cvt_pk_bf16_f32 v{E+1}, v{d(5)}, v{d(4)}
v_cvt_pk_bf16_f32 v{E+2}, v{d(3)}, v{d(2)}
v_cvt_pk_bf16_f32 v{E+3}, v{d(1)}, v{d(0)}
ds_write_b128 v{vKD}, {R(E,4)}
v_cvt_pk_bf16_f32 v{O}, v{d(6)}, v{d(5)}
v_cvt_pk_bf16_f32 v{O+1}, v{d(4)}, v{d(3)}
v_cvt_pk_bf16_f32 v{O+2}, v{d(2)}, v{d(1)}
v_cvt_pk_bf16_f32 v{O+3}, v{d(0)}, v{Pv+2}
ds_write_b128 v{vKD}, {R(O,4)} offset:{KCP}
v_mov_b32 v{E2}, v{E+1}
v_mov_b32 v{E2+1}, v{E+2}
v_mov_b32 v{E2+2}, v{E+3}
v_cvt_pk_bf16_f32 v{E2+3}, v{Pv+2}, v{Pv+1}
ds_write_b128 v{vKD}, {R(E2,4)} offset:{2*KCP}
v_mov_b32 v{O2}, v{O+1}
v_mov_b32 v{O2+1}, v{O+2}
v_mov_b32 v{O2+2}, v{O+3}
v_cvt_pk_bf16_f32 v{O2+3}, v{Pv+1}, v{Pv}
ds_write_b128 v{vKD}, {R(O2,4)} offset:{3*KCP}
""")
    if not opt.lall: a(f"""
s_waitcnt lgkmcnt(4)
v_add_f32 v20, v20, v{vD+9}
v_add_f32 v21, v21, v{vD+13}
v_mul_f32 v20, v20, v{vC2}
v_mul_f32 v21, v21, v{vC2}
v_cvt_pk_bf16_f32 v20, v20, v21
""")
    for sg in range(0 if opt.lall else 4):
        a(f"ds_write_b16 v{vAC}, v20 offset:{sg*(KCP-2)+16}")
        a(f"ds_write_b16_d16_hi v{vAC}, v20 offset:{sg*(KCP-2)}")
    a(f"ds_write_b32 v{vCF}, v{vONE} offset:8")
    stamp(a, opt, 5)
    SD = Stream(a)
    F = {16 + 32 * s: Frag("F", 16 + 32 * s, dF + 4 * s) for s in range(16)}
    for k in range(opt.pre):
        SD.load(F[16 + 32 * k] if opt.blk else F[16 + 32 * (k // 2) + 256 * (k % 2)])
    a(f"s_setprio {dprio(opt, 0)}")
    if opt.stag: a(f"s_cmp_ge_u32 s45, 2\ns_cbranch_scc1 L_dl\ns_setprio 0\nL_dl:")
    wait_flags(a, [(18, 16)] if opt.defer else [(18, 16), (19, 12)], "d")
    SD.done = SD.lds_n
    stamp(a, opt, 7, True)
    emit_dense(a, opt, SD, F)
    a("s_branch L_fin")
    a.label("L_xL")
    a(f"""
{"s_nop 0" if opt.lall else "ds_write_addtid_b32 v%d offset:2048" % (vD+9)}
v_mov_b32 v20, s61
s_nop 2
ds_write_b128 v{vPW0}, {R(vD+4,4)} offset:512
{"" if opt.lall else "ds_write_addtid_b32 v%d offset:2304" % (vD+13)}
ds_write_b32 v{vCF}, v{vONE} offset:4
s_mov_b32 m0, s61
""")
    if opt.stamps == 1: stamp(a, opt, 13)
    wait_flags(a, [(21, 0)], "pxl")
    stamp(a, opt, 4)
    n0, n1 = vD + 8, vD + 12
    a(f"""
ds_read_addtid_b32 v24 offset:2048
ds_read_addtid_b32 v25 offset:2304
ds_read_addtid_b32 v26 offset:2560
{"ds_read_addtid_b32 v27 offset:2816" if opt.lall else ""}
{"ds_read_addtid_b32 v28 offset:3072" if opt.lall else ""}
ds_read_b128 v[32:35], v20 offset:2032
ds_read_b128 v[36:39], v20 offset:{2032+STGW}
s_mov_b32 s8, -2
s_waitcnt lgkmcnt(2)
v_add_f32 v24, v24, v{n0}
v_add_f32 v25, v25, v{n1}
v_add_f32 v26, v26, v{n0+2}
v_mul_f32 v24, v24, v{vC2}
v_mul_f32 v25, v25, v{vC2}
v_mul_f32 v26, v26, v{vC2}
v_cvt_pk_bf16_f32 v40, v24, v25
v_mov_b32_dpp v42, v24 quad_perm:[0,0,0,0] row_mask:0x4 bank_mask:0xf
""")
    for sg in range(4):
        a(f"ds_write_b16_d16_hi v{vAC}, v40 offset:{sg*(KCP-2)}")
    if opt.lall:
        a(f"""
v_add_f32 v27, v27, v{n0+1}
v_add_f32 v28, v28, v{n1+1}
v_mul_f32 v27, v27, v{vC2}
v_mul_f32 v28, v28, v{vC2}
v_cvt_pk_bf16_f32 v41, v27, v28
""")
        for sg in range(4):
            a(f"ds_write_b16 v{vRD}, v41 offset:{sg*(KCP-2)+16}")
            a(f"ds_write_b16_d16_hi v{vRD}, v41 offset:{sg*(KCP-2)}")
    a(f"""
s_waitcnt lgkmcnt({12 if opt.lall else 4})
v_mov_b32_dpp v42, v26 quad_perm:[0,1,2,3] row_mask:0x2 bank_mask:0xf
v_add_f32 v33, v33, v37
v_pk_add_f32 v[34:35], v[34:35], v[38:39]
v_mul_f32 v33, v33, v{vC2}
v_pk_mul_f32 v[34:35], v[34:35], {R(vC2,2)} op_sel_hi:[1,0]
s_mov_b32 exec_lo, s8
s_mov_b32 exec_hi, s8
""")
    for sg in range(4):
        a(f"ds_write_b16 v{vAC}, v40 offset:{sg*(KCP-2)+16}")
    a(f"""
s_mov_b64 exec, -1
v_mov_b32_dpp v42, v33 quad_perm:[0,1,2,3] row_mask:0x8 bank_mask:0x1
v_mov_b32_dpp v42, v34 quad_perm:[0,1,2,3] row_mask:0x8 bank_mask:0x2
v_mov_b32_dpp v42, v35 quad_perm:[0,1,2,3] row_mask:0x1 bank_mask:0xf
v_subrev_u32 v19, 4096, v{vTA}
v_cvt_pk_bf16_f32 v42, v42, v42
""")
    for sg in range(4):
        a(f"ds_write_b16 v{vAM}, v42 offset:{sg*(KCP-2)}")
    a(f"ds_write_b32 v{vCF}, v{vONE} offset:12")
    stamp(a, opt, 5)
    SL = Stream(a)
    LK = level_frags()
    for k in LORDER[:opt.prel]:
        SL.load(LK[k])
    a(f"s_setprio {int(str(opt.llist)[0]) if opt.llist else min(dprio(opt, 0) + opt.lup, 3)}")
    if opt.stag: a(f"s_cmp_ge_u32 s45, 2\ns_cbranch_scc1 L_ll\ns_setprio 0\nL_ll:")
    wait_flags(a, [(16, 16), (17, 8)], "l")
    SL.done = SL.lds_n
    stamp(a, opt, 7, True)
    for j, wdt in enumerate((3, 5, 7, 9)):
        SL.lds(f"ds_read_b128 {R(BOX[wdt],4)}, v19 offset:{1024*j}")
    if not opt.nol: emit_level(a, opt, SL, LK)
    a("s_branch L_fin")
    NM = opt.nm; TP = 8 // NM; S2 = NM == 2 or opt.st2
    mT, mIN, mSO = 88, 96, 104
    a(f"""
{".p2align 6" if opt.malign else ""}
L_mem0:
{"s_waitcnt lgkmcnt(0)" if opt.map else ""}
{"s_cmp_ge_u32 s5, 1024" if opt.map else ""}
{"s_cbranch_scc1 L_end" if opt.map else ""}
s_sub_u32 s45, s44, 12
v_mov_b32 v8, 0
v_mov_b32 v9, 0
v_mov_b32 v10, 0
v_mov_b32 v11, 0
v_lshlrev_b32 v17, 4, v1
ds_write_b128 v17, v[8:11] offset:{FL}
v_min_u32 v5, 5, v1
v_mul_u32_u24 v16, {CHB}, v5
ds_write_b32 v16, v8 offset:{OFLO}
ds_write_b32 v16, v8 offset:{OFLO + 256}
s_mul_i32 s8, s45, {6*KCP}
s_add_u32 s8, s8, {KA}
v_add_u32 v7, s8, v17
""")
    for k in range(6): a(f"ds_write_b128 v7, v[8:11] offset:{KCP*k + 1024}")
    a(f"""
v_lshrrev_b32 v7, 2, v1
v_min_u32 v7, 5, v7
v_mul_u32_u24 v7, {KCP}, v7
v_and_b32 v6, 48, v17
v_add3_u32 v7, v7, v6, s8
ds_write_b128 v7, v[8:11]
v_lshrrev_b32 v7, 5, v1
s_lshl_b32 s8, s45, 1
v_add_u32 v7, s8, v7
v_min_u32 v7, 5, v7
v_mul_u32_u24 v7, {UCH}, v7
v_and_b32 v6, 31, v1
v_lshl_add_u32 v6, v6, 4, v7
v_add_u32 v6, {UB}, v6
ds_write_b128 v6, v[8:11]
s_getpc_b64 s[52:53]
L_pc2:
s_add_u32 s52, s52, L_table-L_pc2
s_addc_u32 s53, s53, 0
s_lshl_b32 s8, s45, 11
v_add_u32 v17, s8, v17
s_add_u32 s8, s8, {BOXL}
s_mov_b32 m0, s8
v_lshlrev_b32 v6, 7, v5
{"global_load_lds_dwordx4 v17, s[52:53]" if opt.tearly else ""}
{"global_load_lds_dwordx4 v17, s[52:53] offset:1024" if opt.tearly else ""}
v_and_b32 v4, 15, v1
v_lshrrev_b32 v15, 4, v1
""")
    ts = 1 if opt.tint else TP
    tj = NM if opt.tint else 1
    a(f"""
s_lshl_b32 s47, s5, 1
s_mul_i32 s9, s45, {ts*256*1152}
s_add_u32 s9, s9, s47
v_mul_u32_u24 v19, {4*1152}, v1
s_add_u32 s48, s48, s47
s_mov_b32 s34, {2048*2304}
s_mov_b32 s35, 0x00020000
s_mov_b32 s50, 0x05040100
s_mov_b32 s51, 0x07060302
s_mov_b32 s36, 0x40000
v_lshl_add_u32 v4, v4, 2, v15
v_mul_u32_u24 v18, {4*2304}, v4
s_mul_i32 s8, s45, {ts*512}
s_add_u32 s8, s8, {UB + 512}
v_lshl_add_u32 v3, v1, 3, s8
v_add_u32 v18, s48, v18
s_mul_i32 s8, s45, {ts*4}
s_add_u32 s8, s8, {FL + 16}
v_lshl_add_u32 v14, v5, 7, s8
v_mov_b32 v2, 1
s_and_b32 s8, s45, {1 if S2 else 3}
s_mul_i32 s57, s8, {4608 if S2 else 2304}
s_mov_b32 s56, 1
s_lshr_b32 s8, s8, {0 if S2 else 1}
s_lshl_b32 s8, s8, 8
s_add_u32 s8, s8, {OUTO}
v_lshl_add_u32 v4, v1, 2, s8
""")
    if opt.mord:
        for k in range(NM - 1):
            a(f"s_cmp_eq_u32 s45, {k}\ns_cbranch_scc1 L_mp\ns_setprio {2-k}")
        a.label("L_mp")
    a(f"""
s_waitcnt lgkmcnt(0)
s_mov_b32 s18, {2048*1152}
s_mov_b32 s19, 0x00020000
""")
    if opt.stamps == 1: stamp(a, opt, 14)
    a("s_barrier")
    def chainwait(tag):
        a(f"""
v_mov_b32 v6, {FL + 96 + 128*opt.trig}
L_chw{tag}:
ds_read_b32 v7, v6
s_waitcnt lgkmcnt(0)
s_sub_u32 s36, s36, 1
s_cbranch_scc1 L_chok{tag}
v_cmp_eq_u32 vcc, 0, v7
s_cbranch_vccz L_chok{tag}
s_sleep 2
s_branch L_chw{tag}
L_chok{tag}:
""")
    if opt.chain and NM == 4:
        a(f"s_cmp_lt_u32 s45, {opt.chain}\ns_cbranch_scc1 L_chok")
        chainwait("")
    if opt.go:
        a(f"""
s_mov_b64 exec, 63
s_waitcnt vmcnt(0)
ds_add_u32 v6, v2 offset:{FL + 100}
s_mov_b64 exec, -1
""")
        chainwait("g")
    stamp(a, opt, 1)
    if not opt.tearly: a("global_load_lds_dwordx4 v17, s[52:53]\nglobal_load_lds_dwordx4 v17, s[52:53] offset:1024")
    for j in range(TP):
        if j == 1 and not opt.go:
            a(f"""
s_mov_b64 exec, 63
s_waitcnt vmcnt(4)
ds_add_u32 v6, v2 offset:{FL + 100}
s_mov_b64 exec, -1
""")
        if opt.chain and NM == 2 and j == opt.chain: chainwait("")
        for e in range(4):
            a(f"buffer_load_dwordx3 {R(mUD+16*j+4*e,3)}, v19, s[16:19], s9 offen offset:{e*1152}" + (" nt" if opt.nt else ""))
        if j < TP - 1: a(f"s_add_u32 s9, s9, {tj*256*1152}")
    stamp(a, opt, 2)
    a("s_setprio 3")
    for j in range(TP):
        a(f"s_waitcnt vmcnt({4*(TP-1-j)})")
        q = lambda e, m: mUD + 16 * j + 4 * e + m
        for m in range(3):
            for hi in range(2):
                t = mT + 2 * ((2 * m + hi) % 4)
                a(f"v_perm_b32 v{t}, v{q(1,m)}, v{q(0,m)}, s{50+hi}")
                a(f"v_perm_b32 v{t+1}, v{q(3,m)}, v{q(2,m)}, s{50+hi}")
                a(f"ds_write_b64 v3, {R(t,2)} offset:{(2*m+hi)*UCH + 512*tj*j}")
        a(f"ds_write_b32 v14, v2 offset:{4*tj*j}")
        stamp(a, opt, 6 if j == 0 else (11 if j == TP - 1 else (4 if j == 1 else 12)))
    if not S2: a("s_bitcmp1_b32 s45, 0\ns_cselect_b32 s50, s51, s50")
    if NM == 4 and S2: a("s_cmp_lt_u32 s45, 2\ns_cbranch_scc1 L_fin")
    a(f"""
L_mpoll:
ds_read_b32 v8, v16 offset:{OFLO}
s_waitcnt lgkmcnt(0)
v_cmp_gt_u32 vcc, s56, v8
s_cbranch_vccz L_mgo
s_sleep {opt.msleep}
s_sub_u32 s36, s36, 1
s_cbranch_scc0 L_mpoll
L_mgo:
""")
    for c in range(6):
        a(f"ds_read_b32 v{mIN+c}, v4 offset:{CHB*c}")
    a(f"v_add_u32 v4, 512, v4")
    for m in range(3):
        a(f"s_waitcnt lgkmcnt({4-2*m})")
        a(f"v_perm_b32 v{mSO+m}, v{mIN+2*m+1}, v{mIN+2*m}, s50")
    a(f"buffer_store_dwordx3 {R(mSO,3)}, v18, s[32:35], s57 offen")
    if S2:
        for m in range(3): a(f"v_perm_b32 v{mSO+4+m}, v{mIN+2*m+1}, v{mIN+2*m}, s51")
        a(f"buffer_store_dwordx3 {R(mSO+4,3)}, v18, s[32:35], s57 offen offset:2304")
    a(f"s_add_u32 s57, s57, {256*2304}\ns_add_u32 s56, s56, 1")
    if opt.stamps:
        a(f"s_cmp_lg_u32 s56, 2\ns_cbranch_scc1 L_ms")
        stamp(a, opt, 10)
        a.label(f"L_ms")
    a(f"s_cmp_le_u32 s56, 8\ns_cbranch_scc1 L_mpoll")
    a.label("L_fin")
    if opt.amp: stamp(a, opt, 8)
    if opt.stamps and not opt.amp:
        stamp(a, opt, 8)
        a("s_waitcnt vmcnt(0)")
        stamp(a, opt, 9)
        a(f"""
s_load_dwordx2 s[8:9], s[0:1], 128
s_waitcnt lgkmcnt(0)
s_lshl_b32 s10, s2, 4
s_add_u32 s10, s10, s44
s_lshl_b32 s10, s10, 7
s_add_u32 s10, s10, {1<<20}
v_mov_b32 v20, s10
""")
        for k in range(1, NST):
            a(f"s_sub_u32 s11, s{64+2*k}, s64\nv_mov_b32 v21, s11\nglobal_store_dword v20, v21, s[8:9] offset:{4*k}")
        a("s_memrealtime s[10:11]\ns_waitcnt lgkmcnt(0)\nv_mov_b32 v21, s10\nglobal_store_dword v20, v21, s[8:9] offset:0")
        a("v_mov_b32 v21, s100\nglobal_store_dword v20, v21, s[8:9] offset:80")
        a("s_getreg_b32 s11, hwreg(HW_REG_HW_ID)\nv_mov_b32 v21, s11\nglobal_store_dword v20, v21, s[8:9] offset:84")
        a("s_getreg_b32 s11, hwreg(HW_REG_XCC_ID)\nv_mov_b32 v21, s11\nglobal_store_dword v20, v21, s[8:9] offset:88")
        a("v_mov_b32 v21, s64\nglobal_store_dword v20, v21, s[8:9] offset:92")
    if opt.amp:
        ampx = ("s_add_u32 s10, s82, %d" % opt.amp) if opt.amp > 100 else ("s_sub_u32 s10, s%d, s64\ns_lshl_b32 s10, s10, 2\ns_add_u32 s10, s10, s82" % (64 + 2 * opt.amp))
        a(f"""
s_waitcnt vmcnt(0)
s_memtime s[82:83]
s_waitcnt lgkmcnt(0)
{"s_cmp_lg_u32 s2, %d" % opt.ampg if opt.ampg >= 0 else ""}
{"s_cbranch_scc1 L_end" if opt.ampg >= 0 else ""}
s_cmp_lg_u32 s44, {opt.ampw}
s_cbranch_scc1 L_end
{ampx}
L_amp:
s_memtime s[12:13]
s_waitcnt lgkmcnt(0)
s_sub_u32 s11, s12, s10
s_cmp_lt_i32 s11, 0
s_cbranch_scc1 L_amp
""")
    a.label("L_end")
    a("s_endpgm")
    for st in STUBS: a(st)
    a.label("L_codeend")
    out += a.text()
    out += ".p2align 7\n.type L_table,@object\nL_table:\n"
    for row in lane_table():
        out += ".long " + ", ".join(f"{x:#x}" for x in row) + "\n"
    out += ".size L_table, 8192\n"
    if opt.map:
        out += ".type L_wgmap,@object\nL_wgmap:\n"
        m_ = wg_map(opt.map)
        for i in range(0, len(m_), 8): out += ".long " + ", ".join(str(x) for x in m_[i:i+8]) + "\n"
        out += f".size L_wgmap, {4*len(m_)}\n"
    out += f""".section .rodata,"a"
.p2align 6
.amdhsa_kernel {NAME}_kernel
  .amdhsa_next_free_vgpr 128
  .amdhsa_next_free_sgpr 102
  .amdhsa_accum_offset 128
  .amdhsa_group_segment_fixed_size 0
  .amdhsa_kernarg_size 136
  .amdhsa_user_sgpr_count 2
  .amdhsa_user_sgpr_kernarg_segment_ptr 1
  .amdhsa_system_sgpr_workgroup_id_x 1
.end_amdhsa_kernel
"""
    return out

if __name__ == "__main__":
    p = argparse.ArgumentParser()
    p.add_argument("-o", default="cdna_kernels/" + NAME + ".s")
    for k, v in dict(stamps=0, la=6, batch=8, pre=15, prel=1, codepf=0, chain=0, trig=0, rhi=1, sidem=1, blk=8, dry=0, bpos=0, lall=1, clist=33322110, kli=15, stag=0, malign=1, map=0, tearly=0, go=0, nm=4, tint=1, st2=1, plist=33221100, llist=3322110, mold=1, bprio=0, wb=0, wbg=8, amp=0, ampg=0, ampw=15, k4=3, alow=0, e2=1, gate=0, nt=0, kmin=0, upf=0, nol=0, msleep=1, quarter=1,
                     ptop=2, pstep=3, lead=-1, xprio=3, mord=0, lateb=1, defer=1, ktop=3, klead=0, thr=0, lup=0).items():
        p.add_argument("--" + k, type=int, default=v)
    opt = p.parse_args()
    open(opt.o, "w").write(generate(opt))
```

```python
import sys, argparse

NAME = "concat_heads__ssm_conv_s4d__ssm_conv_s4d__prompt"

PITCH = 288
STGW = 4896
CHB = 10752
OUTO, OFLO = 6144, 10240
FL = 6 * CHB
KA = FL + 1024
KCP = 2112
KCH = 4 * KCP
UB = KA + 6 * KCH
UCH = 4608
BOXL = UB + 6 * UCH
TABL = BOXL + 4096
LDS_TOTAL = TABL + 4096
ZD, ZX = 543, 1615
Z2 = [687 + 64 * m for m in range(4)]
Z3 = [991, 1071]
DUMMY = 1040

vPA, vCF, vONE, vOW = 0, 1, 2, 3
vU, vKF, vKT, vSR, vSL0, vSL1, vPW0 = 4, 5, 6, 7, 8, 9, 10
vTA = 15
vKD, vRD = 11, 12
vAC, vAM = 14, 11
BOX = {3: 112, 5: 116, 7: 120, 9: 124}
vLF, vRF, vD = 20, 52, 68
vP = 36
vDT, vDSK, vC2 = 84, 85, 86
Z_, W_, ZZ, X_, Y_ = 88, 90, 92, 94, 96
T_ = [98, 99, 100, 101]
dF, dACC, dG, dPT, dOT, dFLG, dCN, dUT = 20, 84, 96, 12, 16, 18, 8, 10
dTH, dTT = 6, 19
lT2, lT3, lFX, lF5, lACC, lW, lG, lUT = 20, 44, 60, 64, 68, 92, 104, 7
mUD, mT, mIN, mSO = 20, 52, 60, 72
MF = "v_mfma_f32_16x16x32_bf16"

class Asm:
    def __init__(self): self.lines = []; self.marks = {}
    def __call__(self, s):
        for l in s.strip("\n").split("\n"):
            if not l.strip(): continue
            self.lines.append(l if l.rstrip().endswith(":") and not l.startswith(" ") else "    " + l.strip())
    def label(self, l): self.lines.append(l + ":")
    def text(self): return "\n".join(self.lines) + "\n"

def R(a, n=1): return f"v{a}" if n == 1 else f"v[{a}:{a+n-1}]"

def cmul(a, dst, x, m, conj=False):
    if not conj:
        a(f"v_pk_mul_f32 {R(dst,2)}, {R(x,2)}, {R(m,2)} op_sel:[0,0] op_sel_hi:[0,1]")
        a(f"v_pk_fma_f32 {R(dst,2)}, {R(x,2)}, {R(m,2)}, {R(dst,2)} op_sel:[1,1,0] op_sel_hi:[1,0,1] neg_lo:[0,1,0]")
    else:
        a(f"v_pk_mul_f32 {R(dst,2)}, {R(x,2)}, {R(m,2)} op_sel:[0,0] op_sel_hi:[0,1] neg_hi:[0,1]")
        a(f"v_pk_fma_f32 {R(dst,2)}, {R(x,2)}, {R(m,2)}, {R(dst,2)} op_sel:[1,1,0] op_sel_hi:[1,0,1]")

NST = 18
def stamp(a, opt, idx, wait=False):
    if opt.stamps and idx is not None:
        a(f"s_memtime s[{64+2*idx}:{65+2*idx}]")
        if wait: a("s_waitcnt lgkmcnt(0)")

class Frag:
    def __init__(self, kind, key, reg=None):
        self.kind, self.key, self.reg = kind, key, reg
        self.first = None; self.last = None; self.issued = False; self.seq = -1

def frag_reads(f):
    k = f.key
    if f.kind == "G": return [("ds_read_b128", f.reg, 4, vU, 512 + 2 * k)]
    if f.kind in ("F", "FX"):
        o = 2 * (ZD - 3 - k) if f.kind == "F" else 2 * (ZX - 3 - 1040)
        return [("ds_read_b64", f.reg, 2, vKF, o), ("ds_read_b64", f.reg + 2, 2, vKF, o + 8)]
    if f.kind == "T2":
        d, h = k
        return [("ds_read_b64", f.reg + 2 * j, 2, vKT, 2 * (Z2[2 * h + j] - 3 - 16 * d)) for j in range(2)]
    if f.kind == "T3":
        return [("ds_read_b64", f.reg + 2 * j, 2, vKT, 2 * (Z3[j] - 3 - 16 * k)) for j in range(2)]
    raise ValueError

class Stream:
    def __init__(self, a):
        self.a = a; self.n = 0; self.lds_n = 0; self.done = 0
    def ins(self, s, w=1): self.a(s); self.n += w
    def lds(self, s): self.ins(s); self.lds_n += 1; return self.lds_n
    def wait(self, seq):
        if seq > self.done:
            k = min(self.lds_n - seq, 15)
            self.ins(f"s_waitcnt lgkmcnt({k})"); self.done = self.lds_n - k
    def until(self, n):
        if self.n < n: self.ins(f"s_nop {n - self.n - 1}", n - self.n)
    def load(self, f):
        for (mn, d, n, ar, off) in frag_reads(f):
            f.seq = self.lds(f"{mn} {R(d,n)}, v{ar} offset:{off}")
        f.issued = True

STUBS = []
def wait_flags(a, reads, tag, sh=False):
    rd = "\n".join(f"ds_read_b32 v{t}, v{vCF} offset:{o}" for t, o in reads)
    comb = "" if len(reads) == 1 else f"v_and_b32 v{reads[0][0]}, v{reads[0][0]}, v{reads[1][0]}\n"
    if sh: comb = f"v_lshrrev_b32 v{reads[0][0]}, 2, v{reads[0][0]}\n" + comb
    a.label(f"L_w_{tag}")
    a(f"{rd}\ns_waitcnt lgkmcnt(0)\n{comb}v_cmp_eq_u32 vcc, 0, v{reads[0][0]}\ns_cbranch_vccnz L_ws_{tag}")
    a.label(f"L_wd_{tag}")
    STUBS.append(f"L_ws_{tag}:\ns_sleep 1\ns_sub_u32 s34, s34, 1\ns_cbranch_scc0 L_w_{tag}\ns_branch L_wd_{tag}")

def flag_check(a, S, seq, tmp, off, tag, extra=""):
    S.wait(seq)
    S.ins(f"v_cmp_eq_u32 vcc, 0, v{tmp}")
    S.ins(f"s_cbranch_vccnz L_sp_{tag}")
    a.label(f"L_ok_{tag}")
    STUBS.append(f"""L_sp_{tag}:
s_sleep 1
ds_read_b32 v{tmp}, v{vCF} offset:{off}
{extra}s_waitcnt lgkmcnt(0)
s_sub_u32 s34, s34, 1
s_cbranch_scc1 L_ok_{tag}
v_cmp_eq_u32 vcc, 0, v{tmp}
s_cbranch_vccnz L_sp_{tag}
s_branch L_ok_{tag}""")

def cnt_check(a, S, seq, tmp, rd, val, tag, extra=""):
    S.wait(seq)
    S.ins(f"v_cmp_gt_u32 vcc, {val}, v{tmp}")
    S.ins(f"s_cbranch_vccnz L_sp_{tag}")
    a.label(f"L_ok_{tag}")
    STUBS.append(f"""L_sp_{tag}:
s_sleep 1
{rd}
{extra}s_waitcnt lgkmcnt(0)
s_sub_u32 s34, s34, 1
s_cbranch_scc1 L_ok_{tag}
v_cmp_gt_u32 vcc, {val}, v{tmp}
s_cbranch_vccnz L_sp_{tag}
s_branch L_ok_{tag}""")

def early_switch(a, S, opt, tag, prio, t1, t2):
    S.ins("s_cmp_ge_u32 s45, 2")
    S.ins(f"s_cbranch_scc1 L_es_{tag}")
    a(f"""ds_read_b32 v{t1}, v{vCF} offset:{2*128+12}
ds_read_b32 v{t2}, v{vCF} offset:{4*128+12}
s_waitcnt lgkmcnt(0)
v_and_b32 v{t1}, v{t1}, v{t2}
v_cmp_eq_u32 vcc, 0, v{t1}
s_setprio {prio}
s_cbranch_vccz L_es_{tag}
s_setprio 0""")
    a.label(f"L_es_{tag}")

def dprio(opt, t):
    if opt.plist: return int(str(opt.plist)[min(t, 7)])
    return max(opt.ptop - t // opt.pstep, 0)

def emit_dense(a, opt, S, F):
    ops = []
    for tau in range(8):
        gs = [Frag("G", 256 * tau - 16 - 32 * s) for s in range(8)]
        for s in range(8): gs[s].tile = tau if s == 0 else None
        lag = opt.blk
        for s in range(8 + lag):
            if s < 8: ops.append((tau, F[16 + 32 * s], gs[s], tau == 0 and s == 0))
            if s == 7 and lag: ops.append(("end", tau))
            if tau < 7 and 0 <= s - lag < 8: ops.append((tau + 1, F[272 + 32 * (s - lag)], gs[s - lag], s == lag))
            if s == 7 and not lag: ops.append(("end", tau))
    gl = []
    for i, op in enumerate(ops):
        if op[0] == "end": continue
        for g in (op[1], op[2]):
            if g.first is None:
                g.first = i
                if not g.issued: gl.append(g)
            g.last = i
    endpos = {op[1]: i for i, op in enumerate(ops) if op[0] == "end"}
    tfirst = {g.tile: g.first for g in gl if g.kind == "G" and g.tile is not None}
    ring = [-1] * 8
    acc_last = {}
    side = []
    pinfo = {}
    PRD = f"ds_read_addtid_b32 v{dFLG} offset:{OFLO + 256}"
    def ptxt(t): return f"ds_read_b128 {R(dPT,4)}, v{vPA} offset:{(t-2)*1024}"
    def queue_out(t):
        ac = dACC + 4 * (t % 3)
        rn = acc_last[t] + 8
        if t >= 2:
            if not opt.nol:
                side.append((0, lambda: cnt_check(a, S, pinfo[t], dFLG, PRD, t, f"p{t}", ptxt(t) + "\n")))
            side.append((rn, lambda: (S.ins(f"v_add_f32 v{dPT}, v{dPT}, v{ac}"), S.ins(f"v_add_f32 v{dPT+1}, v{dPT+1}, v{ac+1}"))))
            side.append((rn, lambda: (S.ins(f"v_add_f32 v{dPT+2}, v{dPT+2}, v{ac+2}"), S.ins(f"v_add_f32 v{dPT+3}, v{dPT+3}, v{ac+3}"))))
            src = dPT
        else:
            src = ac
        side.append((rn, lambda: (S.ins(f"v_cvt_pk_bf16_f32 v{dOT}, v{src}, v{src+1}"), S.ins(f"v_cvt_pk_bf16_f32 v{dOT+1}, v{src+2}, v{src+3}"))))
        side.append((rn, lambda: (S.lds(f"ds_write_addtid_b32 v{dOT} offset:{OUTO + 512*t}"), S.ins(f"v_mov_b32 v{dCN}, {t+1}"))))
        side.append((rn, lambda: S.lds(f"ds_write_addtid_b32 v{dOT+1} offset:{OUTO + 512*t + 256}")))
        def fin():
            S.lds(f"ds_write_addtid_b32 v{dCN} offset:{OFLO}")
            if opt.stamps == 2:
                stamp(a, opt, 10 + t, True); S.done = S.lds_n
        side.append((rn, fin))
    pend = list(gl)
    useq = {}
    thr = {}
    lateF = []
    for i, op in enumerate(ops):
        if lateF and i >= opt.kli:
            while side:
                rn, fn = side.pop(0); S.until(rn); fn()
            flag_check(a, S, klseq, dFLG, 12, "kl"); S.load(lateF.pop())
        if opt.defer and i == max(opt.kli - 4, 2):
            klseq = S.lds(f"ds_read_b32 v{dFLG}, v{vCF} offset:12")
        for t in ([4] if opt.half else range(1, 8)):
            if t not in useq and i + opt.la + 3 >= tfirst[t]:
                useq[t] = S.lds(f"ds_read_b32 v{dUT}, v{vCF} offset:{20 if opt.half else 16 + 4*t}")
        while pend and pend[0].first <= i + opt.la:
            if pend[0].kind == "F":
                if opt.defer and pend[0].key == 496:
                    if i < opt.kli:
                        lateF.append(pend.pop(0)); continue
                    flag_check(a, S, klseq, dFLG, 12, "kl")
                S.load(pend.pop(0)); continue
            slot = next((s for s in range(8) if ring[s] < i), None)
            if slot is None:
                assert pend[0].first > i
                break
            g = pend.pop(0)
            if opt.half:
                if g.tile == 4: cnt_check(a, S, useq[4], dUT, f"ds_read_b32 v{dUT}, v{vCF} offset:20", 4, "du4")
            elif g.tile: flag_check(a, S, useq[g.tile], dUT, 16 + 4 * g.tile, f"du{g.tile}")
            ring[slot] = g.last; g.reg = dG + 4 * slot; S.load(g)
        for t in range(2, 8):
            if t not in pinfo and i >= endpos[t] - 3:
                while side:
                    rn, fn = side.pop(0); S.until(rn); fn()
                S.lds(PRD)
                pinfo[t] = S.lds(ptxt(t))
        if opt.thr:
            for t in range(opt.thr, 8):
                if t not in thr and i + 5 >= endpos[t - 1]:
                    thr[t] = S.lds(f"ds_read_b32 v{dTT}, v{dTH}")
        if op[0] == "end":
            t1 = op[1] + 1
            if opt.thr and opt.thr <= t1 < 8:
                S.wait(thr[t1])
                S.ins(f"v_cmp_gt_u32 vcc, {t1 - opt.thr + 1}, v{dTT}")
                S.ins(f"s_cbranch_vccnz L_th_{t1}")
                a.label(f"L_tk_{t1}")
                STUBS.append(f"""L_th_{t1}:
s_sleep 1
ds_read_b32 v{dTT}, v{dTH}
s_waitcnt lgkmcnt(0)
s_sub_u32 s34, s34, 1
s_cbranch_scc1 L_tk_{t1}
v_cmp_gt_u32 vcc, {t1 - opt.thr + 1}, v{dTT}
s_cbranch_vccnz L_th_{t1}
s_branch L_tk_{t1}""")
            queue_out(op[1])
            if opt.stag and op[1] < 7 and dprio(opt, op[1] + 1) > 0:
                post = lambda t1=op[1] + 1: early_switch(a, S, opt, f"d{t1}", dprio(opt, t1), 19, 9)
            else: post = lambda: None
            if opt.clist and op[1] < 7:
                t1 = op[1] + 1
                pa, pc = dprio(opt, t1), int(str(opt.clist)[t1])
                ca, cc = pa != dprio(opt, t1 - 1), pc != int(str(opt.clist)[t1 - 1])
                if ca and cc and pa == pc: S.ins(f"s_setprio {pa}")
                elif ca or cc:
                    assert not (ca and cc)
                    S.ins("s_cmp_ge_u32 s45, 4")
                    S.ins(f"s_cbranch_scc{1 if ca else 0} L_cp{t1}")
                    S.ins(f"s_setprio {pa if ca else pc}", 0)
                    a.label(f"L_cp{t1}")
            elif op[1] < 7 and (dprio(opt, op[1] + 1) != dprio(opt, op[1]) or (opt.alow and op[1] == 1)): S.ins(f"s_setprio {dprio(opt, op[1] + 1)}")
            post()
            continue
        t, f, g, first = op
        S.wait(max(f.seq, g.seq))
        ac = dACC + 4 * (t % 3)
        S.ins(f"{MF} {R(ac,4)}, {R(f.reg,4)}, {R(g.reg,4)}, {'0' if first else R(ac,4)}")
        acc_last[t] = S.n
        isq0 = f.key < 272
        if opt.sidem == 0 or isq0 or opt.blk:
            if side and side[0][0] <= S.n: side.pop(0)[1]()
        if isq0 and t == 7 and side and side[0][0] <= S.n: side.pop(0)[1]()
        if opt.sidem == 0 and t == 7 and not isq0 and side and side[0][0] <= S.n: side.pop(0)[1]()
    while side:
        rn, fn = side.pop(0); S.until(rn); fn()

def level_frags():
    K = {}
    for d in (2, 3, 4):
        for h in (0, 1): K[("T2", d, h)] = Frag("T2", (d, h), lT2 + 4 * ((d - 2) * 2 + h))
    for d in (4, 5, 6): K[("T3", d)] = Frag("T3", d, lT3 + 4 * (d - 4))
    K[("T3", 7)] = Frag("T3", 7, lACC + 16)
    K["FX"] = Frag("FX", 0, lFX)
    K["F5"] = Frag("F", 528, lF5)
    return K
LORDER = ["FX", ("T2", 2, 0), ("T2", 3, 0), ("T2", 4, 0), ("T2", 2, 1), ("T2", 3, 1), ("T2", 4, 1), ("T3", 7), ("T3", 4), ("T3", 5), ("T3", 6)]

def emit_level(a, opt, S, K):
    acc = lambda t: lACC + 4 * (t - 2)
    inited = set(); acc_last = {}; vq = []; wr = {}; pubq = []
    def drain(k):
        while k > 0 and vq and vq[0][0] <= S.n:
            rn, txt, key = vq.pop(0); S.ins(txt); wr[key] = S.n + 2; k -= 1
    def force(key):
        while any(q[2] == key for q in vq):
            rn, txt, kk = vq.pop(0); S.until(rn); S.ins(txt); wr[kk] = S.n + 2
    def need(f):
        if not f.issued: S.load(f)
        S.wait(f.seq)
    def mf(d, A, B, c):
        S.ins(f"{MF} {R(d,4)}, {R(A,4)}, {R(B,4)}, {c}")
        n = S.n
        if pubq: pubflush()
        else: drain(1)
        return n
    def am(t, A, B):
        c = R(acc(t), 4) if t in inited else "0"
        inited.add(t)
        acc_last[t] = mf(acc(t), A, B, c)
    G0 = [Frag("G", 256 * b - 16, lG) for b in range(6)]
    GM = [Frag("G", 256 * b - 24, lG + 4) for b in range(6)]
    S.load(G0[0]); S.load(GM[0])
    lo = ["F5", "FX", ("T2", 2, 0), ("T2", 2, 1), ("T2", 3, 0), ("T2", 4, 0), ("T2", 3, 1), ("T2", 4, 1), ("T3", 7), ("T3", 4), ("T3", 5), ("T3", 6)] if opt.e2 else ["F5"] + LORDER
    lazy = [K[k] for k in lo if not K[k].issued]
    tsets = [[12, 16], [8, 56]]
    def publish(t):
        S.until(acc_last[t] + 8)
        S.lds(f"ds_write_b128 v{vPA}, {R(acc(t),4)} offset:{(t-2)*1024}")
        S.ins(f"v_mov_b32 v{vONE}, {t}")
        pubq.append(t)
    def pubflush():
        while pubq:
            t = pubq.pop(0)
            S.lds(f"ds_write_addtid_b32 v{vONE} offset:{OFLO + 256}")
            if opt.stamps == 2:
                stamp(a, opt, 10 + t, True); S.done = S.lds_n
    def uses(b, h, ds=None):
        if b < 0 or b > 5: return
        if h < 2: lst = [(b + d, K[("T2", d, h)]) for d in (ds or ((3, 4) if opt.e2 else (2, 3, 4))) if b + d <= 7]
        else: lst = [(b + d, K[("T3", d)]) for d in (7, 4, 5, 6) if b + d <= 7 and b <= 3]
        if lst: force((b, h))
        for t, f in lst:
            need(f); S.until(wr[(b, h)]); am(t, lW + 4 * h, f.reg)
    grp = 0; prevkey = None
    lp = lambda nb: int(str(opt.llist)[nb]) if opt.llist else min(dprio(opt, max(nb - opt.lead, 0)) + opt.lup, 3)
    for nb in range(7):
        b = nb - 1
        pairs = []
        if nb <= 5:
            g0, gm = G0[nb], GM[nb]
            pairs = [[(g0, 3), (g0, 5)], [(gm, 3), (gm, 5)]]
            if nb <= 3: pairs.append([(g0, 7), (gm, 9)])
        if nb > 0 and (lp(nb) != lp(nb - 1) or (opt.alow and nb == 2)): S.ins(f"s_setprio {lp(nb)}")
        if opt.stag and nb > 0 and lp(nb) > 0: early_switch(a, S, opt, f"l{nb}", lp(nb), 3, 6 if nb >= 2 else 7)
        for h in range(3):
            newv = []
            for _ in range(3):
                if lazy: S.load(lazy.pop(0))
            if h < len(pairs):
                tm = tsets[grp % 2]; grp += 1
                for q in list(vq):
                    if q[2] != prevkey: force(q[2])
                for j, (g, box) in enumerate(pairs[h]):
                    need(g)
                    n = mf(tm[j], g.reg, BOX[box], "0")
                    dst = lW + 4 * h + 2 * j
                    newv.append((n + 8, f"v_cvt_pk_bf16_f32 v{dst}, v{tm[j]}, v{tm[j]+1}", (nb, h)))
                    newv.append((n + 8, f"v_cvt_pk_bf16_f32 v{dst+1}, v{tm[j]+2}, v{tm[j]+3}", (nb, h)))
                if h == 0:
                    need(K["F5"]); am(nb + 2, K["F5"].reg, g0.reg)
                    if opt.half:
                        if nb == 3: useq = S.lds(f"ds_read_b32 v{lUT}, v{vCF} offset:20")
                    elif nb < 5: useq = S.lds(f"ds_read_b32 v{lUT}, v{vCF} offset:{16 + 4*(nb+1)}")
                if h == 1 and nb <= 3:
                    need(K["FX"]); am(nb + 4, K["FX"].reg, g0.reg)
                if h == len(pairs) - 1 and nb < 5:
                    if not opt.half: flag_check(a, S, useq, lUT, 16 + 4 * (nb + 1), f"lu{nb+1}")
                    elif nb == 3: cnt_check(a, S, useq, lUT, f"ds_read_b32 v{lUT}, v{vCF} offset:20", 4, "lu4")
                    S.load(G0[nb + 1]); S.load(GM[nb + 1])
            if opt.e2:
                if h == 0 and b >= 0: uses(b, 1, (2,))
                uses(b, h)
                if h == 0 and b >= 0: publish(b + 2)
                if h == 2: uses(nb, 0, (2,))
            else:
                uses(b, h)
                if h == 2 and b >= 0: publish(b + 2)
            if newv:
                vq.extend(newv); prevkey = (nb, h)
    pubflush()

def kprio(a, opt, i):
    if opt.stag:
        p = int(str(opt.stag)[i])
        if i == 0 or p != int(str(opt.stag)[i - 1]):
            a(f"s_cmp_lt_u32 s45, 2\ns_cbranch_scc1 L_kp{i}\ns_setprio {p}\nL_kp{i}:")
        return
    p = max(opt.ktop - i, opt.kmin)
    if opt.klead:
        a(f"s_setprio {max(p,0)}\ns_cbranch_scc0 L_kp{i}\ns_setprio {min(max(p,0)+1,3)}\nL_kp{i}:")
    else:
        a(f"s_setprio {max(p,0)}")

GRID = {0: 200, 1: 200, 2: 224}
def wg_map(kind):
    full = lambda l: [64 * l + min(6 * g, 58) for g in range(11)]
    part = lambda lo, hi: [min(c, hi - 6) for c in range(lo, hi, 6)]
    if kind == 1:
        per = []
        for x in range(4):
            lo, hi = 144 * x, 144 * x + 144
            lst = []
            c = lo
            while c < hi:
                e = min((c // 64 + 1) * 64, hi)
                lst += part(c, e); c = e
            per.append(lst)
    else:
        per = [full(0) + full(1) + part(128, 160), part(160, 192) + full(3) + full(4)[:0] + full(4), full(5) + full(6), full(7) + full(8)]
    n = GRID[kind] // 8
    out = []
    for s_ in range(n):
        for x in range(8):
            l = per[x & 3]
            out.append(l[s_] if s_ < len(l) else 0xffff)
    cov = set()
    for l in per:
        assert len(l) <= n, len(l)
        for c in l:
            assert c // 64 == (c + 5) // 64
            cov |= set(range(c, c + 6))
    assert cov == set(range(576))
    return out

def lane_table():
    rows = []
    misc = {0: ZD-511, 1: ZD-512, 2: ZD-513, 3: ZD-514, 16: Z3[1]-127, 32: ZX-1027, 33: ZX-1028, 34: Z2[3]-63, 48: ZD-509, 52: ZD-510}
    for l in range(64):
        r, g = l & 15, l >> 4
        t = []
        for wdt, lo in ((3, 11), (5, 6), (7, 5), (9, 4)):
            for w in range(4):
                d = 0
                for hf in range(2):
                    if r + lo <= 8 * g + 2 * w + hf <= r + lo + wdt - 1: d |= 0x3F80 << (16 * hf)
                t.append(d)
        kb = (3 - (r & 3)) * KCP - 8 * (r >> 2)
        sel = (l & 1) + 2 * (g >> 1)
        cm = 32 * (g & 1) + (r & 14)
        t += [32 * r + 16 * g, kb + 16 * g, kb + 8 * g, 1024 * (g >> 1) + 32 * r + 16 * (g & 1)]
        t += [16 * l, 1072 - 16 * l, 32 * l, 2 * ([655, 783, 976, 895][sel] - 8) - cm]
        t += [16 * l, 2 * misc.get(l, DUMMY), 2 * ([655, 783, 976, 895][sel] - 8) - cm, 2 * ([848, 719, 1008, 927][sel] - 8) - cm]
        t += [0, 0, 0, 0]
        rows.append([x & 0xFFFFFFFF for x in t])
    return [rows[l][4 * c:4 * c + 4] for c in range(8) for l in range(64)]

def pack64(vals, bits):
    c = 0
    for i, v in enumerate(vals): c |= v << (bits * i)
    return c & 0xffffffff, c >> 32

def generate(opt):
    a = Asm()
    hdr = open("cdna_kernels/" + NAME + ".s.ref").read().split("\n")
    top = [l for l in hdr if l.startswith(";") and "@launch" not in l and "Override launch" not in l and "grid=ceil" not in l]
    out = "\n".join(top) + "\n"
    out += f"; @launch grid=({GRID[opt.map]},1,1) block=({768 + 64 * opt.nm},1,1) lds={LDS_TOTAL}\n"
    out += f""".amdgcn_target "amdgcn-amd-amdhsa--gfx950"
.text
.globl {NAME}_kernel
.p2align 8
.type {NAME}_kernel,@function
{NAME}_kernel:
"""
    stamp(a, opt, 0)
    if opt.stamps: a("s_memrealtime s[100:101]")
    a(f"""
""")
    if opt.map == 0:
        a(f"""
s_and_b32 s3, s2, 7
s_mul_i32 s3, s3, 25
s_lshr_b32 s4, s2, 3
s_add_u32 s3, s3, s4
s_cmp_ge_u32 s3, 99
s_cselect_b32 s6, 56, 0
s_load_dwordx16 s[16:31], s[0:1], s6
s_load_dwordx2 s[32:33], s[0:1], 112
v_lshrrev_b32 v2, 6, v0
s_cselect_b32 s7, 9, 0
s_cselect_b32 s48, 1152, 0
v_readfirstlane_b32 s44, v2
s_cmp_ge_u32 s2, 200
s_cbranch_scc1 L_end
s_cmp_ge_u32 s3, 198
s_cbranch_scc1 L_end
v_and_b32 v1, 63, v0
s_add_u32 s44, s44, {16 - opt.nm}
s_and_b32 s44, s44, 15
{"s_cmp_ge_u32 s44, 14" if opt.nm == 2 else ""}
{"s_cselect_b32 s8, 2, 0" if opt.nm == 2 else ""}
{"s_sub_u32 s44, s44, s8" if opt.nm == 2 else ""}
s_mul_i32 s4, s3, 5958
s_lshr_b32 s4, s4, 16
s_mul_i32 s5, s4, 11
s_sub_u32 s59, s3, s5
s_mul_i32 s5, s59, 6
s_min_u32 s5, s5, 58
s_sub_u32 s4, s4, s7
s_lshl_b32 s4, s4, 6
s_add_u32 s5, s5, s4
""")
    else:
        a(f"""
s_getpc_b64 s[52:53]
L_pc0:
s_and_b32 s3, s2, 7
s_lshl_b32 s4, s2, 2
s_add_u32 s4, s4, L_wgmap-L_pc0
s_cmp_ge_u32 s2, {GRID[opt.map]}
s_cbranch_scc1 L_end
s_load_dword s5, s[52:53], s4
s_cmp_ge_u32 s3, 4
s_cselect_b32 s6, 56, 0
s_load_dwordx16 s[16:31], s[0:1], s6
s_load_dwordx2 s[32:33], s[0:1], 112
v_lshrrev_b32 v2, 6, v0
s_cselect_b32 s48, 1152, 0
v_and_b32 v1, 63, v0
v_readfirstlane_b32 s44, v2
s_add_u32 s44, s44, 12
s_and_b32 s44, s44, 15
""")
    a(f"""
s_setprio 3
""")
    if opt.gate:
        a(f"""
v_mov_b32 v8, 0
v_mov_b32 v9, 0
v_mov_b32 v10, 0
v_mov_b32 v11, 0
v_lshlrev_b32 v7, 4, v1
ds_write_b128 v7, v[8:11] offset:{FL}
s_waitcnt lgkmcnt(0)
s_barrier
""")
    a(f"""
s_cmp_ge_u32 s44, 12
{"s_cbranch_scc0 L_comp" if opt.dry else "s_cbranch_scc1 L_mem0"}
""")
    if opt.dry:
        a("""
s_mov_b64 exec, 0
s_setprio 0
s_mov_b32 s62, 0
s_mov_b32 s45, 0
s_cmp_eq_u32 s44, 13
s_cbranch_scc1 L_proL
s_cmp_eq_u32 s44, 14
s_cbranch_scc1 L_dry2
s_cmp_eq_u32 s44, 15
s_cbranch_scc1 L_dry3
s_branch L_dry0
L_comp:
""")
    a(f"""
s_sub_u32 s45, s44, 6
s_cmp_ge_u32 s44, 6
s_cselect_b32 s45, s45, s44
s_cselect_b32 s62, 1, 0
{"s_cmp_ge_u32 s44, %d" % (12 - opt.touch) if opt.touch else ""}
{"s_cbranch_scc1 L_tdis" if opt.touch else ""}
{"L_tback:" if opt.touch else ""}
{"s_waitcnt lgkmcnt(0)" if opt.map else ""}
{"s_cmp_ge_u32 s5, 1024" if opt.map else ""}
{"s_cbranch_scc1 L_end" if opt.map else ""}
s_add_u32 s46, s5, s45
s_lshl_b32 s8, s46, 8
v_lshl_add_u32 v20, v1, 2, s8
s_lshl_b32 s8, s46, 1
s_and_b32 s8, s8, -4
s_waitcnt lgkmcnt(0)
global_load_dword v{vP}, v20, s[18:19]
global_load_dword v{vP+1}, v20, s[20:21]
global_load_dword v{vP+2}, v20, s[22:23]
global_load_dword v{vP+3}, v20, s[24:25]
s_load_dword s40, s[26:27], s8
s_load_dword s41, s[28:29], s8
""")
    if opt.codepf == 3:
        a(("""
s_cmp_lt_u32 s44, 10
s_cbranch_scc1 L_nocpf
s_getpc_b64 s[52:53]
L_pc:
v_subrev_u32 v6, CPFBASE, v0
v_lshlrev_b32 v6, 7, v6
v_min_u32 v6, L_codeend-L_pc-4, v6
global_load_dword v87, v6, s[52:53]
L_nocpf:
""").replace("CPFBASE", str(640 + 64 * opt.nm)))
    if opt.gate:
        a(f"""
v_lshlrev_b32 v21, 2, v1
v_mov_b32 v{vONE}, 1
ds_add_u32 v21, v{vONE} offset:{FL + 768 - 65536 if False else 0}
""".replace("v21, v2 offset:0", "v21, v2 offset:%d" % (FL + 768)))
    if opt.stamps == 1: stamp(a, opt, 14)

    stamp(a, opt, 1)
    if opt.touch:
        a("s_branch L_tskip\nL_tdis:\ns_mov_b64 exec, 0")
        for k in range(opt.touch - 1): a(f"s_cmp_eq_u32 s44, {12 - opt.touch + k}\ns_cbranch_scc1 L_t{k}")
        a(f"s_branch L_t{opt.touch - 1}\nL_tret:\ns_mov_b64 exec, -1\ns_branch L_tback\nL_tskip:")
        a.marks["t0"] = len(a.lines)
    if opt.bpos == -2: a("s_barrier")
    sl0 = pack64([0,1,2,3,4,5,6,7,8,8,10,11,11,11,14,15], 4)
    a(f"""
s_mul_i32 s61, s45, {CHB}
s_mul_i32 s60, s62, {STGW}
s_add_u32 s60, s60, s61
s_mov_b32 m0, s60
s_movk_i32 s9, {PITCH}
s_mov_b32 s10, {sl0[0]:#x}
s_mov_b32 s11, {sl0[1]:#x}
v_and_b32 v20, 15, v1
v_and_b32 v21, 48, v1
v_add_u32 v24, s60, v21
v_mad_u32_u24 v{vSR}, v20, s9, v24
v_add_u32 v{vSL1}, {16*PITCH}, v24
v_lshlrev_b32 v25, 2, v20
v_lshrrev_b64 v[26:27], v25, s[10:11]
v_and_b32 v26, 15, v26
v_mad_u32_u24 v{vSL0}, v26, s9, v24
v_lshlrev_b32 v{vTA}, 4, v1
v_add_u32 v{vTA}, {TABL}, v{vTA}
s_mov_b32 s49, 0x01000c0c
s_cmp_lg_u32 s62, 0
s_cselect_b32 s49, 0x03020c0c, s49
s_mov_b32 s12, 0xbfb8aa3b
s_mov_b32 s13, 0x3e22f983
s_mov_b32 s14, 0x41000000
s_mov_b32 s15, 0x43800000
s_mov_b32 s63, 0x3fb8aa3b
s_mov_b32 s35, 0x7fff7fff
s_mov_b32 s34, 0x40000
v_mov_b32 v{vONE}, 1
s_mul_i32 s57, s45, {KCH}
s_add_u32 s57, s57, {KA}
s_cmp_lg_u32 s62, 0
s_cselect_b32 s58, s57, s61
s_mul_i32 s56, s45, {UCH}
s_add_u32 s56, s56, {UB}
s_lshl_b32 s8, s45, 7
s_add_u32 s8, s8, {FL}
v_mov_b32 v{vCF}, s8
s_lshl_b32 s8, s62, 10
v_add_u32 v14, s8, v{vTA}
{"s_barrier" if opt.bpos == -3 else ""}
s_waitcnt lgkmcnt(0)
s_lshl_b32 s8, s40, 16
s_and_b32 s40, s40, 0xffff0000
s_lshl_b32 s9, s41, 16
s_and_b32 s41, s41, 0xffff0000
s_bitcmp0_b32 s46, 0
s_cselect_b32 s40, s8, s40
s_cselect_b32 s41, s9, s41
v_mov_b32 v{vDT}, s63
v_mov_b32 v{vDSK}, 0
v_mul_f32 v{vDT}, s40, v{vDT}
v_writelane_b32 v{vDSK}, s41, 0
v_exp_f32 v{vDT}, v{vDT}
s_cmp_lg_u32 s62, 0
""")
    if opt.bpos == -1: a("s_barrier")
    stamp(a, opt, 2)
    if opt.codepf == 3:
        a("s_waitcnt vmcnt(1)\ns_cmp_ge_u32 s44, 10\ns_cbranch_scc1 L_pw\ns_waitcnt vmcnt(0)\nL_pw:\ns_cmp_lg_u32 s62, 0")
    else:
        a("s_waitcnt vmcnt(0)")
    stamp(a, opt, 3)
    if opt.chain: a(f"ds_write_b32 v{vCF}, v{vONE} offset:96")
    kprio(a, opt, 0)
    if opt.bpos == 0: a("s_barrier")
    MH = "v_mfma_f32_16x16x32_f16"
    AB, CC, TA, TB, zf, wf, Zf, w2, w4, MX, MT = 52, 54, 56, 58, 60, 62, 64, 66, 68, 70, 71
    hz1, hz2, hz4, hZ1, hZ2, hZ4 = 88, 89, 90, 91, 92, 93
    RR = {j: 94 + j for j in range(1, 17)}
    LL = {}
    free = list(range(111, 128))
    def hmul(dst, x, m, conj=False):
        if not conj:
            a(f"v_pk_mul_f16 v{dst}, v{x}, v{m} op_sel:[0,0] op_sel_hi:[0,1]")
            a(f"v_pk_fma_f16 v{dst}, v{x}, v{m}, v{dst} op_sel:[1,1,0] op_sel_hi:[1,0,1] neg_lo:[0,1,0]")
        else:
            a(f"v_pk_mul_f16 v{dst}, v{x}, v{m} op_sel:[0,0] op_sel_hi:[0,1] neg_hi:[0,1]")
            a(f"v_pk_fma_f16 v{dst}, v{x}, v{m}, v{dst} op_sel:[1,1,0] op_sel_hi:[1,0,1]")
    dpp = lambda c, rm="0xf": f"v_max_u32_dpp v{MX}, v{MX}, v{MX} {c} row_mask:{rm} bank_mask:0xf"
    a(f"""
v_perm_b32 v{TA}, v{vP}, v{vP}, s49
v_and_b32 v{MX}, s35, v{vP+2}
v_mul_f32 v{TA}, s63, v{TA}
v_and_b32 v{MT}, s35, v{vP+3}
v_exp_f32 v{TA}, v{TA}
v_pk_max_u16 v{MX}, v{MX}, v{MT}
v_perm_b32 v{TA+1}, v{vP+1}, v{vP+1}, s49
v_lshlrev_b32 v{MT}, 16, v{MX}
v_cvt_pk_bf16_f32 v{vDT}, v{vDT}, v{TA}
v_max_u32 v{MX}, v{MX}, v{MT}
v_and_b32 v{TA}, 0xffff0000, v{vDT}
v_lshlrev_b32 v{vDT}, 16, v{vDT}
{dpp("row_shr:1")}
v_pk_mul_f32 {R(AB,2)}, {R(TA,2)}, {R(vDT,2)} op_sel_hi:[1,0]
v_pk_mul_f32 {R(AB,2)}, {R(AB,2)}, s[12:13]
{dpp("row_shr:2")}
v_pk_mul_f32 {R(TA,2)}, {R(AB,2)}, s[14:15] op_sel_hi:[1,0]
v_pk_mul_f32 {R(TB,2)}, {R(AB,2)}, s[14:15] op_sel:[0,1] op_sel_hi:[1,1]
{dpp("row_shr:4")}
v_fract_f32 v{AB+1}, v{AB+1}
v_exp_f32 v{AB}, v{AB}
{dpp("row_shr:8")}
v_cos_f32 v{zf}, v{AB+1}
v_sin_f32 v{zf+1}, v{AB+1}
{dpp("row_bcast:15", "0xa")}
v_fract_f32 v{TB+1}, v{TB+1}
v_pk_mul_f32 {R(zf,2)}, {R(zf,2)}, {R(AB,2)} op_sel_hi:[1,0]
{dpp("row_bcast:31", "0xc")}
v_exp_f32 v{TB}, v{TB}
v_cos_f32 v{Zf}, v{TB+1}
v_readlane_b32 s10, v{MX}, 63
v_sin_f32 v{Zf+1}, v{TB+1}
v_fract_f32 v{TA+1}, v{TA+1}
v_perm_b32 v{CC}, v{vP+2}, v{vP+2}, s49
s_and_b32 s10, s10, 0x7f800000
s_sub_u32 s8, 0x7f000000, s10
s_add_u32 s10, s10, 0x00800000
v_pk_mul_f32 {R(Zf,2)}, {R(Zf,2)}, {R(TB,2)} op_sel_hi:[1,0]
v_perm_b32 v{CC+1}, v{vP+3}, v{vP+3}, s49
v_exp_f32 v{TA}, v{TA}
v_cos_f32 v{wf}, v{TA+1}
v_sin_f32_e64 v{wf+1}, -v{TA+1}
v_pk_mul_f32 {R(CC,2)}, {R(CC,2)}, s[8:9] op_sel_hi:[1,0]
v_cvt_pk_f16_f32 v{hz1}, v{zf}, v{zf+1}
v_pk_mul_f32 {R(wf,2)}, {R(wf,2)}, {R(TA,2)} op_sel_hi:[1,0]
v_cvt_pk_f16_f32 v{hZ1}, v{Zf}, v{Zf+1}
v_mul_f32 v{vC2}, s10, v{vDT}
s_cmp_lg_u32 s62, 0
""")
    if opt.bpos == 1: a("s_barrier")
    if opt.go == 1: a(f"ds_write_b32 v{vCF}, v{vONE} offset:96")
    if opt.stamps == 1: stamp(a, opt, 10)
    pend = []
    def flush():
        for t, slot in pend: a(f"ds_write_addtid_b32 v{t} offset:{PITCH*slot}")
        pend.clear()
    def put(reg, slot):
        pend.append((reg, slot))
        if len(pend) == opt.batch: flush()
    rot = [0]
    def tmp():
        r = 120 + rot[0] % 8; rot[0] += 1; return r
    keep = {0: 111, 2: 112, 4: 113, 6: 114, 256: 115, 260: 116, 512: 117, 768: 118, 1024: 119}
    def L(b, src, m, slot, conj=False):
        dst = keep.get(b) or tmp()
        hmul(dst, src, m, conj); put(dst, slot)
    a(f"v_cvt_pk_f16_f32 v{keep[0]}, v{CC}, v{CC+1}"); put(keep[0], 0)
    hmul(hz2, hz1, hz1)
    a(f"v_cvt_pk_f16_f32 v{RR[1]}, v{wf}, v{wf+1}")
    L(1, keep[0], hz1, 1); L(2, keep[0], hz2, 2)
    if opt.chn:
        L(3, keep[2], hz1, 3); L(4, keep[2], hz2, 4)
    else:
        hmul(hz4, hz2, hz2)
        L(3, keep[2], hz1, 3); L(4, keep[0], hz4, 4)
    L(5, keep[4], hz1, 5); L(6, keep[4], hz2, 6); L(7, keep[6], hz1, 7)
    L(256, keep[0], hZ1, 8); L(258, keep[2], hZ1, 10); L(260, keep[4], hZ1, 11); L(262, keep[6], hZ1, 14)
    L(264, keep[256], RR[1], 15, conj=True)
    flush()
    for k in range(4): a(f"ds_read_b128 {R(vLF+4*k,4)}, v{vSL0} offset:{64*k}")
    if opt.bpos == 2: a("s_barrier")
    if opt.k4 < 2: kprio(a, opt, 1)
    hmul(hZ2, hZ1, hZ1)
    cmul(a, w2, wf, wf)
    L(512, keep[0], hZ2, 0); L(516, keep[4], hZ2, 1); L(768, keep[256], hZ2, 4); L(772, keep[260], hZ2, 5)
    cmul(a, w4, w2, w2)
    if opt.chn:
        keep[1280] = keep[2]; keep[1536] = keep[6]
        L(1024, keep[512], hZ2, 8); L(1280, keep[768], hZ2, 12); L(1536, keep[1024], hZ2, 9); L(1792, keep[1280], hZ2, 13); L(2048, keep[1536], hZ2, 6)
    else:
        hmul(hZ4, hZ2, hZ2)
        L(1024, keep[0], hZ4, 8); L(1280, keep[256], hZ4, 12); L(1536, keep[512], hZ4, 9); L(1792, keep[768], hZ4, 13); L(2048, keep[1024], hZ4, 6)
    flush()
    for k in range(4): a(f"ds_read_b128 {R(vLF+16+4*k,4)}, v{vSR} offset:{64*k}")
    if opt.stamps == 1: stamp(a, opt, 11)
    if opt.bpos == 3: a("s_barrier")
    if opt.go == 2: a(f"ds_write_b32 v{vCF}, v{vONE} offset:96")
    if opt.k4: kprio(a, opt, 2 if opt.k4 == 1 else 1)
    t = tmp()
    a(f"v_mov_b32 v{t}, 0x3c00"); put(t, 0); put(RR[1], 1)
    a(f"v_cvt_pk_f16_f32 v{RR[2]}, v{w2}, v{w2+1}"); put(RR[2], 2)
    a(f"v_cvt_pk_f16_f32 v{RR[4]}, v{w4}, v{w4+1}"); put(RR[4], 4)
    hmul(RR[3], RR[1], RR[2]); put(RR[3], 3)
    hmul(RR[8], RR[4], RR[4]); put(RR[8], 8)
    for j in (5, 6, 7): hmul(RR[j], RR[j-4], RR[4]); put(RR[j], j)
    hmul(RR[16], RR[8], RR[8])
    if opt.rhi:
        a(f"ds_write_addtid_b32 v{RR[16]} offset:{PITCH*16}")
    for j in range(9, 16):
        hmul(RR[j], RR[j-8], RR[8]); put(RR[j], j)
        if j == 11 and not opt.k4: kprio(a, opt, 2)
    flush()
    if opt.rhi:
        WF = 104
        if opt.go == 3: a(f"ds_write_b32 v{vCF}, v{vONE} offset:96")
        a.label("L_tw")
        a(f"ds_read_b32 v13, v{vCF} offset:100")
        a(f"ds_read_b128 v[88:91], v{vTA}")
        a(f"ds_read_b128 v[92:95], v14 offset:1024")
        for k in range(4):
            a(f"ds_read_b128 {R(vRF+4*k,4)}, v{vSR} offset:{64*k}")
            a(f"ds_read_b128 {R(WF+4*k,4)}, v{vSL1} offset:{64*k}")
        if opt.stamps == 1: stamp(a, opt, 12, True)
        if opt.k4: kprio(a, opt, 3 if opt.k4 == 1 else 2)
        else: a(f"s_setprio {opt.xprio}")
        def mm(n, k, m):
            dd = vD + 8 * m + 4 * n
            src = (vRF if n == 0 else WF) + 4 * k
            a(f"{MH} {R(dd,4)}, {R(vLF+16*m+4*k,4)}, {R(src,4)}, {'0' if k == 0 else R(dd,4)}")
        for k in range(4):
            if opt.k4 >= 2 and k == opt.k4: kprio(a, opt, 3)
            a(f"s_waitcnt lgkmcnt({6-2*k})")
            if k == 0:
                a("v_cmp_gt_u32 vcc, 4, v13\ns_cbranch_vccnz L_tws\nL_twd:")
                STUBS.append("L_tws:\ns_sleep 1\ns_waitcnt lgkmcnt(0)\ns_sub_u32 s34, s34, 1\ns_cbranch_scc0 L_tw\ns_branch L_twd")
            adds = [[(vU, 88, 56), (vKF, 89, 57)], [(vKT, 90, 57), (vPW0, 91, 60)], [(vPA, 92, 61), (vAC, 95, 57)], [(vKD, 93, 57), (vRD, 94, 58)]][k]
            for dd_, ss_, sg_ in adds: a(f"v_add_u32 v{dd_}, s{sg_}, v{ss_}")
            for e in range(4):
                t = tmp(); x = vRF + 4 * k + e; m_ = WF + 4 * k + e
                a(f"v_pk_mul_f16 v{t}, v{x}, v{m_} op_sel:[0,0] op_sel_hi:[0,1]")
                a(f"v_pk_fma_f16 v{m_}, v{x}, v{m_}, v{t} op_sel:[1,1,0] op_sel_hi:[1,0,1] neg_lo:[0,1,0]")
                if e == 0: mm(0, k, 0)
                if e == 1 and k > 0: mm(1, k - 1, 0)
                if e == 2: mm(0, k, 1)
                if e == 3 and k > 0: mm(1, k - 1, 1)
        a("s_nop 1")
        mm(1, 3, 0); mm(1, 3, 1)
        a(f"s_setprio {opt.xprio}\ns_nop 0" if opt.k4 else "s_nop 1")
    else:
        for k in range(4): a(f"ds_read_b128 {R(vRF+4*k,4)}, v{vSR} offset:{64*k}")
        put(RR[16], 0)
        for j in range(17, 32):
            t = tmp()
            hmul(t, RR[j-16], RR[16]); put(t, j - 16)
            if j == 19:
                a(f"s_waitcnt lgkmcnt({4 - len(pend)})")
            if 19 <= j < 27:
                k, m = (j - 19) // 2, (j - 19) % 2
                dd = vD + 8 * m
                a(f"{MH} {R(dd,4)}, {R(vLF+16*m+4*k,4)}, {R(vRF+4*k,4)}, {'0' if k == 0 else R(dd,4)}")
        flush()
        if opt.stamps == 1: stamp(a, opt, 12, True)
        for k in range(4): a(f"ds_read_b128 {R(vRF+4*k,4)}, v{vSR} offset:{64*k}")
        a(f"s_setprio {opt.xprio}")
        for k in range(4):
            a(f"s_waitcnt lgkmcnt({3-k})")
            for m in range(2):
                dd = vD + 8 * m + 4
                a(f"{MH} {R(dd,4)}, {R(vLF+16*m+4*k,4)}, {R(vRF+4*k,4)}, {'0' if k == 0 else R(dd,4)}")
    a(f"""
ds_write_b128 v{vPW0}, {R(vD,4)}
s_cmp_lg_u32 s62, 0
s_cbranch_scc1 L_xL
ds_write_addtid_b32 v{vD+8} offset:2048
ds_write_addtid_b32 v{vD+10} offset:2560
{"ds_write_addtid_b32 v%d offset:2816" % (vD+9) if opt.lall else "s_nop 0"}
s_nop 1
ds_write_b128 v{vPW0}, {R(vD+4,4)} offset:512
ds_write_addtid_b32 v{vD+12} offset:2304
{"ds_write_addtid_b32 v%d offset:3072" % (vD+13) if opt.lall else ""}
ds_write_b32 v{vCF}, v{vONE}
""")
    if opt.stamps == 1: stamp(a, opt, 13)
    wait_flags(a, [(20, 4)], "pxd")
    stamp(a, opt, 4)
    A_, B_, Pv, E, O, E2, O2 = 88, 100, 96, 108, 112, 116, 120
    d = lambda k: A_ + k
    a(f"""
ds_read_b128 {R(A_+4,4)}, v{vRD} offset:16
ds_read_b128 {R(B_+4,4)}, v{vRD} offset:{STGW+16}
ds_read_b128 {R(A_,4)}, v{vRD}
ds_read_b128 {R(B_,4)}, v{vRD} offset:{STGW}
{"" if opt.lall else "ds_read_addtid_b32 v20 offset:%d" % (STGW+2048)}
{"" if opt.lall else "ds_read_addtid_b32 v21 offset:%d" % (STGW+2304)}
s_waitcnt lgkmcnt({2 if opt.lall else 4})
v_pk_add_f32 {R(A_+4,2)}, {R(A_+4,2)}, {R(B_+4,2)}
v_pk_add_f32 {R(A_+6,2)}, {R(A_+6,2)}, {R(B_+6,2)}
v_pk_mul_f32 {R(A_+4,2)}, {R(A_+4,2)}, {R(vC2,2)} op_sel_hi:[1,0]
v_pk_mul_f32 {R(A_+6,2)}, {R(A_+6,2)}, {R(vC2,2)} op_sel_hi:[1,0]
s_waitcnt lgkmcnt({0 if opt.lall else 2})
v_pk_add_f32 {R(A_,2)}, {R(A_,2)}, {R(B_,2)}
v_pk_add_f32 {R(A_+2,2)}, {R(A_+2,2)}, {R(B_+2,2)}
v_fma_f32 v{A_}, v{A_}, v{vC2}, v{vDSK}
v_mul_f32 v{A_+1}, v{A_+1}, v{vC2}
v_pk_mul_f32 {R(A_+2,2)}, {R(A_+2,2)}, {R(vC2,2)} op_sel_hi:[1,0]
v_mov_b32_dpp v{Pv}, v{d(5)} wave_shr:1 row_mask:0xf bank_mask:0xf bound_ctrl:0
v_mov_b32_dpp v{Pv+1}, v{d(6)} wave_shr:1 row_mask:0xf bank_mask:0xf bound_ctrl:0
v_mov_b32_dpp v{Pv+2}, v{d(7)} wave_shr:1 row_mask:0xf bank_mask:0xf bound_ctrl:0
v_cvt_pk_bf16_f32 v{E}, v{d(7)}, v{d(6)}
v_cvt_pk_bf16_f32 v{E+1}, v{d(5)}, v{d(4)}
v_cvt_pk_bf16_f32 v{E+2}, v{d(3)}, v{d(2)}
v_cvt_pk_bf16_f32 v{E+3}, v{d(1)}, v{d(0)}
ds_write_b128 v{vKD}, {R(E,4)}
v_cvt_pk_bf16_f32 v{O}, v{d(6)}, v{d(5)}
v_cvt_pk_bf16_f32 v{O+1}, v{d(4)}, v{d(3)}
v_cvt_pk_bf16_f32 v{O+2}, v{d(2)}, v{d(1)}
v_cvt_pk_bf16_f32 v{O+3}, v{d(0)}, v{Pv+2}
ds_write_b128 v{vKD}, {R(O,4)} offset:{KCP}
v_mov_b32 v{E2}, v{E+1}
v_mov_b32 v{E2+1}, v{E+2}
v_mov_b32 v{E2+2}, v{E+3}
v_cvt_pk_bf16_f32 v{E2+3}, v{Pv+2}, v{Pv+1}
ds_write_b128 v{vKD}, {R(E2,4)} offset:{2*KCP}
v_mov_b32 v{O2}, v{O+1}
v_mov_b32 v{O2+1}, v{O+2}
v_mov_b32 v{O2+2}, v{O+3}
v_cvt_pk_bf16_f32 v{O2+3}, v{Pv+1}, v{Pv}
ds_write_b128 v{vKD}, {R(O2,4)} offset:{3*KCP}
""")
    if not opt.lall: a(f"""
s_waitcnt lgkmcnt(4)
v_add_f32 v20, v20, v{vD+9}
v_add_f32 v21, v21, v{vD+13}
v_mul_f32 v20, v20, v{vC2}
v_mul_f32 v21, v21, v{vC2}
v_cvt_pk_bf16_f32 v20, v20, v21
""")
    for sg in range(0 if opt.lall else 4):
        a(f"ds_write_b16 v{vAC}, v20 offset:{sg*(KCP-2)+16}")
        a(f"ds_write_b16_d16_hi v{vAC}, v20 offset:{sg*(KCP-2)}")
    a(f"ds_write_b32 v{vCF}, v{vONE} offset:8")
    stamp(a, opt, 5)
    SD = Stream(a)
    F = {16 + 32 * s: Frag("F", 16 + 32 * s, dF + 4 * s) for s in range(16)}
    for k in range(opt.pre):
        SD.load(F[16 + 32 * k] if opt.blk else F[16 + 32 * (k // 2) + 256 * (k % 2)])
    a(f"s_setprio {dprio(opt, 0)}")
    if opt.stag: a(f"s_cmp_ge_u32 s45, 2\ns_cbranch_scc1 L_dl\ns_setprio 0\nL_dl:")
    wait_flags(a, [(18, 16)] if opt.defer else [(18, 16), (19, 12)], "d", opt.half)
    SD.done = SD.lds_n
    stamp(a, opt, 7, True)
    emit_dense(a, opt, SD, F)
    a("s_branch L_fin")
    a.label("L_xL")
    a(f"""
{"s_nop 0" if opt.lall else "ds_write_addtid_b32 v%d offset:2048" % (vD+9)}
v_mov_b32 v20, s61
s_nop 2
ds_write_b128 v{vPW0}, {R(vD+4,4)} offset:512
{"" if opt.lall else "ds_write_addtid_b32 v%d offset:2304" % (vD+13)}
ds_write_b32 v{vCF}, v{vONE} offset:4
s_mov_b32 m0, s61
""")
    if opt.stamps == 1: stamp(a, opt, 13)
    wait_flags(a, [(21, 0)], "pxl")
    stamp(a, opt, 4)
    n0, n1 = vD + 8, vD + 12
    a(f"""
ds_read_addtid_b32 v24 offset:2048
ds_read_addtid_b32 v25 offset:2304
ds_read_addtid_b32 v26 offset:2560
{"ds_read_addtid_b32 v27 offset:2816" if opt.lall else ""}
{"ds_read_addtid_b32 v28 offset:3072" if opt.lall else ""}
ds_read_b128 v[32:35], v20 offset:2032
ds_read_b128 v[36:39], v20 offset:{2032+STGW}
s_mov_b32 s8, -2
s_waitcnt lgkmcnt(2)
v_add_f32 v24, v24, v{n0}
v_add_f32 v25, v25, v{n1}
v_add_f32 v26, v26, v{n0+2}
v_mul_f32 v24, v24, v{vC2}
v_mul_f32 v25, v25, v{vC2}
v_mul_f32 v26, v26, v{vC2}
v_cvt_pk_bf16_f32 v40, v24, v25
v_mov_b32_dpp v42, v24 quad_perm:[0,0,0,0] row_mask:0x4 bank_mask:0xf
""")
    for sg in range(4):
        a(f"ds_write_b16_d16_hi v{vAC}, v40 offset:{sg*(KCP-2)}")
    if opt.lall:
        a(f"""
v_add_f32 v27, v27, v{n0+1}
v_add_f32 v28, v28, v{n1+1}
v_mul_f32 v27, v27, v{vC2}
v_mul_f32 v28, v28, v{vC2}
v_cvt_pk_bf16_f32 v41, v27, v28
""")
        for sg in range(4):
            a(f"ds_write_b16 v{vRD}, v41 offset:{sg*(KCP-2)+16}")
            a(f"ds_write_b16_d16_hi v{vRD}, v41 offset:{sg*(KCP-2)}")
    a(f"""
s_waitcnt lgkmcnt({12 if opt.lall else 4})
v_mov_b32_dpp v42, v26 quad_perm:[0,1,2,3] row_mask:0x2 bank_mask:0xf
v_add_f32 v33, v33, v37
v_pk_add_f32 v[34:35], v[34:35], v[38:39]
v_mul_f32 v33, v33, v{vC2}
v_pk_mul_f32 v[34:35], v[34:35], {R(vC2,2)} op_sel_hi:[1,0]
s_mov_b32 exec_lo, s8
s_mov_b32 exec_hi, s8
""")
    for sg in range(4):
        a(f"ds_write_b16 v{vAC}, v40 offset:{sg*(KCP-2)+16}")
    a(f"""
s_mov_b64 exec, -1
v_mov_b32_dpp v42, v33 quad_perm:[0,1,2,3] row_mask:0x8 bank_mask:0x1
v_mov_b32_dpp v42, v34 quad_perm:[0,1,2,3] row_mask:0x8 bank_mask:0x2
v_mov_b32_dpp v42, v35 quad_perm:[0,1,2,3] row_mask:0x1 bank_mask:0xf
v_subrev_u32 v19, 4096, v{vTA}
v_cvt_pk_bf16_f32 v42, v42, v42
""")
    for sg in range(4):
        a(f"ds_write_b16 v{vAM}, v42 offset:{sg*(KCP-2)}")
    a(f"ds_write_b32 v{vCF}, v{vONE} offset:12")
    stamp(a, opt, 5)
    SL = Stream(a)
    LK = level_frags()
    for k in LORDER[:opt.prel]:
        SL.load(LK[k])
    a(f"s_setprio {int(str(opt.llist)[0]) if opt.llist else min(dprio(opt, 0) + opt.lup, 3)}")
    if opt.stag: a(f"s_cmp_ge_u32 s45, 2\ns_cbranch_scc1 L_ll\ns_setprio 0\nL_ll:")
    wait_flags(a, [(16, 16), (17, 8)], "l", opt.half)
    SL.done = SL.lds_n
    stamp(a, opt, 7, True)
    for j, wdt in enumerate((3, 5, 7, 9)):
        SL.lds(f"ds_read_b128 {R(BOX[wdt],4)}, v19 offset:{1024*j}")
    if not opt.nol: emit_level(a, opt, SL, LK)
    a("s_branch L_fin")
    NM = opt.nm; TP = 8 // NM; S2 = NM == 2 or opt.st2
    mT, mIN, mSO = 88, 96, 104
    a(f"""
{".p2align 6" if opt.malign else ""}
L_mem0:
{"s_waitcnt lgkmcnt(0)" if opt.map else ""}
{"s_cmp_ge_u32 s5, 1024" if opt.map else ""}
{"s_cbranch_scc1 L_end" if opt.map else ""}
s_sub_u32 s45, s44, 12
v_mov_b32 v8, 0
v_mov_b32 v9, 0
v_mov_b32 v10, 0
v_mov_b32 v11, 0
v_lshlrev_b32 v17, 4, v1
ds_write_b128 v17, v[8:11] offset:{FL}
v_min_u32 v5, 5, v1
v_mul_u32_u24 v16, {CHB}, v5
ds_write_b32 v16, v8 offset:{OFLO}
ds_write_b32 v16, v8 offset:{OFLO + 256}
s_mul_i32 s8, s45, {6*KCP}
s_add_u32 s8, s8, {KA}
v_add_u32 v7, s8, v17
""")
    for k in range(6): a(f"ds_write_b128 v7, v[8:11] offset:{KCP*k + 1024}")
    a(f"""
v_lshrrev_b32 v7, 2, v1
v_min_u32 v7, 5, v7
v_mul_u32_u24 v7, {KCP}, v7
v_and_b32 v6, 48, v17
v_add3_u32 v7, v7, v6, s8
ds_write_b128 v7, v[8:11]
v_lshrrev_b32 v7, 5, v1
s_lshl_b32 s8, s45, 1
v_add_u32 v7, s8, v7
v_min_u32 v7, 5, v7
v_mul_u32_u24 v7, {UCH}, v7
v_and_b32 v6, 31, v1
v_lshl_add_u32 v6, v6, 4, v7
v_add_u32 v6, {UB}, v6
ds_write_b128 v6, v[8:11]
s_getpc_b64 s[52:53]
L_pc2:
s_add_u32 s52, s52, L_table-L_pc2
s_addc_u32 s53, s53, 0
s_lshl_b32 s8, s45, 11
v_add_u32 v17, s8, v17
s_add_u32 s8, s8, {BOXL}
s_mov_b32 m0, s8
v_lshlrev_b32 v6, 7, v5
{"global_load_lds_dwordx4 v17, s[52:53]" if opt.tearly else ""}
{"global_load_lds_dwordx4 v17, s[52:53] offset:1024" if opt.tearly else ""}
v_and_b32 v4, 15, v1
v_lshrrev_b32 v15, 4, v1
""")
    ts = 1 if opt.tint else TP
    tj = NM if opt.tint else 1
    a(f"""
s_lshl_b32 s47, s5, 1
s_mul_i32 s9, s45, {ts*256*1152}
s_add_u32 s9, s9, s47
v_mul_u32_u24 v19, {4*1152}, v1
s_add_u32 s48, s48, s47
s_mov_b32 s34, {2048*2304}
s_mov_b32 s35, 0x00020000
s_mov_b32 s50, 0x05040100
s_mov_b32 s51, 0x07060302
s_mov_b32 s36, 0x40000
v_lshl_add_u32 v4, v4, 2, v15
v_mul_u32_u24 v18, {4*2304}, v4
s_mul_i32 s8, s45, {ts*512}
s_add_u32 s8, s8, {UB + 512}
v_lshl_add_u32 v3, v1, 3, s8
v_add_u32 v18, s48, v18
s_mul_i32 s8, s45, {ts*4}
s_add_u32 s8, s8, {FL + 16}
v_lshl_add_u32 v14, v5, 7, s8
v_mov_b32 v2, 1
s_and_b32 s8, s45, {1 if S2 else 3}
s_mul_i32 s57, s8, {4608 if S2 else 2304}
s_mov_b32 s56, 1
s_lshr_b32 s8, s8, {0 if S2 else 1}
s_lshl_b32 s8, s8, 8
s_add_u32 s8, s8, {OUTO}
v_lshl_add_u32 v4, v1, 2, s8
""")
    if opt.mord:
        for k in range(NM - 1):
            a(f"s_cmp_eq_u32 s45, {k}\ns_cbranch_scc1 L_mp\ns_setprio {2-k}")
        a.label("L_mp")
    a(f"""
s_waitcnt lgkmcnt(0)
s_mov_b32 s18, {2048*1152}
s_mov_b32 s19, 0x00020000
""")
    if opt.stamps == 1: stamp(a, opt, 14)
    a("s_barrier")
    def chainwait(tag):
        a(f"""
v_mov_b32 v6, {FL + 96 + 128*opt.trig}
L_chw{tag}:
ds_read_b32 v7, v6
s_waitcnt lgkmcnt(0)
s_sub_u32 s36, s36, 1
s_cbranch_scc1 L_chok{tag}
v_cmp_eq_u32 vcc, 0, v7
s_cbranch_vccz L_chok{tag}
s_sleep 2
s_branch L_chw{tag}
L_chok{tag}:
""")
    if opt.chain and NM == 4:
        a(f"s_cmp_lt_u32 s45, {opt.chain}\ns_cbranch_scc1 L_chok")
        chainwait("")
    if opt.go:
        a(f"""
s_mov_b64 exec, 63
s_waitcnt vmcnt(0)
ds_add_u32 v6, v2 offset:{FL + 100}
s_mov_b64 exec, -1
""")
        chainwait("g")
    stamp(a, opt, 1)
    if not opt.tearly: a("global_load_lds_dwordx4 v17, s[52:53]\nglobal_load_lds_dwordx4 v17, s[52:53] offset:1024")
    for j in range(TP):
        if j == 1 and not opt.go:
            a(f"""
s_mov_b64 exec, 63
s_waitcnt vmcnt(4)
ds_add_u32 v6, v2 offset:{FL + 100}
s_mov_b64 exec, -1
""")
        if opt.chain and NM == 2 and j == opt.chain: chainwait("")
        for e in range(4):
            a(f"buffer_load_dwordx3 {R(mUD+16*j+4*e,3)}, v19, s[16:19], s9 offen offset:{e*1152}" + (" nt" if opt.nt else ""))
        if j < TP - 1: a(f"s_add_u32 s9, s9, {tj*256*1152}")
    stamp(a, opt, 2)
    a("s_setprio 3")
    for j in range(TP):
        a(f"s_waitcnt vmcnt({4*(TP-1-j)})")
        q = lambda e, m: mUD + 16 * j + 4 * e + m
        for m in range(3):
            for hi in range(2):
                t = mT + 2 * ((2 * m + hi) % 4)
                a(f"v_perm_b32 v{t}, v{q(1,m)}, v{q(0,m)}, s{50+hi}")
                a(f"v_perm_b32 v{t+1}, v{q(3,m)}, v{q(2,m)}, s{50+hi}")
                a(f"ds_write_b64 v3, {R(t,2)} offset:{(2*m+hi)*UCH + 512*tj*j}")
        if opt.half: a(f"s_mov_b64 exec, 63\nds_add_u32 v6, v2 offset:{FL + 16 + 4*j}\ns_mov_b64 exec, -1")
        else: a(f"ds_write_b32 v14, v2 offset:{4*tj*j}")
        stamp(a, opt, 6 if j == 0 else (11 if j == TP - 1 else (4 if j == 1 else 12)))
    if not S2: a("s_bitcmp1_b32 s45, 0\ns_cselect_b32 s50, s51, s50")
    if NM == 4 and S2: a("s_cmp_lt_u32 s45, 2\ns_cbranch_scc1 L_fin")
    a(f"""
L_mpoll:
ds_read_b32 v8, v16 offset:{OFLO}
s_waitcnt lgkmcnt(0)
v_cmp_gt_u32 vcc, s56, v8
s_cbranch_vccz L_mgo
s_sleep {opt.msleep}
s_sub_u32 s36, s36, 1
s_cbranch_scc0 L_mpoll
L_mgo:
""")
    for c in range(6):
        a(f"ds_read_b32 v{mIN+c}, v4 offset:{CHB*c}")
    a(f"v_add_u32 v4, 512, v4")
    for m in range(3):
        a(f"s_waitcnt lgkmcnt({4-2*m})")
        a(f"v_perm_b32 v{mSO+m}, v{mIN+2*m+1}, v{mIN+2*m}, s50")
    a(f"buffer_store_dwordx3 {R(mSO,3)}, v18, s[32:35], s57 offen")
    if S2:
        for m in range(3): a(f"v_perm_b32 v{mSO+4+m}, v{mIN+2*m+1}, v{mIN+2*m}, s51")
        a(f"buffer_store_dwordx3 {R(mSO+4,3)}, v18, s[32:35], s57 offen offset:2304")
    a(f"s_add_u32 s57, s57, {256*2304}\ns_add_u32 s56, s56, 1")
    if opt.stamps:
        a(f"s_cmp_lg_u32 s56, 2\ns_cbranch_scc1 L_ms")
        stamp(a, opt, 10)
        a.label(f"L_ms")
    a(f"s_cmp_le_u32 s56, 8\ns_cbranch_scc1 L_mpoll")
    a.label("L_fin")
    if opt.amp: stamp(a, opt, 8)
    if opt.stamps and not opt.amp:
        stamp(a, opt, 8)
        a("s_waitcnt vmcnt(0)")
        stamp(a, opt, 9)
        a(f"""
s_load_dwordx2 s[8:9], s[0:1], 128
s_waitcnt lgkmcnt(0)
s_lshl_b32 s10, s2, 4
s_add_u32 s10, s10, s44
s_lshl_b32 s10, s10, 7
s_add_u32 s10, s10, {1<<20}
v_mov_b32 v20, s10
""")
        for k in range(1, NST):
            a(f"s_sub_u32 s11, s{64+2*k}, s64\nv_mov_b32 v21, s11\nglobal_store_dword v20, v21, s[8:9] offset:{4*k}")
        a("s_memrealtime s[10:11]\ns_waitcnt lgkmcnt(0)\nv_mov_b32 v21, s10\nglobal_store_dword v20, v21, s[8:9] offset:0")
        a("v_mov_b32 v21, s100\nglobal_store_dword v20, v21, s[8:9] offset:80")
        a("s_getreg_b32 s11, hwreg(HW_REG_HW_ID)\nv_mov_b32 v21, s11\nglobal_store_dword v20, v21, s[8:9] offset:84")
        a("s_getreg_b32 s11, hwreg(HW_REG_XCC_ID)\nv_mov_b32 v21, s11\nglobal_store_dword v20, v21, s[8:9] offset:88")
        a("v_mov_b32 v21, s64\nglobal_store_dword v20, v21, s[8:9] offset:92")
    if opt.amp:
        ampx = ("s_add_u32 s10, s82, %d" % opt.amp) if opt.amp > 100 else ("s_sub_u32 s10, s%d, s64\ns_lshl_b32 s10, s10, 2\ns_add_u32 s10, s10, s82" % (64 + 2 * opt.amp))
        a(f"""
s_waitcnt vmcnt(0)
s_memtime s[82:83]
s_waitcnt lgkmcnt(0)
{"s_cmp_lg_u32 s2, %d" % opt.ampg if opt.ampg >= 0 else ""}
{"s_cbranch_scc1 L_end" if opt.ampg >= 0 else ""}
s_cmp_lg_u32 s44, {opt.ampw}
s_cbranch_scc1 L_end
{ampx}
L_amp:
s_memtime s[12:13]
s_waitcnt lgkmcnt(0)
s_sub_u32 s11, s12, s10
s_cmp_lt_i32 s11, 0
s_cbranch_scc1 L_amp
""")
    a.label("L_end")
    a("s_endpgm")
    for st in STUBS: a(st)
    a.label("L_codeend")
    if opt.touch:
        i = a.marks["t0"]
        for k in range(opt.touch):
            while a.lines[i].endswith(":") or "barrier" in a.lines[i]: i += 1
            a.lines[i:i] = [f"L_t{k}:", "    s_cbranch_execz L_tret"]
            i += 2 + opt.tstep
    out += a.text()
    out += ".p2align 7\n.type L_table,@object\nL_table:\n"
    for row in lane_table():
        out += ".long " + ", ".join(f"{x:#x}" for x in row) + "\n"
    out += ".size L_table, 8192\n"
    if opt.map:
        out += ".type L_wgmap,@object\nL_wgmap:\n"
        m_ = wg_map(opt.map)
        for i in range(0, len(m_), 8): out += ".long " + ", ".join(str(x) for x in m_[i:i+8]) + "\n"
        out += f".size L_wgmap, {4*len(m_)}\n"
    out += f""".section .rodata,"a"
.p2align 6
.amdhsa_kernel {NAME}_kernel
  .amdhsa_next_free_vgpr 128
  .amdhsa_next_free_sgpr 102
  .amdhsa_accum_offset 128
  .amdhsa_group_segment_fixed_size 0
  .amdhsa_kernarg_size 136
  .amdhsa_user_sgpr_count 2
  .amdhsa_user_sgpr_kernarg_segment_ptr 1
  .amdhsa_system_sgpr_workgroup_id_x 1
.end_amdhsa_kernel
"""
    return out

if __name__ == "__main__":
    p = argparse.ArgumentParser()
    p.add_argument("-o", default="cdna_kernels/" + NAME + ".s")
    for k, v in dict(stamps=0, la=6, batch=8, pre=15, prel=1, codepf=0, chain=0, trig=0, rhi=1, sidem=1, blk=8, dry=0, bpos=0, lall=1, clist=33322110, kli=15, stag=0, malign=1, map=0, half=1, touch=0, tstep=20, chn=1, tearly=0, go=0, nm=4, tint=1, st2=1, plist=33221100, llist=3322110, mold=1, bprio=0, wb=0, wbg=8, amp=0, ampg=0, ampw=15, k4=3, alow=0, e2=1, gate=0, nt=0, kmin=0, upf=0, nol=0, msleep=1, quarter=1,
                     ptop=2, pstep=3, lead=-1, xprio=3, mord=0, lateb=1, defer=1, ktop=3, klead=0, thr=0, lup=0).items():
        p.add_argument("--" + k, type=int, default=v)
    opt = p.parse_args()
    open(opt.o, "w").write(generate(opt))
```
